```python
import torch

def _softmax(x, axis=-1):
    return torch.softmax(x, dim=axis)

def _gelu(x):
    return torch.nn.functional.gelu(x, approximate='tanh')

def _silu(x):
    return torch.nn.functional.silu(x)

def _sigmoid(x):
    return torch.sigmoid(x)

def _layernorm(x, axis=-1, eps=1e-05):
    m = x.mean(dim=axis, keepdim=True)
    v = x.var(dim=axis, keepdim=True, unbiased=False)
    return (x - m) / torch.sqrt(v + eps)

def _scatter_add(tgt, idx, src, axis=0):
    return tgt.clone().index_add_(axis, idx, src)

def _segment_sum(src, seg, n):
    out = torch.zeros((n,) + src.shape[1:], dtype=src.dtype)
    return out.index_add_(0, seg, src)

def _pad(x, pw):
    flat = tuple((v for pair in reversed(pw) for v in pair))
    return torch.nn.functional.pad(x, flat)
kernel_name = 'recurrent_scan__memory_aug_recurrent_mem_tr__dense_activation_silu__prompt'

def setup_inputs():

    _w = lambda a: (lambda t: t.to(torch.bfloat16) if t.is_floating_point() else t)(torch.as_tensor(a))

    def _A_setup():
        B, S, Dm = (1, 2048, 640)
        H, Dh = (32, 128)
        M, seg = (8, 32)
        seg = min(seg, S)
        S = S // seg * seg
        return {'x': _w((lambda *s: torch.randn(*s, dtype=torch.bfloat16) * 0.1)(B, S, Dm)), 'mem0': _w((lambda *s: torch.randn(*s, dtype=torch.bfloat16) * 1.6)(B, M, Dm)), 'Wq': _w((lambda *s: torch.randn(*s, dtype=torch.bfloat16) * 0.8)(Dm, H, Dh) * Dm ** (-0.5)), 'Wk': _w((lambda *s: torch.randn(*s, dtype=torch.bfloat16) * 0.8)(Dm, H, Dh) * Dm ** (-0.5)), 'Wv': _w((lambda *s: torch.randn(*s, dtype=torch.bfloat16) * 1.6)(Dm, H, Dh) * Dm ** (-0.5)), 'Wo': _w((lambda *s: torch.randn(*s, dtype=torch.bfloat16) * 1.6)(H, Dh, Dm) * (H * Dh) ** (-0.5)), 'seg_len': seg}
    _A_in = _A_setup()

    def _B_setup():
        B, S, D, F = (1, 2048, 640, 1728)
        return {'x': _w((lambda *s: torch.randn(*s, dtype=torch.bfloat16) * 0.1)(B, S, D)), 'w1': _w((lambda *s: torch.randn(*s, dtype=torch.bfloat16) * 0.4)(D, F) * D ** (-0.5)), 'w2': _w((lambda *s: torch.randn(*s, dtype=torch.bfloat16) * 0.4)(F, D) * F ** (-0.5))}
    _B_in = _B_setup()
    return {'A_x': _A_in['x'], 'A_mem0': _A_in['mem0'], 'A_Wq': _A_in['Wq'], 'A_Wk': _A_in['Wk'], 'A_Wv': _A_in['Wv'], 'A_Wo': _A_in['Wo'], 'A_seg_len': _A_in['seg_len'], 'B_x': _B_in['x'], 'B_w1': _B_in['w1'], 'B_w2': _B_in['w2']}

def reference(A_x, A_mem0, A_Wq, A_Wk, A_Wv, A_Wo, A_seg_len, B_x, B_w1, B_w2):

    def _A_ref(x, mem0, Wq, Wk, Wv, Wo, seg_len):
        B, S, Dm = x.shape
        H, Dh = (Wq.shape[1], Wq.shape[2])
        M = mem0.shape[1]
        scale = Dh ** (-0.5)
        n_seg = S // seg_len
        L = M + seg_len
        idx = torch.arange(L)
        mask = (idx[:, None] < M) | (idx[:, None] >= idx[None, :])
        mem = mem0
        outs = []
        for s in range(n_seg):
            xs = x[:, s * seg_len:(s + 1) * seg_len, :].clone()
            h = torch.concatenate([mem, xs], axis=1)
            q = torch.einsum('btd,dhe->bhte', h, Wq)
            k = torch.einsum('btd,dhe->bhte', h, Wk)
            v = torch.einsum('btd,dhe->bhte', h, Wv)
            scores = torch.einsum('bhqe,bhke->bhqk', q, k) * scale
            scores = torch.where(mask[None, None], scores, -1000000000.0)
            p = _softmax(scores, axis=-1)
            o = torch.einsum('bhqk,bhke->bhqe', p, v)
            o = torch.einsum('bhte,hed->btd', o, Wo)
            mem = o[:, :M, :].clone()
            outs.append(o[:, M:, :])
        return torch.concatenate(outs, axis=1)

    def _B_ref(x, w1, w2):
        h = torch.einsum('bsd,df->bsf', x, w1)
        h = _silu(h)
        out = torch.einsum('bsf,fd->bsd', h, w2)
        return out
    x = A_x
    xn = _layernorm(x, axis=-1)
    s = _A_ref(xn, A_mem0, A_Wq, A_Wk, A_Wv, A_Wo, A_seg_len)
    g = _silu(_B_ref(xn, B_w1, B_w2))
    return x + s * g
```

```python
import re
RX = re.compile(r'\b([vas])(\d+)\b|\b([vas])\[(\d+):(\d+)\]|\b(vcc|exec|m0|scc)\b')
def regs(op):
    out = set()
    for m in RX.finditer(op):
        if m.group(1): out.add((m.group(1), int(m.group(2))))
        elif m.group(3):
            for i in range(int(m.group(4)), int(m.group(5)) + 1): out.add((m.group(3), i))
        else:
            n = m.group(6)
            out.add((n, 0))
    return out
TRANS = ('v_exp_', 'v_log_', 'v_rcp_', 'v_rsq_', 'v_sqrt_', 'v_sin_', 'v_cos_')
class Ins:
    def __init__(s, text):
        s.text = text
        t = text.split(';')[0].strip()
        s.label = t.endswith(':')
        s.dir = t.startswith('.') or t == ''
        p = t.split(None, 1)
        s.op = p[0] if p else ''
        rest = p[1] if len(p) > 1 else ''
        ops = [o.strip() for o in rest.split(',')]
        s.ops = ops
        op = s.op
        s.mfma = op.startswith('v_mfma') or op.startswith('v_smfmac')
        s.valu = op.startswith('v_') and not s.mfma
        s.vmem = op.startswith(('buffer_', 'global_'))
        s.ds = op.startswith('ds_')
        s.salu = op.startswith('s_')
        s.trans = op.startswith(TRANS)
        s.dpp = ('row_' in rest or 'quad_perm' in rest or 'wave_' in rest or 'row_newbcast' in rest) and s.valu
        s.w = set(); s.r = set()
        if s.label or s.dir: return
        if s.mfma:
            s.passes = 8 if '32x32' in op else 4
            s.w = regs(ops[0]); s.ab = regs(ops[1]) | regs(ops[2])
            if op.startswith('v_smfmac'):
                s.ab |= regs(ops[3]); s.c = set(s.w)
            else: s.c = regs(ops[3])
            s.r = s.ab | s.c
        elif s.valu:
            nd = 1
            if op.startswith(('v_add_co', 'v_sub_co', 'v_addc_co', 'v_subb_co', 'v_div_scale')): nd = 2
            if op.startswith(('v_permlane32_swap', 'v_permlane16_swap', 'v_swap')): nd = 2
            for o in ops[:nd]: s.w |= regs(o)
            for o in ops[nd:]: s.r |= regs(o)
            if op.startswith(('v_permlane32_swap', 'v_permlane16_swap', 'v_swap', 'v_fmac', 'v_mac', 'v_dot2c', 'v_writelane')) or s.dpp: s.r |= s.w
            if op.startswith('v_cmpx'): s.w |= {('exec', 0)}
            if op.startswith('v_cndmask') and len(ops) == 3: s.r |= {('vcc', 0)}
            if op == 'v_nop': s.w = set(); s.r = set()
        elif s.vmem:
            ld = '_load' in op or ('atomic' in op and 'sc0' in rest)
            lds = rest.rstrip().endswith('lds') or 'load_lds' in op
            s.lds = lds
            if ld and not lds:
                s.w = regs(ops[0])
                for o in ops[1:]: s.r |= regs(o)
                if 'atomic' in op: s.r |= s.w
            else:
                for o in ops: s.r |= regs(o)
            if lds: s.r |= {('m0', 0)}
            s.wide_store = ('store' in op) and ('x3' in op or 'x4' in op)
            if s.wide_store:
                s.sdata = regs(ops[0]) if op.startswith('buffer') else regs(ops[1])
        elif s.ds:
            if '_read' in op or 'permute' in op or 'swizzle' in op or '_rtn' in op:
                s.w = regs(ops[0])
                for o in ops[1:]: s.r |= regs(o)
            else:
                for o in ops: s.r |= regs(o)
        elif s.salu:
            if op.startswith(('s_cmp', 's_cbranch', 's_branch', 's_waitcnt', 's_nop', 's_barrier', 's_endpgm', 's_sleep', 's_setprio', 's_bitcmp')):
                for o in ops: s.r |= regs(o)
            else:
                s.w = regs(ops[0])
                for o in ops[1:]: s.r |= regs(o)
                if 'saveexec' in op: s.w |= {('exec', 0)}
    def states(s):
        if s.label or s.dir: return 0
        if s.op == 's_nop': return int(s.ops[0]) + 1
        return 1
def isv(x): return {r for r in x if r[0] in 'va' and len(r[0]) == 1}
def iss(x): return {r for r in x if r[0] in ('s', 'vcc')}
def need(p, c):
    n = 0
    if p.valu:
        pw = isv(p.w)
        if c.mfma and pw & c.r: n = max(n, 2)
        if c.valu:
            if c.dpp and pw & c.r: n = max(n, 2)
            if c.op.startswith('v_permlane') and pw & c.r: n = max(n, 2)
            if c.op.startswith(('v_readlane', 'v_readfirstlane')) and pw & c.r: n = max(n, 1)
            if p.trans and not c.trans and pw & c.r: n = max(n, 1)
            if ('op_sel' in p.text or 'sdwa' in p.text.lower() or 'dst_sel' in p.text) and not p.op.startswith('v_pk') and pw & (c.r | c.w): n = max(n, 1)
            sw = iss(p.w)
            if sw & c.r: n = max(n, 4 if c.op.startswith(('v_readlane', 'v_writelane', 'v_div_fmas')) else 2)
            if ('exec', 0) in p.w:
                if c.dpp: n = max(n, 5)
                if c.op.startswith(('v_readlane', 'v_readfirstlane', 'v_writelane', 'v_permlane')): n = max(n, 4)
                if ('exec', 0) in c.r: n = max(n, 2)
        if ('exec', 0) in p.w and c.mfma: n = max(n, 4)
        if c.vmem and iss(p.w) & c.r: n = max(n, 5)
        if p.op.startswith('v_dot') and (c.valu or c.mfma or c.vmem or c.ds) and pw & (c.r | c.w) and not (c.op == p.op and pw & c.w): n = max(n, 3)
    if p.mfma:
        k = {4: 0, 8: 1}[p.passes]
        if c.mfma:
            if p.w & c.ab: n = max(n, (8, 12)[k])
            if p.w & c.c and not (p.w == c.c and p.passes == c.passes): n = max(n, (6, 10)[k])
            if p.w & c.w and not (p.w == c.c): n = max(n, (8, 12)[k])
        elif c.valu or c.vmem or c.ds:
            if p.w & (c.r | c.w): n = max(n, (8, 12)[k])
            if c.valu and p.c & c.w: n = max(n, (3, 7)[k])
    if p.vmem and getattr(p, 'wide_store', False):
        if (c.valu or c.mfma) and p.sdata & c.w: n = max(n, 2)
        elif p.sdata & c.w: n = max(n, 1)
    if p.salu and ('m0', 0) in p.w and c.vmem and getattr(c, 'lds', False): n = max(n, 1)
    return n
class Asm:
    def __init__(s): s.L = []; s.uid = 0
    def __call__(s, text):
        for t in text.split('\n'):
            t = t.rstrip()
            if t.strip() == '': continue
            s.L.append(t if t.strip().endswith(':') or t.strip().startswith('.') or t.strip().startswith(';') else '    ' + t.strip())
    def lab(s, base): s.uid += 1; return f'{base}_{s.uid}'
    def text(s, pad=True):
        out = []; hist = []
        npad = 0
        for t in s.L:
            if t.strip().startswith(';'): out.append(t); continue
            c = Ins(t)
            if not (c.label or c.dir) and pad:
                dist = 0; req = 0
                for p in reversed(hist):
                    nd = need(p, c) - dist
                    if nd > req: req = nd
                    dist += p.states()
                    if dist >= 20: break
                while req > 0:
                    k = min(req, 16)
                    nop = Ins(f'    s_nop {k-1}')
                    out.append(nop.text); hist.append(nop); req -= k; npad += 1
            out.append(t)
            if not (c.label or c.dir):
                hist.append(c)
                if c.op in ('s_branch', 's_endpgm'): hist = []
                if len(hist) > 40: hist = hist[-30:]
        s.npad = npad
        return '\n'.join(out) + '\n'
```

```python
from common import *
SM = 'v_smfmac_f32_16x16x64_bf16'
MF = 'v_mfma_f32_16x16x32_bf16'
L_MEM, L_Q, L_K, L_KX, L_QX = 0, 10240, 12288, 16384, 24576
AR = 100
DPP = 'row_mask:0xf bank_mask:0xf'
def memw(opbase):
    return [grp(lambda half, jp, c: 64*ks + half + 2*OFFS[jp][c], 8192, 0, opbase + 2*ks, opbase + 2*ks + 1) for ks in range(10)]
def chain_lane(A):
    common_lane(A)
    A('v_and_b32 v3, 2, v1\nv_cmp_eq_u32 vcc, 0, v3\nv_mov_b32 v3, 0xeeee\nv_mov_b32 v5, 0x4444\nv_cndmask_b32 v3, v3, v5, vcc')
    A('v_lshrrev_b32 v2, 1, v13\nv_lshlrev_b32 v2, 8, v2\nv_and_b32 v14, 3, v12\nv_lshl_add_u32 v2, v14, 6, v2\nv_and_b32 v14, 1, v13\nv_lshl_add_u32 v2, v14, 5, v2\nv_lshrrev_b32 v14, 2, v12\nv_lshl_add_u32 v2, v14, 3, v2')
    A('v_lshlrev_b32 v176, 3, v1')
    A('v_and_b32 v14, 1, v13\nv_lshlrev_b32 v14, 18, v14\nv_lshrrev_b32 v15, 1, v13\nv_lshlrev_b32 v15, 17, v15')
    A('v_add_u32 v14, v14, v15\nv_lshl_add_u32 v14, v12, 2, v14')
    A('s_lshl_b32 s20, s17, 8\ns_lshl_b32 s21, s18, 6\ns_add_u32 s20, s20, s21\nv_add_u32 v10, s20, v14')
    A(f's_lshl_b32 s20, s18, 9\ns_add_u32 s20, s20, {L_Q}\nv_lshlrev_b32 v5, 5, v12\nv_lshl_add_u32 v5, v13, 3, v5\nv_add_u32 v5, s20, v5')
def dma_mem(A, P):
    A('s_mov_b32 m0, 0\ns_add_u32 s20, s22, 4096')
    for c in range(4): A(f'buffer_load_dwordx4 v4, s[8:11], s22 offen offset:{c*1024} sc1 lds')
    A('s_mov_b32 m0, 4096')
    for c in range(4): A(f'buffer_load_dwordx4 v4, s[8:11], s20 offen offset:{c*1024} sc1 lds')
    A('s_mov_b32 m0, 8192')
    for c in range(2): A(f'buffer_load_dwordx4 v4, s[8:11], s23 offen offset:{c*1024} sc1 lds')
def mem_slot(A, P):
    A(f's_and_b32 s20, s16, 3\ns_lshl_b32 s22, s20, 14\ns_add_u32 s22, s22, s19\ns_lshl_b32 s23, s20, 11\ns_add_u32 s23, s23, s19\ns_add_u32 s23, s23, {4*MBLK}')
def trread(A, k): A(f'ds_read_b64_tr_b16 v[{AR+2*k}:{AR+2*k+1}], v2 offset:{L_MEM + k*512}')
def first_pass(A, acc0, acc1, opbase, fill=None):
    for k in range(6): trread(A, k)
    issued = 6
    for ks in range(10):
        A(f's_waitcnt lgkmcnt({issued - 2*(ks+1)})')
        A(f'{SM} v[{acc0}:{acc0+3}], v[{AR+4*ks}:{AR+4*ks+3}], {wreg(opbase+2*ks)}, v3')
        if issued < 20: trread(A, issued); trread(A, issued + 1); issued += 2
        A(f'{SM} v[{acc1}:{acc1+3}], v[{AR+4*ks}:{AR+4*ks+3}], {wreg(opbase+2*ks+1)}, v3')
        if fill and ks in fill: A(fill[ks])
def slow_check(A, lab_slow, lab_back, lab_retry, lab_fail):
    A(f'{lab_slow}:')
    A(f'v_pk_max_u16 v140, v{AR}, v{AR+1}')
    for k in range(2, 40): A(f'v_pk_max_u16 v140, v140, v{AR+k}')
    A('v_lshrrev_b32 v141, 16, v140\nv_max_u16 v140, v140, v141\nv_and_b32 v140, 0xffff, v140\nv_cmp_eq_u32 vcc, 0xffff, v140')
    A(f's_cbranch_vccz {lab_back}')
    A(f's_add_u32 s24, s24, 1\ns_cmp_gt_u32 s24, 200000\ns_cbranch_scc1 {lab_fail}')
    A(f's_waitcnt lgkmcnt(0)\ns_barrier\ns_branch {lab_retry}')
def stats(A, P):
    if P.get('DBG'):
        A(f's_lshl_b32 s20, s2, 4\ns_add_u32 s20, s20, {OFF_REC + 2*MB}\nv_mov_b32 v20, s24\nv_mov_b32 v21, s16\nv_mov_b32 v22, s26\nv_mov_b32 v23, s27\nv_mov_b32 v24, 0')
        A('buffer_store_dwordx4 v[20:23], v24, s[4:7], s20 offen')
    A('s_endpgm')
def lane0_addr(A, dst, cond):
    A(f'{cond}\ns_cselect_b32 s20, s20, {OOB}\nv_mov_b32 {dst}, s20\nv_cmp_eq_u32 vcc, 0, v1\nv_mov_b32 v15, {OOB}\nv_cndmask_b32 {dst}, v15, {dst}, vcc')
def flag_cons_addr(A, dst, base, K):
    A(f's_add_u32 s20, s19, {base}\nv_min_u32 {dst}, {K-1}, v1\nv_lshlrev_b32 {dst}, 7, {dst}\nv_add_u32 {dst}, s20, {dst}')
def poll(A, P, addr, sval, r0):
    N = P.get('NP', 4); l = A.lab('poll')
    A('s_mov_b32 s21, 0')
    for i in range(N):
        A(f'buffer_load_dword v{r0+i}, {addr}, s[8:11], 0 offen sc1')
        if i < N-1: A('s_sleep 1')
    A(f'{l}:')
    for i in range(N):
        A(f's_waitcnt vmcnt({N-1})\nv_cmp_gt_i32 vcc, {sval}, v{r0+i}\ns_cbranch_vccz {l}_got')
        A(f'buffer_load_dword v{r0+i}, {addr}, s[8:11], 0 offen sc1')
    A(f's_add_u32 s21, s21, 1\ns_cmp_lt_u32 s21, 100000\ns_cbranch_scc1 {l}\ns_mov_b32 s24, 0x7000000\n{l}_got:')
def stamp(A, P, k):
    if P.get('TS'): A(f's_memtime s[{80+2*k}:{81+2*k}]')
def stamp_out(A, P, vt):
    if not P.get('TS'): return
    A(f's_waitcnt lgkmcnt(0)\ns_lshl_b32 s20, s2, 2\ns_add_u32 s20, s20, s18\ns_lshl_b32 s20, s20, 7\ns_add_u32 s20, s20, s16\ns_lshl_b32 s20, s20, 5\ns_add_u32 s20, s20, {OFF_TS}')
    for k in range(8): A(f'v_mov_b32 v{vt+k}, s{80+2*k}')
    A(f'v_mov_b32 v{vt+8}, 0\nbuffer_store_dwordx4 v[{vt}:{vt+3}], v{vt+8}, s[4:7], s20 offen\nbuffer_store_dwordx4 v[{vt+4}:{vt+7}], v{vt+8}, s[4:7], s20 offen offset:16')
def cached_wait(A, P, addr, tmp, need, cache):
    if not P.get('SYNC'): return
    l = A.lab('cw')
    A(f's_cmp_ge_i32 {cache}, {need}\ns_cbranch_scc1 {l}_ok\ns_mov_b32 s21, 0\n{l}:')
    A(f'buffer_load_dword v{tmp}, {addr}, s[8:11], 0 offen sc1\ns_add_u32 s20, {need}, 6\ns_waitcnt vmcnt(0)')
    A(f'v_cmp_gt_i32 vcc, s20, v{tmp}\ns_mov_b32 {cache}, s20\ns_cbranch_vccz {l}_ok')
    A(f'v_cmp_gt_i32 vcc, {need}, v{tmp}\ns_mov_b32 {cache}, {need}\ns_cbranch_vccz {l}_ok')
    A(f's_sleep 2\ns_add_u32 s21, s21, 1\ns_cmp_lt_u32 s21, 200000\ns_cbranch_scc1 {l}\n{l}_ok:')
def role_qk(A, P):
    chain_lane(A)
    set_srd(A, 12, 16, 640*8192); load_weights(A, memw(0), 's[12:15]', 'v10')
    set_srd(A, 12, 24, 640*8192); load_weights(A, memw(20), 's[12:15]', 'v10')
    A('v_lshlrev_b32 v176, 3, v1')
    A(f's_mul_i32 s20, s18, 576\ns_add_u32 s20, s20, {L_K}\nv_lshlrev_b32 v6, 4, v12\nv_and_b32 v14, 1, v13\nv_lshl_add_u32 v6, v14, 3, v6\nv_lshrrev_b32 v14, 1, v13\nv_lshl_add_u32 v6, v14, 2, v6\nv_add_u32 v6, s20, v6')
    A(f'v_and_b32 v14, 1, v13\nv_mul_u32_u24 v7, 576, v14\nv_lshrrev_b32 v14, 3, v12\nv_mul_u32_u24 v14, 288, v14\nv_add_u32 v7, v7, v14')
    A(f'v_lshrrev_b32 v14, 1, v13\nv_lshl_add_u32 v7, v14, 6, v7\nv_bfe_u32 v14, v12, 2, 1\nv_lshl_add_u32 v7, v14, 4, v7\nv_and_b32 v14, 1, v12\nv_lshl_add_u32 v7, v14, 3, v7\nv_add_u32 v7, {L_K}, v7')
    A('v_lshrrev_b32 v8, 3, v12\nv_lshlrev_b32 v8, 8, v8\nv_lshl_add_u32 v8, v13, 5, v8\nv_and_b32 v15, 7, v12\nv_lshl_add_u32 v8, v15, 2, v8')
    A('s_lshr_b32 s20, s17, 4\ns_lshl_b32 s20, s20, 14\ns_and_b32 s21, s17, 15\ns_lshl_b32 s21, s21, 9\ns_add_u32 s20, s20, s21\ns_lshl_b32 s21, s18, 7\ns_add_u32 s20, s20, s21\nv_add_u32 v8, s20, v8')
    A('v_lshlrev_b32 v9, 4, v13\nv_lshl_add_u32 v9, v12, 1, v9\ns_lshl_b32 s20, s17, 7\ns_lshl_b32 s21, s18, 6\ns_add_u32 s20, s20, s21\nv_add_u32 v9, s20, v9')
    A(f'v_and_b32 v15, 9, v12\nv_cmp_eq_u32 vcc, 0, v15\nv_mov_b32 v15, {OOB}\nv_cndmask_b32 v9, v15, v9, vcc')
    A('v_and_b32 v10, 8, v12\nv_and_b32 v14, 3, v12\nv_lshl_add_u32 v10, v14, 1, v10\nv_bfe_u32 v14, v12, 2, 1\nv_add_u32 v10, v10, v14\nv_lshlrev_b32 v10, 4, v10\nv_lshl_add_u32 v10, v13, 8, v10')
    A('s_cmp_lt_u32 s18, 2\ns_cbranch_scc1 L_qk_i0\nv_mov_b32 v10, v4\nL_qk_i0:')
    A(f's_and_b32 s20, s18, 1\ns_lshl_b32 s20, s20, 12\nv_add_u32 v177, s20, v4')
    A('s_and_b32 s20, s18, 1\ns_lshl_b32 s20, s20, 4\nv_add_u32 v14, s20, v12\nv_lshlrev_b32 v15, 2, v13\nv_sub_u32 v14, v14, v15')
    for rt in range(2):
        for r in range(4): A(f'v_cmp_le_i32 s[{64+8*rt+2*r}:{65+8*rt+2*r}], {16*rt+r}, v14')
    A(f'v_mov_b32 v178, {f32(-1e9*LOG2E)}')
    A(f'v_lshlrev_b32 v179, 4, v12\nv_lshl_add_u32 v179, v13, 2, v179\nv_cmp_gt_u32 vcc, 2, v13\nv_mov_b32 v15, {OOB}\nv_cndmask_b32 v179, v15, v179, vcc')
    A(f's_and_b32 s20, s18, 1\ns_lshl_b32 s20, s20, 5\ns_add_u32 s20, s20, s17\ns_lshl_b32 s36, s20, 10\ns_add_u32 s36, s36, {OFF_PXX}\ns_lshl_b32 s37, s20, 8\ns_add_u32 s37, s37, {OFF_PXM}')
    A(f's_mov_b32 s33, {f32(CSC)}')
    A(f's_lshl_b32 s25, s17, 14\ns_add_u32 s25, s25, {OFF_KQ}')
    A('s_mov_b32 s16, 0\ns_mov_b32 s24, 0\ns_mov_b32 s26, 0\ns_mov_b32 s27, 0\ns_mov_b32 s38, -1\ns_mov_b32 s39, -1')
    A(f's_lshl_b32 s20, s17, 7\ns_add_u32 s20, s20, {FQ}\ns_add_u32 s20, s20, s19\ns_cmp_lt_u32 s17, {P["KQ"]}\ns_cselect_b32 s20, s20, {OOB}')
    lane0_addr(A, 'v142', 's_cmp_eq_u32 s18, 3')
    flag_cons_addr(A, 'v143', FO, P['KO'])
    A(f's_lshl_b32 s20, s17, 7\ns_add_u32 s20, s20, {FCH}\ns_add_u32 s20, s20, s19')
    lane0_addr(A, 'v180', 's_cmp_eq_u32 s18, 3')
    A(f's_lshl_b32 s20, s17, 8\ns_add_u32 s20, s20, {FWK}\ns_add_u32 s20, s20, s19\nv_mov_b32 v181, s20')
    def kq_dma():
        if P.get('SYNC'):
            cached_wait(A, P, 'v181', 144, 's16', 's38')
            A('v_xor_b32 v181, 128, v181\ns_mov_b32 s20, s38\ns_mov_b32 s38, s39\ns_mov_b32 s39, s20')
        for j in range(16):
            if (j & 3) == 0: A(f's_mov_b32 m0, {L_KX + j*1024}')
            A(f'buffer_load_dwordx4 v4, s[4:7], s25 offen offset:{(j&3)*1024} sc1 lds')
            if (j & 3) == 3: A('s_add_u32 s25, s25, 4096')
        A(f's_add_u32 s25, s25, {31*16384}')
    A('s_cmp_eq_u32 s18, 3\ns_cbranch_scc0 L_qk_next')
    kq_dma()
    A('L_qk_next:')
    stamp_out(A, P, 150)
    A('s_cmp_eq_u32 s18, 2\ns_cbranch_scc0 L_qk_nodma')
    mem_slot(A, P)
    A('s_sub_u32 s35, s16, 1')
    poll(A, P, 'v143', 's35', 144)
    A('s_branch L_qk_dma')
    A('L_qk_retry:')
    A('s_cmp_eq_u32 s18, 2\ns_cbranch_scc0 L_qk_nodma')
    A('L_qk_dma:')
    dma_mem(A, P)
    stamp(A, P, 0)
    A('L_qk_nodma:')
    for r in range(16, 44): A(f'v_mov_b32 v{r}, 0')
    A('v_mov_b32 v149, s16\nv_add_u32 v148, -1, v149')
    A(f's_and_b32 s20, s16, 3\ns_lshl_b32 s28, s20, 15\ns_add_u32 s28, s28, s19\ns_add_u32 s28, s28, {8*MBLK}')
    A(f's_lshr_b32 s21, s20, 1\ns_lshl_b32 s21, s21, 14\ns_and_b32 s20, s20, 1\ns_lshl_b32 s20, s20, 12\ns_add_u32 s29, s20, s21\ns_add_u32 s29, s29, s19\ns_add_u32 s29, s29, {5*MBLK}')
    A('s_waitcnt vmcnt(0)\ns_barrier')
    stamp(A, P, 1)
    first_pass(A, 16, 20, 0, {8: 'buffer_store_dword v148, v180, s[8:11], 0 offen sc1'})
    def k(i, ks):
        if P['FQ'] == 10*i + ks: A('buffer_store_dword v149, v142, s[8:11], 0 offen sc1')
        A(f'{SM} v[{24+4*i}:{27+4*i}], v[{AR+4*ks}:{AR+4*ks+3}], {wreg(20+2*ks+i)}, v3')
    def kxr(j): A(f'ds_read_b128 v[{68+4*j}:{71+4*j}], v10 offset:{L_KX + j*1024}')
    k(0, 0); kxr(0); kxr(1); kxr(2); k(0, 1); kxr(3); kxr(4); kxr(5)
    A('v_add_f32 v16, v16, v18\nv_add_f32 v17, v17, v19'); k(0, 2)
    A('v_cmp_u_f32 vcc, v16, v17\nv_add_f32 v20, v20, v22\nv_add_f32 v21, v21, v23'); k(0, 3)
    A('s_cbranch_vccnz L_qk_slow\nL_qk_back:')
    A('v_mul_f32 v16, s33, v16\nv_mul_f32 v17, s33, v17'); k(0, 4)
    A('v_mul_f32 v20, s33, v20\nv_mul_f32 v21, s33, v21\nv_cvt_pk_bf16_f32 v16, v16, v17'); k(0, 5)
    A('v_cvt_pk_bf16_f32 v17, v20, v21\nds_write_b64 v5, v[16:17]'); k(0, 6)
    kxr(6); kxr(7); k(0, 7)
    for j in range(2): A(f'ds_read_b128 v[{160+4*j}:{163+4*j}], v177 offset:{L_QX + j*1024}')
    k(0, 8)
    for j in range(2, 4): A(f'ds_read_b128 v[{160+4*j}:{163+4*j}], v177 offset:{L_QX + j*1024}')
    k(0, 9); k(1, 0); k(1, 1); k(1, 2)
    A('s_waitcnt lgkmcnt(6)\ns_barrier'); k(1, 3)
    for j in range(2): A(f'ds_read_b64_tr_b16 v[{60+2*j}:{61+2*j}], v176 offset:{L_Q + j*512}')
    k(1, 4)
    for j in range(2, 4): A(f'ds_read_b64_tr_b16 v[{60+2*j}:{61+2*j}], v176 offset:{L_Q + j*512}')
    k(1, 5)
    A('v_add_f32 v24, v24, v26\nv_add_f32 v25, v25, v27\nv_cvt_pk_bf16_f32 v24, v24, v25'); k(1, 6)
    A('ds_write_b32 v6, v24'); k(1, 7); k(1, 8); k(1, 9)
    if P['FQ'] == 20: A('buffer_store_dword v149, v142, s[8:11], 0 offen sc1')
    A('s_waitcnt lgkmcnt(1)')
    A(f'{SM} v[32:35], v[60:63], v[68:75], v3\ns_add_u32 s16, s16, 1\ns_cmp_lt_u32 s18, 2\ns_nop 0')
    A(f'{SM} v[36:39], v[60:63], v[84:91], v3\ns_nop 1')
    A('v_add_f32 v28, v28, v30\nv_add_f32 v29, v29, v31')
    A(f'{SM} v[32:35], v[64:67], v[76:83], v3')
    A('v_cvt_pk_bf16_f32 v25, v28, v29\nds_write_b32 v6, v25 offset:288')
    A(f'{SM} v[36:39], v[64:67], v[92:99], v3')
    A('s_waitcnt lgkmcnt(0)\ns_barrier')
    stamp(A, P, 2)
    A('s_cbranch_scc0 L_qk_xa')
    def kmr():
        for ks in range(2):
            for half in range(2):
                for rd in range(2):
                    r = 44 + 8*ks + 4*half + 2*rd
                    A(f'ds_read_b64_tr_b16 v[{r}:{r+1}], v7 offset:{ks*1152 + half*128 + rd*32}')
    kmr()
    A('s_cmp_eq_u32 s18, 0\ns_cbranch_scc0 L_qk_u1')
    for u in range(2):
        if u: A('L_qk_u1:')
        A(f'v_add_f32 v32, v{32+u}, v{34+u}\nv_add_f32 v36, v{36+u}, v{38+u}\nv_max_f32 v33, v32, v36')
        A('s_waitcnt lgkmcnt(4)')
        A(f'{SM} v[40:43], v[60:63], v[44:51], v3')
        A('s_waitcnt lgkmcnt(0)')
        A(f'{SM} v[40:43], v[64:67], v[52:59], v3')
        A(f'v_max_f32_dpp v33, v33, v33 row_ror:8 {DPP}')
        A(f'v_add_f32 v40, v{40+u}, v{42+u}')
        A('v_max_f32 v33, v33, v40')
        for r in (4, 2, 1): A(f'v_max_f32_dpp v33, v33, v33 row_ror:{r} {DPP}')
        A('v_sub_f32 v32, v32, v33\nv_sub_f32 v36, v36, v33\nv_sub_f32 v40, v40, v33')
        A('v_exp_f32 v32, v32\nv_exp_f32 v36, v36\nv_exp_f32 v40, v40')
        A('v_add_f32 v33, v32, v36\nv_fma_f32 v33, v40, 0.5, v33')
        A(f'v_mov_b32_dpp v41, v40 quad_perm:[1,0,3,2] {DPP}')
        for r in (8, 4, 2, 1): A(f'v_add_f32_dpp v33, v33, v33 row_ror:{r} {DPP}')
        A('v_rcp_f32 v33, v33')
        A('v_mul_f32 v32, v32, v33\nv_mul_f32 v36, v36, v33')
        A('v_cvt_pk_bf16_f32 v32, v32, v36\nbuffer_store_dword v32, v8, s[8:11], s28 offen sc1')
        A('v_mul_f32 v40, v40, v33\nv_mul_f32 v41, v41, v33')
        A('v_cvt_pk_bf16_f32 v40, v40, v41\nbuffer_store_dword v40, v9, s[8:11], s29 offen sc1')
        if u == 0: A('s_branch L_qk_sm')
    A('L_qk_sm:')
    stamp(A, P, 3)
    A(f's_xor_b32 s28, s28, {4*MBLK}\ns_xor_b32 s29, s29, {3*MBLK}')
    A('buffer_store_dword v11, v8, s[8:11], s28 offen sc1\nbuffer_store_dword v11, v9, s[8:11], s29 offen sc1')
    A('s_cmp_lt_u32 s16, 64\ns_cbranch_scc1 L_qk_next\ns_branch L_qk_fin')
    A('L_qk_xa:')
    if P['FQ'] > 20: delay(A, (P['FQ'] - 21) * 16); A('buffer_store_dword v149, v142, s[8:11], 0 offen sc1')
    A('s_cmp_eq_u32 s18, 3\ns_cbranch_scc0 L_qk_xa2\ns_cmp_lt_u32 s16, 64\ns_cbranch_scc0 L_qk_xa2')
    kq_dma()
    A('L_qk_xa2:\ns_nop 7')
    for j in range(4):
        for rt in range(2): A(f'{MF} v[{32+4*rt}:{35+4*rt}], v[{68+16*rt+4*j}:{71+16*rt+4*j}], v[{160+4*j}:{163+4*j}], {"0" if j == 0 else f"v[{32+4*rt}:{35+4*rt}]"}')
    kmr()
    A('s_waitcnt lgkmcnt(0)')
    for j in range(4): A(f'{MF} v[40:43], v[{44+4*j}:{47+4*j}], v[{160+4*j}:{163+4*j}], {"0" if j == 0 else "v[40:43]"}')
    for r in range(8): A(f'v_cndmask_b32 v{32+r}, v178, v{32+r}, s[{64+2*r}:{65+2*r}]')
    A('v_max3_f32 v16, v32, v33, v34\nv_max3_f32 v17, v35, v36, v37\nv_max3_f32 v16, v16, v38, v39\nv_max3_f32 v17, v17, v40, v41\nv_max3_f32 v16, v16, v42, v43\nv_max_f32 v16, v16, v17')
    def xred(op):
        A(f'v_mov_b32 v17, v16\nv_permlane32_swap_b32 v16, v17\n{op} v16, v16, v17\nv_mov_b32 v17, v16\nv_permlane16_swap_b32 v16, v17\n{op} v16, v16, v17')
    xred('v_max_f32')
    for r in range(32, 44): A(f'v_sub_f32 v{r}, v{r}, v16')
    for r in range(32, 44): A(f'v_exp_f32 v{r}, v{r}')
    A('v_add_f32 v17, v40, v41\nv_add_f32 v18, v42, v43\nv_add_f32 v16, v32, v33\nv_add_f32 v17, v17, v18')
    for r in range(34, 40): A(f'v_add_f32 v16, v16, v{r}')
    A('v_fma_f32 v16, v17, 0.5, v16')
    xred('v_add_f32')
    A('v_rcp_f32 v16, v16')
    for r in range(32, 44): A(f'v_mul_f32 v{r}, v{r}, v16')
    for r in range(4): A(f'v_cvt_pk_bf16_f32 v{20+r}, v{32+r}, v{36+r}')
    A('v_cvt_pk_bf16_f32 v24, v40, v41\nv_cvt_pk_bf16_f32 v25, v42, v43')
    A('buffer_store_dwordx4 v[20:23], v4, s[4:7], s36 offen sc1\nbuffer_store_dword v24, v179, s[4:7], s37 offen sc1\nbuffer_store_dword v25, v179, s[4:7], s37 offen offset:8 sc1')
    A('s_add_u32 s36, s36, 65536\ns_add_u32 s37, s37, 16384')
    A('s_cmp_lt_u32 s16, 64\ns_cbranch_scc1 L_qk_next')
    A('L_qk_fin:\ns_waitcnt vmcnt(0)\ns_barrier\nbuffer_store_dword v149, v180, s[8:11], 0 offen sc1\ns_branch L_qk_end')
    slow_check(A, 'L_qk_slow', 'L_qk_back', 'L_qk_retry', 'L_qk_end')
    A('L_qk_end:')
    stats(A, P)
def role_vo(A, P):
    chain_lane(A)
    set_srd(A, 12, 32, 640*8192); load_weights(A, memw(0), 's[12:15]', 'v10')
    A('v_and_b32 v14, 1, v13\nv_mul_u32_u24 v10, 40960, v14\nv_lshrrev_b32 v14, 1, v13\nv_mul_u32_u24 v14, 10240, v14\nv_add_u32 v10, v10, v14\nv_lshl_add_u32 v10, v12, 2, v10')
    A('s_mul_i32 s20, s17, 163840\ns_mul_i32 s21, s18, 320\ns_add_u32 s20, s20, s21\nv_add_u32 v10, s20, v10')
    g = [grp(lambda half, jp, c: 64*ks + 16*half + OFFS[jp][c], 1280, j*64, 20 + 4*j + ks, 22 + 4*j + ks) for j in range(5) for ks in range(2)]
    set_srd(A, 12, 40, 32*163840); load_weights(A, g, 's[12:15]', 'v10')
    A('v_lshlrev_b32 v176, 3, v1')
    for sh, a, b in ((14, 8, 9), (13, 6, 7)):
        A(f's_mul_i32 s20, s18, {10 << sh}\ns_lshl_b32 s21, s17, 8\ns_add_u32 s20, s20, s21\nv_lshlrev_b32 v{a}, 4, v12\nv_add_u32 v{a}, s20, v{a}')
        A(f'v_and_b32 v14, 1, v13\nv_lshl_add_u32 v{b}, v14, {sh}, v{a}\nv_lshrrev_b32 v14, 1, v13\nv_lshl_add_u32 v{b}, v14, 3, v{b}\nv_lshl_add_u32 v{a}, v13, {sh}, v{a}')
    A(f's_mov_b32 s16, 0\ns_mov_b32 s24, 0\ns_mov_b32 s26, 0\ns_mov_b32 s27, 0\ns_mov_b32 s36, {OFF_UMR}')
    flag_cons_addr(A, 'v143', FO, P['KO'])
    A(f's_lshl_b32 s20, s17, 7\ns_add_u32 s20, s20, {FCH + 4096}\ns_add_u32 s20, s20, s19')
    lane0_addr(A, 'v180', 's_cmp_eq_u32 s18, 3')
    A('L_vo_step:')
    stamp_out(A, P, 150)
    A('s_cmp_eq_u32 s18, 2\ns_cbranch_scc0 L_vo_nodma')
    mem_slot(A, P)
    A('s_sub_u32 s35, s16, 1')
    poll(A, P, 'v143', 's35', 144)
    A('s_branch L_vo_dma')
    A('L_vo_retry:')
    A('s_cmp_eq_u32 s18, 2\ns_cbranch_scc0 L_vo_nodma')
    A('L_vo_dma:')
    dma_mem(A, P)
    stamp(A, P, 0)
    A('L_vo_nodma:')
    for r in range(16, 24): A(f'v_mov_b32 v{r}, 0')
    for r in range(32, 72): A(f'v_mov_b32 v{r}, 0')
    A('v_mov_b32 v149, s16\nv_add_u32 v148, -1, v149')
    A(f's_and_b32 s20, s16, 1\ns_mul_i32 s28, s20, {40*MBLK}\ns_add_u32 s28, s28, s19\ns_add_u32 s28, s28, {16*MBLK}')
    A('s_waitcnt vmcnt(0)\ns_barrier')
    stamp(A, P, 1)
    first_pass(A, 16, 20, 0, {8: 'buffer_store_dword v148, v180, s[8:11], 0 offen sc1'})
    A('v_add_f32 v16, v16, v18\nv_add_f32 v17, v17, v19\nv_add_f32 v20, v20, v22\nv_add_f32 v21, v21, v23')
    A('v_cmp_u_f32 vcc, v16, v17\nv_cvt_pk_bf16_f32 v16, v16, v17\nv_cvt_pk_bf16_f32 v17, v20, v21')
    A('s_cbranch_vccnz L_vo_slow\nL_vo_back:')
    A('ds_write_b64 v5, v[16:17]\ns_add_u32 s16, s16, 1\ns_waitcnt lgkmcnt(0)\ns_barrier')
    for k in range(4): A(f'ds_read_b64_tr_b16 v[{24+2*k}:{25+2*k}], v176 offset:{L_Q + k*512}')
    def o(t, ks): A(f'{SM} v[{32+4*t}:{35+4*t}], v[{24+4*ks}:{27+4*ks}], {wreg(20+2*t+ks)}, v3')
    def fin(t):
        r = 32 + 4*t
        return [f'v_add_f32 v{r}, v{r}, v{r+2}', f'v_add_f32 v{r+1}, v{r+1}, v{r+3}', f'v_cvt_pk_bf16_f32 v{72+t}, v{r}, v{r+1}']
    def tr4(b, so):
        return [f'v_permlane32_swap_b32 v{b}, v{b+2}', f'v_permlane32_swap_b32 v{b+1}, v{b+3}', f'v_permlane16_swap_b32 v{b}, v{b+1}', f'v_permlane16_swap_b32 v{b+2}, v{b+3}',
                f'buffer_store_dwordx4 v[{b}:{b+3}], v8, s[8:11], {so} offen sc1']
    A('s_waitcnt lgkmcnt(2)'); o(0, 0); o(1, 0); A('s_waitcnt lgkmcnt(0)'); o(0, 1); o(1, 1)
    o(2, 0); A(f's_add_u32 s29, s28, {4*MBLK}\ns_add_u32 s30, s28, {8*MBLK}\ns_nop 0'); o(2, 1); A('s_nop 1')
    J = lambda x: A('\n'.join(x))
    a4 = tr4(72, 's28'); b4 = tr4(76, 's29')
    o(3, 0); J(fin(0)); o(3, 1); J(fin(1)); o(4, 0); J(fin(2)); o(4, 1); A('s_nop 2'); o(5, 0); J(fin(3)); o(5, 1); J(a4[:1]); A('s_nop 0')
    o(6, 0); J(a4[1:2]); J(fin(4)[:1]); o(6, 1); J(fin(4)[1:]); o(7, 0); J(a4[2:4]); o(7, 1); J(a4[4:]); J(fin(5)[:2])
    o(8, 0); J(fin(5)[2:]); J(fin(6)[:2]); o(8, 1); J(fin(6)[2:]); A('s_nop 1'); o(9, 0); J(fin(7)); o(9, 1)
    J(b4[:2]); J(fin(8)[:2]); J(b4[2:]); J(fin(8)[2:]); J(fin(9))
    A('v_permlane16_swap_b32 v80, v81\nbuffer_store_dwordx2 v[80:81], v9, s[8:11], s30 offen sc1')
    stamp(A, P, 3)
    delay(A, P.get('DR', 0))
    A('s_add_u32 s29, s36, 32768\ns_add_u32 s30, s36, 65536')
    A('buffer_store_dwordx4 v[72:75], v6, s[4:7], s36 offen sc1\nbuffer_store_dwordx4 v[76:79], v6, s[4:7], s29 offen sc1\nbuffer_store_dwordx2 v[80:81], v7, s[4:7], s30 offen sc1')
    A(f's_add_u32 s36, s36, {40*8192}')
    A('s_cmp_lt_u32 s16, 64\ns_cbranch_scc1 L_vo_step')
    A('s_waitcnt vmcnt(0)\ns_barrier\nbuffer_store_dword v149, v180, s[8:11], 0 offen sc1\ns_branch L_vo_end')
    slow_check(A, 'L_vo_slow', 'L_vo_back', 'L_vo_retry', 'L_vo_end')
    A('L_vo_end:')
    stats(A, P)
def role_own(A, P):
    common_lane(A)
    A('s_cmp_eq_u32 s18, 0\ns_cbranch_scc1 L_own_go\ns_endpgm\nL_own_go:')
    A('v_and_b32 v3, 1, v1\nv_cmp_eq_u32 vcc, 0, v3\nv_mov_b32 v3, 0xeeee\nv_mov_b32 v5, 0x4444\nv_cndmask_b32 v3, v3, v5, vcc')
    A('v_lshlrev_b32 v5, 8, v13\nv_lshl_add_u32 v5, v12, 3, v5\nv_lshlrev_b32 v6, 2, v1')
    for r in range(8, 11): A(f'v_mov_b32 v{r}, -1')
    A(f's_lshl_b32 s36, s17, 8\ns_mov_b32 s35, {MBLK}\ns_cmp_lt_u32 s17, 32\ns_cbranch_scc1 L_own_a\ns_movk_i32 s35, 2048\ns_add_u32 s36, s36, {4*MBLK - 8192}\nL_own_a:\ns_add_u32 s36, s36, s19')
    A(f's_lshl_b32 s25, s17, 15\ns_add_u32 s25, s25, {OFF_UX}')
    A(f's_lshl_b32 s37, s17, 8\ns_add_u32 s37, s37, {OFF_REC + 16384}')
    A('s_mov_b32 s16, 0\ns_mov_b32 s24, 0\ns_mov_b32 s26, 0\ns_mov_b32 s27, 0\ns_mov_b32 s48, -1\ns_mov_b32 s49, -1')
    A(f's_lshl_b32 s20, s17, 7\ns_add_u32 s20, s20, {FO}\ns_add_u32 s20, s20, s19')
    lane0_addr(A, 'v2', f's_cmp_lt_u32 s17, {P["KO"]}')
    flag_cons_addr(A, 'v7', FQ, P['KQ'])
    A(f'v_and_b32 v1, 31, v1\nv_lshlrev_b32 v1, 8, v1\ns_add_u32 s20, s19, {FWV}\nv_add_u32 v1, s20, v1')
    A('L_own_step:')
    if P.get('SYNC'):
        cached_wait(A, P, 'v1', 16, 's16', 's48')
        A('v_xor_b32 v1, 128, v1\ns_mov_b32 s20, s48\ns_mov_b32 s48, s49\ns_mov_b32 s49, s20')
    delay(A, P.get('DU', 0))
    for j in range(32):
        A(f'buffer_load_dwordx4 v[{64+4*j}:{67+4*j}], v4, s[4:7], s25 offen offset:{(j&3)*1024} sc1')
        if (j & 3) == 3: A('s_add_u32 s25, s25, 4096')
    A(f's_add_u32 s25, s25, {39*32768}')
    A(f's_and_b32 s20, s16, 1\ns_mul_i32 s20, s20, 40\ns_add_u32 s20, s20, s17\ns_add_u32 s20, s20, 16\ns_lshl_b32 s28, s20, 14\ns_add_u32 s28, s28, s19\ns_add_u32 s38, s28, 4096')
    A(f's_and_b32 s20, s16, 3\ns_lshl_b32 s29, s20, 15\ns_add_u32 s29, s29, s19\ns_add_u32 s29, s29, {8*MBLK}')
    A(f's_add_u32 s39, s29, 4096\ns_add_u32 s40, s29, {MBLK}\ns_add_u32 s41, s40, 4096')
    A(f's_lshr_b32 s21, s20, 1\ns_lshl_b32 s21, s21, 14\ns_and_b32 s20, s20, 1\ns_lshl_b32 s20, s20, 12\ns_add_u32 s30, s20, s21\ns_add_u32 s30, s30, s19\ns_add_u32 s30, s30, {5*MBLK}')
    A('s_add_u32 s20, s16, 1\ns_and_b32 s20, s20, 3\ns_mul_i32 s42, s20, s35\ns_add_u32 s42, s42, s36\ns_xor_b32 s20, s20, 2\ns_mul_i32 s43, s20, s35\ns_add_u32 s43, s43, s36')
    A('v_mov_b32 v0, s16')
    A('s_waitcnt vmcnt(0)')
    stamp(A, P, 4)
    poll(A, P, 'v7', 's16', 16)
    stamp(A, P, 0)
    A('L_own_retry:')
    for j in range(8): A(f'buffer_load_dwordx4 v[{32+4*j}:{35+4*j}], v4, s[8:11], {"s28" if j < 4 else "s38"} offen offset:{(j&3)*1024} sc1')
    fo = P['FO']
    def flag(pos):
        if fo == pos: A('buffer_store_dword v0, v2, s[8:11], 0 offen sc1')
    for j in range(16): A(f'buffer_load_dwordx4 v[{192+4*j}:{195+4*j}], v4, s[8:11], s{[29,39,40,41][j>>2]} offen offset:{(j&3)*1024} sc1')
    for j in range(8): A(f'buffer_load_dwordx2 v[{16+2*j}:{17+2*j}], v5, s[8:11], s30 offen offset:{(j>>1)*1024 + (j&1)*128} sc1')
    flag(0)
    for r in range(12, 16): A(f'v_mov_b32 v{r}, 0')
    stamp(A, P, 1)
    for j in range(16):
        A(f's_waitcnt vmcnt({23-j + (fo <= j)})')
        flag(j + 1)
        if j == 0: stamp(A, P, 2)
        A(f'{SM} v[12:15], v[{192+4*j}:{195+4*j}], v[{64+8*j}:{71+8*j}], v3')
    for j in range(4):
        A(f's_waitcnt vmcnt({6-2*j + (fo <= 16)})')
        A(f'{SM} v[12:15], v[{16+4*j}:{19+4*j}], v[{32+8*j}:{39+8*j}], v3')
    A('v_add_f32 v12, v12, v13\nv_add_f32 v14, v14, v15\nv_cmp_u_f32 vcc, v12, v14\nv_cvt_pk_bf16_f32 v12, v12, v14')
    A('s_cbranch_vccnz L_own_slow\nL_own_back:')
    A('buffer_store_dword v12, v6, s[8:11], s42 offen sc1')
    stamp(A, P, 3)
    flag(17)
    delay(A, P.get('DP', 0))
    A('buffer_store_dword v11, v6, s[8:11], s43 offen sc1')
    for j in range(8): A(f'buffer_store_dwordx4 v[8:11], v4, s[8:11], {"s28" if j < 4 else "s38"} offen offset:{(j&3)*1024} sc1')
    if P.get('DBG'):
        A('buffer_store_dword v12, v6, s[4:7], s37 offen\ns_add_u32 s37, s37, 16384')
        A('s_cmp_eq_u32 s16, 2\ns_cbranch_scc0 L_own_nt\ns_memtime s[44:45]\ns_mov_b32 s27, s24\nL_own_nt:')
    A('s_add_u32 s16, s16, 1')
    stamp_out(A, P, 16)
    A('s_cmp_lt_u32 s16, 63\ns_cbranch_scc1 L_own_step')
    if P.get('DBG'): A('s_memtime s[46:47]\ns_waitcnt lgkmcnt(0)\ns_sub_u32 s26, s46, s44')
    A('s_branch L_own_end')
    A('L_own_slow:')
    A('v_max3_u32 v13, v16, v17, v18')
    rs = list(range(19, 64)) + list(range(192, 256))
    A(f'v_max_u32 v13, v13, v{rs.pop()}')
    for a, b in zip(rs[0::2], rs[1::2]): A(f'v_max3_u32 v13, v13, v{a}, v{b}')
    A('v_cmp_eq_u32 vcc, -1, v13\ns_cbranch_vccz L_own_back')
    A('s_add_u32 s24, s24, 1\ns_cmp_gt_u32 s24, 200000\ns_cbranch_scc0 L_own_retry')
    A('L_own_end:')
    stats(A, P)
```

```python
import math, struct
MBLK = 16384
MB = 1 << 20
OFF_XN = 4*MB
OFF_KQ = 8*MB
OFF_H = 40*MB
OFF_PXX = 48*MB
OFF_PXM = 52*MB
OFF_UMR = 56*MB
OFF_UX = 80*MB
OFF_REC = 170*MB
OFF_TS = OFF_REC + 4*MB
OFF_POL = 7*MB
FQ = 7*MBLK; FO = 96*MBLK
FCH = 97*MBLK
FWK = 98*MBLK
FWV = 99*MBLK
FWF = 100*MBLK
LOG2E = math.log2(math.e)
CSC = 128 ** -0.5 * LOG2E
OOB = '0x40000000'
def f32(x): return hex(struct.unpack('<I', struct.pack('<f', x))[0])
def wreg(o): return f'a[{8*o}:{8*o+7}]' if o < 32 else f'v[{192+8*(o-32)}:{192+8*(o-32)+7}]'
def wreg4(o, half):
    b = 8*o + 4*half
    return f'a[{b}:{b+3}]' if o < 32 else f'v[{b-64}:{b-61}]'
def wsingle(o, r): return ('a', 8*o + r) if o < 32 else ('v', 192 + 8*(o-32) + r)
OFFS = [(0, 2), (1, 3), (4, 6), (5, 7)]
NAT = [(0, 1), (2, 3), (4, 5), (6, 7)]
def delay(A, cyc):
    n = cyc // 64
    while n > 0:
        k = min(n, 100); A(f's_sleep {k}'); n -= k
    r = (cyc % 64) // 4
    if r: A(f's_nop {r-1}')
def load_weights(A, groups, srd, voff):
    T = 128
    n = len(groups)
    def issue(gi):
        for k, o in enumerate(groups[gi][0]):
            A(f's_mov_b32 s30, {o}')
            A(f'buffer_load_dword v{T+16*(gi&3)+k}, {voff}, {srd}, s30 offen')
    for gi in range(min(3, n)): issue(gi)
    for gi in range(n):
        A(f's_waitcnt vmcnt({16*min(n-1-gi, 2)})')
        _, o0, o1 = groups[gi]
        for R in range(8):
            a = T + 16*(gi & 3) + 2*R
            for o, sel in ((o0, 's31'), (o1, 's32')):
                kind, idx = wsingle(o, R)
                if kind == 'v': A(f'v_perm_b32 v{idx}, v{a+1}, v{a}, {sel}')
                else:
                    tmp = 120 + (2*R + (o == o1)) % 8
                    A(f'v_perm_b32 v{tmp}, v{a+1}, v{a}, {sel}')
                    A(f'v_accvgpr_write_b32 a{idx}, v{tmp}')
        if gi + 3 < n: issue(gi + 3)
def grp(rowfn, stride, coff, o0, o1):
    return ([rowfn(half, jp, c) * stride + coff for half in range(2) for jp in range(4) for c in range(2)], o0, o1)
def set_srd(A, base, ptr_off, size):
    A(f's_load_dwordx2 s[{base}:{base+1}], s[0:1], {ptr_off}')
    A(f's_mov_b32 s{base+2}, {size}\ns_mov_b32 s{base+3}, 0x20000\ns_waitcnt lgkmcnt(0)')
def common_lane(A):
    A('v_and_b32 v1, 63, v0\nv_lshrrev_b32 v2, 6, v0\nv_readfirstlane_b32 s18, v2')
    A('v_and_b32 v12, 15, v1\nv_lshrrev_b32 v13, 4, v1\nv_lshlrev_b32 v4, 4, v1\nv_mov_b32 v11, -1')
    A('s_mov_b32 s31, 0x05040100\ns_mov_b32 s32, 0x07060302')
def prologue(A, name, pol=True):
    A(f'.globl {name}\n.p2align 8\n.type {name},@function\n{name}:')
    A('s_load_dwordx2 s[4:5], s[0:1], 96\ns_mov_b32 s6, 0x10000000\ns_mov_b32 s7, 0x20000\ns_mov_b32 s10, 0x200000\ns_mov_b32 s11, 0x20000')
    A('s_waitcnt lgkmcnt(0)')
    A('s_add_u32 s8, s4, 0x1fffff\ns_addc_u32 s9, s5, 0\ns_and_b32 s8, s8, 0xffe00000')
    if pol:
        A(f's_load_dword s19, s[4:5], {OFF_POL & 0xfffff}' if OFF_POL < (1 << 20) else f's_mov_b32 s20, {OFF_POL}\ns_load_dword s19, s[4:5], s20')
        A('s_waitcnt lgkmcnt(0)\ns_and_b32 s19, s19, 0x2000')
def silu(A, r, t):
    for a, b in zip(r, t): A(f'v_mul_f32 v{b}, s33, v{a}')
    for a, b in zip(r, t): A(f'v_exp_f32 v{b}, v{b}')
    for a, b in zip(r, t): A(f'v_add_f32 v{b}, 1.0, v{b}')
    for a, b in zip(r, t): A(f'v_rcp_f32 v{b}, v{b}')
    for a, b in zip(r, t): A(f'v_mul_f32 v{a}, v{a}, v{b}')
def wait_flags(A, base, lanes_expr, sval, cache, tmpv, tmpa, sleep=2):
    l = A.lab('wf')
    A(f's_mov_b32 s21, 0\n{l}:')
    A(f'buffer_load_dword v{tmpv}, v{tmpa}, s[8:11], 0 offen sc1\ns_waitcnt vmcnt(0)\nv_cmp_gt_i32 vcc, {sval}, v{tmpv}\ns_cbranch_vccz {l}_ok')
    A(f's_sleep {sleep}\ns_add_u32 s21, s21, 1\ns_cmp_lt_u32 s21, 200000\ns_cbranch_scc1 {l}\n{l}_ok:')
```

```python
from common import *
MF = 'v_mfma_f32_16x16x32_bf16'
def role_ln(A, P):
    common_lane(A)
    set_srd(A, 12, 0, 2048*1280)
    A('v_mul_u32_u24 v5, 1280, v12\nv_lshl_add_u32 v5, v13, 4, v5\ns_mul_i32 s20, s17, 20480\ns_mul_i32 s21, s18, 320\ns_add_u32 s20, s20, s21')
    for j in range(5): A(f'buffer_load_dwordx4 v[{20+4*j}:{23+4*j}], v5, s[12:15], s20 offen offset:{j*64}')
    A('v_lshlrev_b32 v6, 2, v12\ns_lshl_b32 s21, s18, 6\nv_add_u32 v7, s21, v6')
    A('s_waitcnt vmcnt(0)')
    for j in range(20):
        A(f'v_lshlrev_b32 v{40+2*j}, 16, v{20+j}\nv_and_b32 v{41+2*j}, 0xffff0000, v{20+j}')
    def red(base):
        A('v_mov_b32 v9, v8\nv_permlane32_swap_b32 v8, v9\nv_add_f32 v8, v8, v9\nv_mov_b32 v9, v8\nv_permlane16_swap_b32 v8, v9\nv_add_f32 v8, v8, v9')
        A(f'ds_write_b32 v7, v8 offset:{base}\ns_waitcnt lgkmcnt(0)\ns_barrier')
        A(f'ds_read_b32 v8, v6 offset:{base}\nds_read_b32 v9, v6 offset:{base+64}\nds_read_b32 v10, v6 offset:{base+128}\nds_read_b32 v14, v6 offset:{base+192}')
        A('s_waitcnt lgkmcnt(0)\nv_add_f32 v8, v8, v9\nv_add_f32 v10, v10, v14\nv_add_f32 v8, v8, v10')
    A('v_add_f32 v8, v40, v41\nv_add_f32 v9, v42, v43')
    for j in range(2, 20): A(f'v_add_f32 v8, v8, v{40+2*j}\nv_add_f32 v9, v9, v{41+2*j}')
    A('v_add_f32 v8, v8, v9')
    red(0)
    A(f'v_mul_f32 v8, {f32(1/640)}, v8')
    for j in range(40): A(f'v_sub_f32 v{40+j}, v{40+j}, v8')
    A('v_mul_f32 v8, v40, v40\nv_mul_f32 v9, v41, v41')
    for j in range(1, 20): A(f'v_fmac_f32 v8, v{40+2*j}, v{40+2*j}\nv_fmac_f32 v9, v{41+2*j}, v{41+2*j}')
    A('v_add_f32 v8, v8, v9')
    red(256)
    A(f'v_mov_b32 v9, {f32(1e-5)}\nv_fmac_f32 v9, {f32(1/640)}, v8\nv_rsq_f32 v8, v9')
    for j in range(40): A(f'v_mul_f32 v{40+j}, v{40+j}, v8')
    for j in range(20): A(f'v_cvt_pk_bf16_f32 v{20+j}, v{40+2*j}, v{41+2*j}')
    A(f's_mul_i32 s20, s17, 20480\ns_mul_i32 s21, s18, 5120\ns_add_u32 s20, s20, s21\ns_add_u32 s20, s20, {OFF_XN}\ns_add_u32 s21, s20, 4096')
    for j in range(5): A(f'buffer_store_dwordx4 v[{20+4*j}:{23+4*j}], v4, s[4:7], {"s20" if j < 4 else "s21"} offen offset:{(j&3)*1024} sc1')
def role_poison(A, P):
    A('v_lshlrev_b32 v20, 4, v0\nv_mov_b32 v21, v20\ns_lshl_b32 s20, s17, 14')
    for r in range(24, 28): A(f'v_mov_b32 v{r}, -1')
    l = A.lab('po')
    A(f's_cmp_eq_u32 s17, 4\ns_cbranch_scc0 {l}\nv_cmp_gt_u32 vcc, 128, v0\nv_mov_b32 v22, {OOB}\nv_cndmask_b32 v21, v20, v22, vcc\n{l}:')
    for j in range(4):
        A(f'buffer_store_dwordx4 v[24:27], {"v21" if j in (0, 2) else "v20"}, s[8:11], s20 offen sc1\ns_add_u32 s20, s20, 4096')
def role_mem0(A, P):
    common_lane(A)
    set_srd(A, 12, 8, 8*1280)
    A('s_lshl_b32 s20, s17, 2\ns_add_u32 s20, s20, s18')
    A('s_lshr_b32 s21, s20, 1\ns_lshl_b32 s21, s21, 6\ns_and_b32 s22, s20, 1\ns_lshl_b32 s22, s22, 1\ns_add_u32 s21, s21, s22')
    A('v_mul_u32_u24 v5, 2560, v13\nv_lshl_add_u32 v5, v12, 2, v5')
    A('buffer_load_ushort v6, v5, s[12:15], s21 offen\nbuffer_load_ushort v7, v5, s[12:15], s21 offen offset:1280')
    A(f's_lshl_b32 s21, s20, 8\ns_add_u32 s22, s21, {4*MBLK - 8192}\ns_cmp_lt_u32 s20, 32\ns_cselect_b32 s21, s21, s22\ns_add_u32 s22, s21, 8192')
    A('v_lshlrev_b32 v5, 2, v1\ns_waitcnt vmcnt(0)\nv_lshl_or_b32 v6, v7, 16, v6')
    A('buffer_store_dword v6, v5, s[8:11], s21 offen sc1\nbuffer_store_dword v6, v5, s[8:11], s22 offen sc1')
def role_calib(A, P):
    N = 4
    A('v_mov_b32 v5, 0\nv_mov_b32 v6, 0')
    for j in range(N):
        for h in range(2): A(f's_mov_b32 s20, {(112+j)*MBLK + h*8192 + j*1280}\nbuffer_store_dword v6, v5, s[8:11], s20 offen sc1')
    A('s_waitcnt vmcnt(0)\ns_mov_b32 s26, -1\ns_mov_b32 s27, -1')
    for j in range(N):
        for h in range(2):
            A(f's_mov_b32 s20, {(112+j)*MBLK + h*8192 + j*1280}\ns_memtime s[22:23]\ns_waitcnt lgkmcnt(0)')
            A('buffer_load_dword v6, v5, s[8:11], s20 offen sc1\ns_waitcnt vmcnt(0)\ns_memtime s[24:25]\ns_waitcnt lgkmcnt(0)')
            A(f's_sub_u32 s24, s24, s22\ns_min_u32 s{26+h}, s{26+h}, s24')
    A(f's_cmp_le_u32 s26, s27\ns_cselect_b32 s19, 0, 0x2000')
def init_kernel(A, P, name):
    prologue(A, name, pol=False)
    A('s_mov_b32 s17, s2\ns_cmp_lt_u32 s2, 128\ns_cbranch_scc1 L_i_ln')
    A('s_sub_u32 s17, s2, 128\ns_cmp_eq_u32 s17, 0\ns_cbranch_scc1 L_i_cal\ns_cmp_lt_u32 s17, 112\ns_cbranch_scc1 L_i_po')
    A('s_sub_u32 s17, s17, 112\ns_cmp_lt_u32 s17, 10\ns_cbranch_scc1 L_i_m0\ns_endpgm')
    A('L_i_cal:\nv_lshrrev_b32 v2, 6, v0\nv_readfirstlane_b32 s18, v2\ns_cmp_eq_u32 s18, 0\ns_cbranch_scc1 L_i_cal2\ns_endpgm\nL_i_cal2:')
    role_calib(A, P)
    if 'POL' in P: A(f's_mov_b32 s19, {P["POL"]}')
    A(f'v_mov_b32 v6, s19\nv_mov_b32 v7, s26\nv_mov_b32 v8, s27\ns_mov_b32 s20, {OFF_POL}\nbuffer_store_dwordx3 v[6:8], v5, s[4:7], s20 offen\ns_endpgm')
    A('L_i_po:'); role_poison(A, P); A('s_endpgm')
    A('L_i_m0:'); role_mem0(A, P); A('s_endpgm')
    A('L_i_ln:'); role_ln(A, P); A('s_endpgm')
XB = 40960
def xn_dma(A, seg_sreg):
    A(f's_mul_i32 s20, {seg_sreg}, 40960\ns_mul_i32 s21, s18, 10240\ns_add_u32 s20, s20, s21\ns_add_u32 s20, s20, {OFF_XN}\ns_add_u32 s21, s21, s40')
    for j in range(10):
        if (j & 3) == 0: A('s_mov_b32 m0, s21')
        A(f'buffer_load_dwordx4 v4, s[4:7], s20 offen offset:{(j&3)*1024} sc1 lds')
        if (j & 3) == 3: A('s_add_u32 s20, s20, 4096\ns_add_u32 s21, s21, 4096')
def xn_pass(A, nt, acc, mid=None):
    F = 100; NS = 5
    seq = [(kk, rt) for kk in range(20) for rt in range(2)]
    def rd(i):
        kk, rt = seq[i]; A(f'ds_read_b128 v[{F+4*(i%NS)}:{F+3+4*(i%NS)}], v5 offset:{(rt*20+kk)*1024}')
    for i in range(NS - 1): rd(i)
    for i, (kk, rt) in enumerate(seq):
        A(f's_waitcnt lgkmcnt({min(NS-2, 39-i)})')
        for t in range(nt):
            a = acc + 4*(rt*nt + t)
            A(f'{MF} v[{a}:{a+3}], {wreg4(20*(t>>1) + 2*(kk>>1) + (t&1), kk&1)}, v[{F+4*(i%NS)}:{F+3+4*(i%NS)}], {"0" if kk == 0 else f"v[{a}:{a+3}]"}')
            if t == 0 and i + NS - 1 < 40: rd(i + NS - 1)
        if mid and i == mid[0]: mid[1]()
def pack(A, dst, x, y):
    A(f'v_cvt_pk_bf16_f32 v{dst}, v{x}, v{x+1}\nv_cvt_pk_bf16_f32 v{dst+1}, v{y}, v{y+1}\nv_cvt_pk_bf16_f32 v{dst+2}, v{x+2}, v{x+3}\nv_cvt_pk_bf16_f32 v{dst+3}, v{y+2}, v{y+3}')
def natw(opbase, stride, coff):
    return [grp(lambda half, jp, c: 64*ks + 32*half + NAT[jp][c], stride, coff, opbase + 2*ks, opbase + 2*ks + 1) for ks in range(10)]
def xw_loop(A, P, nm, body, nst, flagbase):
    A(f's_lshl_b32 s20, s42, 7\ns_add_u32 s20, s20, {flagbase}\ns_add_u32 s20, s20, s19\ns_cmp_eq_u32 s18, 0\ns_cselect_b32 s20, s20, {OOB}')
    A(f'v_mov_b32 v9, s20\nv_cmp_eq_u32 vcc, 0, v1\nv_mov_b32 v15, {OOB}\nv_cndmask_b32 v9, v15, v9, vcc\nv_mov_b32 v10, -1')
    A('s_waitcnt vmcnt(0)\ns_barrier')
    A(f'{nm}_loop:')
    A(f'v_add_u32 v5, s40, v4\ns_xor_b32 s40, s40, {XB}\ns_add_u32 s43, s16, s41\ns_min_u32 s44, s43, 63')
    xn_dma(A, 's44')
    def mid():
        A('s_waitcnt vmcnt(10)\ns_barrier\nbuffer_store_dword v10, v9, s[8:11], 0 offen sc1')
    body(mid)
    A(f'v_mov_b32 v10, s16\ns_mov_b32 s16, s43\ns_cmp_lt_u32 s16, 64\ns_waitcnt vmcnt({nst})\ns_barrier\ns_cbranch_scc1 {nm}_loop')
    A('v_mov_b32 v10, 64\ns_waitcnt vmcnt(0)\ns_barrier\nbuffer_store_dword v10, v9, s[8:11], 0 offen sc1')
def role_qkx(A, P):
    common_lane(A)
    A('s_mov_b32 s40, 0'); xn_dma(A, 's16')
    A('v_lshlrev_b32 v10, 16, v13\nv_lshl_add_u32 v10, v12, 2, v10\ns_lshl_b32 s20, s17, 8\ns_lshl_b32 s21, s18, 6\ns_add_u32 s20, s20, s21\nv_add_u32 v10, s20, v10')
    set_srd(A, 12, 24, 640*8192); load_weights(A, natw(0, 8192, 0), 's[12:15]', 'v10')
    set_srd(A, 12, 16, 640*8192); load_weights(A, natw(20, 8192, 0), 's[12:15]', 'v10')
    A('v_lshrrev_b32 v8, 1, v13\nv_lshlrev_b32 v8, 10, v8\nv_and_b32 v14, 1, v13\nv_lshl_add_u32 v8, v14, 9, v8\nv_lshl_add_u32 v8, v12, 4, v8')
    A('s_lshr_b32 s20, s18, 1\ns_lshl_b32 s20, s20, 11\ns_and_b32 s21, s18, 1\ns_lshl_b32 s21, s21, 8\ns_add_u32 s20, s20, s21\nv_add_u32 v8, s20, v8')
    A(f's_mov_b32 s33, {f32(CSC)}')
    def body(mid):
        xn_pass(A, 4, 16, (12, mid))
        A(f's_lshl_b32 s20, s16, 5\ns_add_u32 s20, s20, s17\ns_lshl_b32 s20, s20, 14\ns_add_u32 s20, s20, {OFF_KQ}')
        for rt in range(2):
            pack(A, 48 + 4*rt, 16 + 16*rt, 20 + 16*rt)
            A(f'buffer_store_dwordx4 v[{48+4*rt}:{51+4*rt}], v8, s[4:7], s20 offen sc1\ns_add_u32 s20, s20, 4096')
        for rt in range(2):
            for r in range(8): A(f'v_mul_f32 v{24+16*rt+r}, s33, v{24+16*rt+r}')
            pack(A, 56 + 4*rt, 24 + 16*rt, 28 + 16*rt)
            A(f'buffer_store_dwordx4 v[{56+4*rt}:{59+4*rt}], v8, s[4:7], s20 offen sc1\ns_add_u32 s20, s20, 4096')
    xw_loop(A, P, 'L_qkx', body, 4, FWK)
def role_ffn1(A, P):
    common_lane(A)
    A('s_mov_b32 s40, 0'); xn_dma(A, 's16')
    A('v_mul_u32_u24 v10, 27648, v13\nv_lshl_add_u32 v10, v12, 2, v10\ns_lshl_b32 s20, s17, 9\ns_lshl_b32 s21, s18, 7\ns_add_u32 s20, s20, s21\nv_add_u32 v10, s20, v10')
    set_srd(A, 12, 64, 640*3456); load_weights(A, natw(0, 3456, 0) + natw(20, 3456, 64), 's[12:15]', 'v10')
    A(f's_lshl_b32 s20, s17, 2\ns_add_u32 s20, s20, s18\ns_cmp_lt_u32 s20, 27\ns_cselect_b32 s20, s20, 0x80000\ns_lshl_b32 s20, s20, 11\nv_add_u32 v8, s20, v4')
    A(f's_mov_b32 s33, {f32(-LOG2E)}')
    def body(mid):
        xn_pass(A, 4, 16, (12, mid))
        A(f's_mul_i32 s20, s16, {108*1024}\ns_add_u32 s20, s20, {OFF_H}')
        for rt in range(2):
            for m in range(2):
                b = 16 + 16*rt + 8*m
                silu(A, range(b, b + 8), range(64, 72))
                pack(A, 48 + 8*rt + 4*m, b, b + 4)
                A(f'buffer_store_dwordx4 v[{48+8*rt+4*m}:{51+8*rt+4*m}], v8, s[4:7], s20 offen offset:{m*1024} sc1')
            A(f's_add_u32 s20, s20, {54*1024}')
    xw_loop(A, P, 'L_ffn1', body, 4, FWF)
def role_vox(A, P):
    common_lane(A)
    LV = 2*XB
    A('s_mov_b32 s40, 0'); xn_dma(A, 's16')
    A('v_lshlrev_b32 v10, 16, v13\nv_lshl_add_u32 v10, v12, 2, v10\ns_lshl_b32 s20, s17, 8\ns_lshl_b32 s21, s18, 6\ns_add_u32 s20, s20, s21\nv_add_u32 v10, s20, v10')
    set_srd(A, 12, 32, 640*8192); load_weights(A, natw(0, 8192, 0), 's[12:15]', 'v10')
    A('v_mul_u32_u24 v10, 10240, v13\nv_lshl_add_u32 v10, v12, 2, v10\ns_mul_i32 s20, s17, 163840\ns_mul_i32 s21, s18, 320\ns_add_u32 s20, s20, s21\nv_add_u32 v10, s20, v10')
    g = [grp(lambda half, jp, c: 64*ks + 32*half + OFFS[jp][c], 1280, j*64, 20 + 4*j + ks, 22 + 4*j + ks) for j in range(5) for ks in range(2)]
    set_srd(A, 12, 40, 32*163840); load_weights(A, g, 's[12:15]', 'v10')
    A(f's_lshl_b32 s20, s18, 10\ns_add_u32 s20, s20, {LV}\nv_add_u32 v6, s20, v4\nv_add_u32 v7, {LV}, v4')
    def body(mid):
        xn_pass(A, 2, 16, (24, mid))
        for rt in range(2):
            pack(A, 32 + 4*rt, 16 + 8*rt, 20 + 8*rt)
            A(f'ds_write_b128 v6, v[{32+4*rt}:{35+4*rt}] offset:{rt*4096}')
        A(f's_mul_i32 s20, s16, 40\ns_mul_i32 s21, s18, 10\ns_add_u32 s20, s20, s21\ns_lshl_b32 s20, s20, 5\ns_add_u32 s20, s20, s17\ns_lshl_b32 s20, s20, 10\ns_add_u32 s20, s20, {OFF_UX}')
        A('s_waitcnt lgkmcnt(0)\ns_barrier')
        for kk in range(4):
            for rt in range(2): A(f'ds_read_b128 v[{40+16*rt+4*kk}:{43+16*rt+4*kk}], v7 offset:{rt*4096 + kk*1024}')
        def fin(t):
            a = 72 + 8*(t % 3)
            return [f'v_cvt_pk_bf16_f32 v{16+4*(t&1)+r}, v{a+r}, v{a+4+r}' for r in range(4)] + \
                   [f'buffer_store_dwordx4 v[{16+4*(t&1)}:{19+4*(t&1)}], v4, s[4:7], s20 offen sc1', 's_add_u32 s20, s20, 32768']
        for t in range(10):
            f = fin(t - 1) if t else []
            for kk in range(4):
                if t == 0: A(f's_waitcnt lgkmcnt({6-2*kk})')
                for rt in range(2):
                    a = 72 + 8*(t % 3) + 4*rt
                    A(f'{MF} v[{a}:{a+3}], v[{40+16*rt+4*kk}:{43+16*rt+4*kk}], {wreg4(20 + 2*t + (kk>>1), kk&1)}, {"0" if kk == 0 else f"v[{a}:{a+3}]"}')
                    if t and kk < 2: A('s_nop 1')
                    if f and kk >= 2:
                        A('\n'.join(f[:2])); f = f[2:]
            if f: A('\n'.join(f))
        A('\n'.join(fin(9)))
    xw_loop(A, P, 'L_vox', body, 10, FWV)
def role_fin(A, P):
    sync = P.get('SYNC')
    common_lane(A)
    A('v_mul_u32_u24 v10, 10240, v13\nv_lshl_add_u32 v10, v12, 2, v10\ns_lshl_b32 s20, s17, 6\ns_mul_i32 s21, s18, 573440\ns_add_u32 s20, s20, s21\nv_add_u32 v10, s20, v10')
    g = [grp(lambda half, jp, c: 64*ks + 32*half + OFFS[jp][c], 1280, 0, 2*ks, 2*ks + 1) for ks in range(7)]
    set_srd(A, 12, 72, 1728*1280); load_weights(A, g, 's[12:15]', 'v10')
    set_srd(A, 12, 0, 2048*1280); set_srd(A, 44, 80, 2048*1280)
    A(f's_mov_b32 s33, {f32(-LOG2E)}')
    A('v_mul_u32_u24 v8, 1280, v12\nv_lshl_add_u32 v8, v13, 4, v8\ns_lshr_b32 s20, s18, 1\ns_mul_i32 s20, s20, 20480\ns_and_b32 s21, s18, 1\ns_lshl_b32 s21, s21, 3')
    A('s_add_u32 s20, s20, s21\ns_lshl_b32 s21, s17, 6\ns_add_u32 s20, s20, s21\nv_add_u32 v8, s20, v8')
    A('s_lshl_b32 s20, s18, 12\nv_add_u32 v6, s20, v4\ns_lshr_b32 s20, s18, 1\ns_lshl_b32 s20, s20, 11\ns_and_b32 s21, s18, 1\ns_lshl_b32 s21, s21, 3\ns_add_u32 s20, s20, s21\nv_add_u32 v7, s20, v4')
    if sync:
        A(f'v_lshlrev_b32 v9, 7, v1\ns_add_u32 s20, s19, {FWV}\nv_add_u32 v14, s20, v9')
        wait_flags(A, None, None, '64', None, 15, 14)
        A(f'v_min_u32 v14, {P["NFFN"]-1}, v1\nv_lshlrev_b32 v14, 7, v14\ns_add_u32 s20, s19, {FWF}\nv_add_u32 v14, s20, v14')
        wait_flags(A, None, None, '64', None, 15, 14)
        A(f's_add_u32 s20, s19, {FCH}\nv_add_u32 v9, s20, v9')
    H = 64; UXA = 112
    def reduce(base, dst):
        for j in range(4): A(f'ds_write_b128 v6, v[{16+4*j}:{19+4*j}] offset:{base + j*1024}')
        A('s_waitcnt lgkmcnt(0)\ns_barrier')
        for w in range(4):
            for i in range(2): A(f'ds_read_b64 v[{16+4*w+2*i}:{17+4*w+2*i}], v7 offset:{base + w*4096 + i*1024}')
        A('s_waitcnt lgkmcnt(0)')
        for r in range(4): A(f'v_add_f32 v{16+r}, v{16+r}, v{20+r}\nv_add_f32 v{24+r}, v{24+r}, v{28+r}')
        for r in range(4): A(f'v_add_f32 v{dst+r}, v{16+r}, v{24+r}')
    A('L_fin_loop:')
    A(f's_mul_i32 s20, s16, {108*1024}\ns_mul_i32 s21, s18, {14*1024}\ns_add_u32 s20, s20, s21\ns_add_u32 s20, s20, {OFF_H}\ns_add_u32 s21, s20, {54*1024}')
    A(f's_cmp_eq_u32 s18, 3\ns_cselect_b32 s22, {OOB}, 0\nv_add_u32 v14, s22, v4')
    for kk in range(14):
        for rt in range(2):
            A(f'buffer_load_dwordx4 v[{H+8*kk+4*rt}:{H+3+8*kk+4*rt}], {"v14" if kk >= 12 else "v4"}, s[4:7], s{20+rt} offen offset:{(kk&3)*1024} sc1')
        if (kk & 3) == 3: A('s_add_u32 s20, s20, 4096\ns_add_u32 s21, s21, 4096')
    A(f's_mul_i32 s20, s16, 20\ns_add_u32 s20, s20, s17\ns_lshl_b32 s22, s20, 16\ns_lshl_b32 s21, s18, 13\ns_add_u32 s22, s22, s21\ns_add_u32 s22, s22, {OFF_UX}')
    for i in range(2):
        for h in range(8):
            A(f'buffer_load_dwordx4 a[{UXA+32*i+4*h}:{UXA+3+32*i+4*h}], v4, s[4:7], s22 offen offset:{(h&3)*1024} sc1')
            if h == 3: A('s_add_u32 s22, s22, 4096')
        A(f's_add_u32 s22, s22, {32768-4096}')
    A('s_mul_i32 s29, s16, 40960\nbuffer_load_dwordx2 v[40:41], v8, s[12:15], s29 offen')
    for kk in range(14):
        A(f's_waitcnt vmcnt({17 + 26 - 2*kk})')
        for rt in range(2):
            for i in range(2):
                a = 16 + 8*rt + 4*i
                A(f'{MF} v[{a}:{a+3}], {wreg4(2*(kk>>1)+i, kk&1)}, v[{H+8*kk+4*rt}:{H+3+8*kk+4*rt}], {"0" if kk == 0 else f"v[{a}:{a+3}]"}')
    reduce(0, 32)
    silu(A, range(32, 36), range(36, 40))
    A(f's_lshl_b32 s23, s20, 14\ns_lshl_b32 s21, s18, 11\ns_add_u32 s23, s23, s21\ns_add_u32 s23, s23, {OFF_UMR}\ns_add_u32 s24, s23, 8192')
    A(f's_lshl_b32 s25, s16, 14\ns_add_u32 s25, s25, s21\ns_add_u32 s25, s25, {OFF_PXM}\ns_add_u32 s26, s25, 8192')
    A(f's_lshl_b32 s27, s16, 16\ns_lshl_b32 s21, s18, 13\ns_add_u32 s27, s27, s21\ns_add_u32 s27, s27, {OFF_PXX}\ns_add_u32 s28, s27, 32768')
    if sync: wait_flags(A, None, None, 's16', None, 15, 9)
    for h in range(8):
        for qt in range(2):
            A(f'buffer_load_dwordx4 v[{H+8*h+4*qt}:{H+3+8*h+4*qt}], v4, s[4:7], s{27+qt} offen offset:{(h&3)*1024} sc1')
        if h == 3: A('s_add_u32 s27, s27, 4096\ns_add_u32 s28, s28, 4096')
    for j in range(2):
        for qt in range(2): A(f'buffer_load_dwordx4 v[{128+16*j+4*qt}:{131+16*j+4*qt}], v4, s[4:7], s{25+qt} offen offset:{j*1024} sc1')
        for i in range(2): A(f'buffer_load_dwordx4 v[{136+16*j+4*i}:{139+16*j+4*i}], v4, s[4:7], s{23+i} offen offset:{j*1024} sc1')
    for h in range(8):
        A(f's_waitcnt vmcnt({8 + 14 - 2*h})')
        for qt in range(2):
            for i in range(2):
                a = 16 + 8*qt + 4*i
                A(f'{MF} v[{a}:{a+3}], a[{UXA+32*i+4*h}:{UXA+3+32*i+4*h}], v[{H+8*h+4*qt}:{H+3+8*h+4*qt}], {"0" if h == 0 else f"v[{a}:{a+3}]"}')
    for j in range(2):
        A(f's_waitcnt vmcnt({4 - 4*j})')
        for qt in range(2):
            for i in range(2):
                a = 16 + 8*qt + 4*i
                A(f'{MF} v[{a}:{a+3}], v[{136+16*j+4*i}:{139+16*j+4*i}], v[{128+16*j+4*qt}:{131+16*j+4*qt}], v[{a}:{a+3}]')
    reduce(16384, 36)
    A('v_lshlrev_b32 v42, 16, v40\nv_lshlrev_b32 v43, 16, v41\nv_and_b32 v44, 0xffff0000, v40\nv_and_b32 v45, 0xffff0000, v41')
    for r in range(4): A(f'v_fmac_f32 v{42+r}, v{32+r}, v{36+r}')
    A('v_cvt_pk_bf16_f32 v40, v42, v44\nv_cvt_pk_bf16_f32 v41, v43, v45\nbuffer_store_dwordx2 v[40:41], v8, s[44:47], s29 offen')
    A('s_add_u32 s16, s16, s41\ns_cmp_lt_u32 s16, 64\ns_cbranch_scc1 L_fin_loop')
```

```python
import sys; sys.path.insert(0, 'gen')
from asm import Asm
from common import *
import chain, workers
NAME = 'recurrent_scan__memory_aug_recurrent_mem_tr__dense_activation_silu__prompt'
def kd(name, vgpr, acc):
    return f""".section .rodata,"a"
.p2align 6
.amdhsa_kernel {name}
  .amdhsa_next_free_vgpr {vgpr}
  .amdhsa_next_free_sgpr 102
  .amdhsa_accum_offset {acc}
  .amdhsa_group_segment_fixed_size 0
  .amdhsa_kernarg_size 104
  .amdhsa_user_sgpr_count 2
  .amdhsa_user_sgpr_kernarg_segment_ptr 1
  .amdhsa_system_sgpr_workgroup_id_x 1
.end_amdhsa_kernel
"""
def header():
    ref = open(f'cdna_kernels/{NAME}.s.ref').read().split('\n')
    return '\n'.join(l for l in ref if l.startswith(';') and '@launch' not in l) + '\n'
def chain_dispatch(A, P):
    A('s_and_b32 s20, s2, 7\ns_lshr_b32 s21, s2, 3\ns_cmp_lt_u32 s20, 4\ns_cbranch_scc0 L_notchain')
    A('s_and_b32 s17, s21, 7\ns_lshl_b32 s17, s17, 2\ns_add_u32 s17, s17, s20')
    A('s_cmp_lt_u32 s21, 8\ns_cbranch_scc1 L_qk_j\ns_cmp_lt_u32 s21, 16\ns_cbranch_scc1 L_vo_j')
    A('s_sub_u32 s17, s21, 16\ns_lshl_b32 s17, s17, 2\ns_add_u32 s17, s17, s20\ns_cmp_lt_u32 s21, 26\ns_cbranch_scc1 L_own_j')
    A('s_branch L_notchain')
    A('L_qk_j:\ns_branch L_qk\nL_vo_j:\ns_branch L_vo\nL_own_j:\ns_branch L_own')
    A('L_notchain:')
def v1(P):
    A = Asm()
    launches = [('init_kernel', 256, 1024), ('xw_kernel', 256, 90112), (NAME + '_kernel', 256, 32768), ('fin_kernel', 240, 32768)]
    workers.init_kernel(A, P, 'init_kernel')
    prologue(A, 'xw_kernel')
    A('s_mov_b32 s41, 2\ns_and_b32 s42, s2, 63\ns_and_b32 s17, s2, 31\ns_lshr_b32 s16, s42, 5\ns_lshl_b32 s42, s17, 1\ns_add_u32 s42, s42, s16')
    A('s_cmp_lt_u32 s2, 64\ns_cbranch_scc1 L_x_qkx\ns_cmp_lt_u32 s2, 128\ns_cbranch_scc1 L_x_vox_j\ns_cmp_lt_u32 s2, 240\ns_cbranch_scc1 L_x_ffn_j\ns_endpgm')
    A('L_x_vox_j:\ns_branch L_x_vox\nL_x_ffn_j:\ns_branch L_x_ffn')
    A('L_x_qkx:'); workers.role_qkx(A, P); A('s_endpgm')
    A('L_x_vox:'); workers.role_vox(A, P); A('s_endpgm')
    A('L_x_ffn:\ns_sub_u32 s42, s2, 128\ns_lshr_b32 s17, s42, 4\ns_and_b32 s16, s42, 15\ns_mov_b32 s41, 16\ns_and_b32 s42, s42, 63')
    workers.role_ffn1(A, P); A('s_endpgm')
    prologue(A, NAME + '_kernel')
    chain_dispatch(A, P); A('s_endpgm')
    A('L_qk:'); chain.role_qk(A, P)
    A('L_vo:'); chain.role_vo(A, P)
    A('L_own:'); chain.role_own(A, P)
    prologue(A, 'fin_kernel')
    A('s_cmp_lt_u32 s2, 240\ns_cbranch_scc1 L_f_go\ns_endpgm\nL_f_go:')
    A('s_mul_i32 s16, s2, 3277\ns_lshr_b32 s16, s16, 16\ns_mul_i32 s20, s16, 20\ns_sub_u32 s17, s2, s20\ns_mov_b32 s41, 12')
    workers.role_fin(A, P); A('s_endpgm')
    txt = header() + ''.join(f'; @launch kernel={k} grid=({g},1,1) block=(256,1,1) lds={l}\n' for k, g, l in launches)
    txt += '.amdgcn_target "amdgcn-amd-amdhsa--gfx950"\n.text\n' + A.text()
    txt += kd('init_kernel', 96, 96) + kd('xw_kernel', 512, 256) + kd(NAME + '_kernel', 512, 256) + kd('fin_kernel', 512, 256)
    return txt, launches
DEF = dict(FQ=28, FO=10, KQ=1, KO=1)
if __name__ == '__main__':
    txt, _ = v1(DEF)
    open(f'cdna_kernels/{NAME}.s', 'w').write(txt)
    print(len(txt), 'bytes', txt.count('\n'), 'lines')
```

```python
import sys; sys.path.insert(0, 'gen')
from asm import Asm
from common import *
import chain, workers
NAME = 'recurrent_scan__memory_aug_recurrent_mem_tr__dense_activation_silu__prompt'
def kd(name, vgpr, acc):
    return f""".section .rodata,"a"
.p2align 6
.amdhsa_kernel {name}
  .amdhsa_next_free_vgpr {vgpr}
  .amdhsa_next_free_sgpr 102
  .amdhsa_accum_offset {acc}
  .amdhsa_group_segment_fixed_size 0
  .amdhsa_kernarg_size 104
  .amdhsa_user_sgpr_count 2
  .amdhsa_user_sgpr_kernarg_segment_ptr 1
  .amdhsa_system_sgpr_workgroup_id_x 1
.end_amdhsa_kernel
"""
def header():
    ref = open(f'cdna_kernels/{NAME}.s.ref').read().split('\n')
    return '\n'.join(l for l in ref if l.startswith(';') and '@launch' not in l) + '\n'
def chain_dispatch(A, P):
    A('s_and_b32 s20, s2, 7\ns_lshr_b32 s21, s2, 3\ns_cmp_lt_u32 s20, 4\ns_cbranch_scc0 L_notchain')
    A('s_and_b32 s17, s21, 7\ns_lshl_b32 s17, s17, 2\ns_add_u32 s17, s17, s20')
    A('s_cmp_lt_u32 s21, 8\ns_cbranch_scc1 L_qk_j\ns_cmp_lt_u32 s21, 16\ns_cbranch_scc1 L_vo_j')
    A('s_sub_u32 s17, s21, 16\ns_lshl_b32 s17, s17, 2\ns_add_u32 s17, s17, s20\ns_cmp_lt_u32 s21, 26\ns_cbranch_scc1 L_own_j')
    A('s_branch L_notchain')
    A('L_qk_j:\ns_branch L_qk\nL_vo_j:\ns_branch L_vo\nL_own_j:\ns_branch L_own')
    A('L_notchain:')
def v1(P):
    A = Asm()
    launches = [('init_kernel', 256, 1024), ('xw_kernel', 256, 90112), (NAME + '_kernel', 256, 32768), ('fin_kernel', 240, 32768)]
    workers.init_kernel(A, P, 'init_kernel')
    prologue(A, 'xw_kernel')
    A('s_mov_b32 s41, 2\ns_and_b32 s42, s2, 63\ns_and_b32 s17, s2, 31\ns_lshr_b32 s16, s42, 5\ns_lshl_b32 s42, s17, 1\ns_add_u32 s42, s42, s16')
    A('s_cmp_lt_u32 s2, 64\ns_cbranch_scc1 L_x_qkx\ns_cmp_lt_u32 s2, 128\ns_cbranch_scc1 L_x_vox_j\ns_cmp_lt_u32 s2, 240\ns_cbranch_scc1 L_x_ffn_j\ns_endpgm')
    A('L_x_vox_j:\ns_branch L_x_vox\nL_x_ffn_j:\ns_branch L_x_ffn')
    A('L_x_qkx:'); workers.role_qkx(A, P); A('s_endpgm')
    A('L_x_vox:'); workers.role_vox(A, P); A('s_endpgm')
    A('L_x_ffn:\ns_sub_u32 s42, s2, 128\ns_lshr_b32 s17, s42, 4\ns_and_b32 s16, s42, 15\ns_mov_b32 s41, 16\ns_and_b32 s42, s42, 63')
    workers.role_ffn1(A, P); A('s_endpgm')
    prologue(A, NAME + '_kernel')
    chain_dispatch(A, P); A('s_endpgm')
    A('L_qk:'); chain.role_qk(A, P)
    A('L_vo:'); chain.role_vo(A, P)
    A('L_own:'); chain.role_own(A, P)
    prologue(A, 'fin_kernel')
    A('s_cmp_lt_u32 s2, 240\ns_cbranch_scc1 L_f_go\ns_endpgm\nL_f_go:')
    A('s_mul_i32 s16, s2, 3277\ns_lshr_b32 s16, s16, 16\ns_mul_i32 s20, s16, 20\ns_sub_u32 s17, s2, s20\ns_mov_b32 s41, 12')
    workers.role_fin(A, P); A('s_endpgm')
    txt = header() + ''.join(f'; @launch kernel={k} grid=({g},1,1) block=(256,1,1) lds={l}\n' for k, g, l in launches)
    txt += '.amdgcn_target "amdgcn-amd-amdhsa--gfx950"\n.text\n' + A.text()
    txt += kd('init_kernel', 96, 96) + kd('xw_kernel', 512, 256) + kd(NAME + '_kernel', 512, 256) + kd('fin_kernel', 512, 256)
    return txt, launches
def main_body(A, P):
    chain_dispatch(A, P)
    A('s_cmp_lt_u32 s21, 32\ns_cbranch_scc0 L_exit\ns_cmp_lt_u32 s20, 4\ns_cbranch_scc0 L_far')
    if P.get('FFN', 'near') == 'near':
        A('s_sub_u32 s42, s21, 26\ns_lshl_b32 s42, s42, 2\ns_add_u32 s42, s42, s20\ns_cmp_lt_u32 s42, 21\ns_cbranch_scc0 L_exit')
        A('s_mul_i32 s16, s42, 37\ns_lshr_b32 s16, s16, 8\ns_mul_i32 s20, s16, 7\ns_sub_u32 s17, s42, s20\ns_mov_b32 s41, 3\ns_branch L_x_ffn')
    A('L_exit:\ns_endpgm')
    A('L_far:')
    A('s_and_b32 s20, s20, 3\ns_lshr_b32 s17, s21, 1\ns_and_b32 s17, s17, 7\ns_lshl_b32 s17, s17, 2\ns_add_u32 s17, s17, s20\ns_and_b32 s16, s21, 1')
    A('s_lshl_b32 s42, s17, 1\ns_add_u32 s42, s42, s16\ns_mov_b32 s41, 2\ns_cmp_lt_u32 s21, 16\ns_cbranch_scc0 L_x_vox')
    workers.role_qkx(A, P); A('s_branch L_x_done')
    A('L_x_vox:'); workers.role_vox(A, P)
    A('L_x_done:')
    A('s_lshr_b32 s17, s2, 3\ns_and_b32 s16, s2, 3\ns_mov_b32 s41, 4\ns_cmp_lt_u32 s17, 20\ns_cbranch_scc1 L_x_fin\ns_endpgm\nL_x_fin:')
    workers.role_fin(A, P); A('s_endpgm')
    A('L_x_ffn:'); workers.role_ffn1(A, P); A('s_endpgm')
    A('L_qk:'); chain.role_qk(A, P)
    A('L_vo:'); chain.role_vo(A, P)
    A('L_own:'); chain.role_own(A, P)
def v2(P):
    P = dict(P, SYNC=1, NFFN=21)
    A = Asm()
    launches = [('init_kernel', 256, 1024), (NAME + '_kernel', 256, 90112)]
    workers.init_kernel(A, P, 'init_kernel')
    prologue(A, NAME + '_kernel')
    main_body(A, P)
    txt = header() + ''.join(f'; @launch kernel={k} grid=({g},1,1) block=(256,1,1) lds={l}\n' for k, g, l in launches)
    txt += '.amdgcn_target "amdgcn-amd-amdhsa--gfx950"\n.text\n' + A.text()
    txt += kd('init_kernel', 96, 96) + kd(NAME + '_kernel', 512, 256)
    return txt, launches
DEF = dict(FQ=28, FO=10, KQ=1, KO=1)
if __name__ == '__main__':
    txt, _ = globals()[sys.argv[1] if len(sys.argv) > 1 else 'v2'](DEF)
    open(f'cdna_kernels/{NAME}.s', 'w').write(txt)
    print(len(txt), 'bytes', txt.count('\n'), 'lines')
```

```python
import sys; sys.path.insert(0, 'gen')
from asm import Asm
from common import *
import chain, workers
NAME = 'recurrent_scan__memory_aug_recurrent_mem_tr__dense_activation_silu__prompt'
def kd(name, vgpr, acc):
    return f""".section .rodata,"a"
.p2align 6
.amdhsa_kernel {name}
  .amdhsa_next_free_vgpr {vgpr}
  .amdhsa_next_free_sgpr 102
  .amdhsa_accum_offset {acc}
  .amdhsa_group_segment_fixed_size 0
  .amdhsa_kernarg_size 104
  .amdhsa_user_sgpr_count 2
  .amdhsa_user_sgpr_kernarg_segment_ptr 1
  .amdhsa_system_sgpr_workgroup_id_x 1
.end_amdhsa_kernel
"""
def header():
    ref = open(f'cdna_kernels/{NAME}.s.ref').read().split('\n')
    return '\n'.join(l for l in ref if l.startswith(';') and '@launch' not in l) + '\n'
def chain_dispatch(A, P):
    A('s_and_b32 s20, s2, 7\ns_lshr_b32 s21, s2, 3\ns_cmp_lt_u32 s20, 4\ns_cbranch_scc0 L_notchain')
    A('s_and_b32 s17, s21, 7\ns_lshl_b32 s17, s17, 2\ns_add_u32 s17, s17, s20')
    A('s_cmp_lt_u32 s21, 8\ns_cbranch_scc1 L_qk_j\ns_cmp_lt_u32 s21, 16\ns_cbranch_scc1 L_vo_j')
    A('s_sub_u32 s17, s21, 16\ns_lshl_b32 s17, s17, 2\ns_add_u32 s17, s17, s20\ns_cmp_lt_u32 s21, 26\ns_cbranch_scc1 L_own_j')
    A('s_branch L_notchain')
    A('L_qk_j:\ns_branch L_qk\nL_vo_j:\ns_branch L_vo\nL_own_j:\ns_branch L_own')
    A('L_notchain:')
def v1(P):
    A = Asm()
    launches = [('init_kernel', 256, 1024), ('xw_kernel', 256, 90112), (NAME + '_kernel', 256, 32768), ('fin_kernel', 240, 32768)]
    workers.init_kernel(A, P, 'init_kernel')
    prologue(A, 'xw_kernel')
    A('s_mov_b32 s41, 2\ns_and_b32 s42, s2, 63\ns_and_b32 s17, s2, 31\ns_lshr_b32 s16, s42, 5\ns_lshl_b32 s42, s17, 1\ns_add_u32 s42, s42, s16')
    A('s_cmp_lt_u32 s2, 64\ns_cbranch_scc1 L_x_qkx\ns_cmp_lt_u32 s2, 128\ns_cbranch_scc1 L_x_vox_j\ns_cmp_lt_u32 s2, 240\ns_cbranch_scc1 L_x_ffn_j\ns_endpgm')
    A('L_x_vox_j:\ns_branch L_x_vox\nL_x_ffn_j:\ns_branch L_x_ffn')
    A('L_x_qkx:'); workers.role_qkx(A, P); A('s_endpgm')
    A('L_x_vox:'); workers.role_vox(A, P); A('s_endpgm')
    A('L_x_ffn:\ns_sub_u32 s42, s2, 128\ns_lshr_b32 s17, s42, 4\ns_and_b32 s16, s42, 15\ns_mov_b32 s41, 16\ns_and_b32 s42, s42, 63')
    workers.role_ffn1(A, P); A('s_endpgm')
    prologue(A, NAME + '_kernel')
    chain_dispatch(A, P); A('s_endpgm')
    A('L_qk:'); chain.role_qk(A, P)
    A('L_vo:'); chain.role_vo(A, P)
    A('L_own:'); chain.role_own(A, P)
    prologue(A, 'fin_kernel')
    A('s_cmp_lt_u32 s2, 240\ns_cbranch_scc1 L_f_go\ns_endpgm\nL_f_go:')
    A('s_mul_i32 s16, s2, 3277\ns_lshr_b32 s16, s16, 16\ns_mul_i32 s20, s16, 20\ns_sub_u32 s17, s2, s20\ns_mov_b32 s41, 12')
    workers.role_fin(A, P); A('s_endpgm')
    txt = header() + ''.join(f'; @launch kernel={k} grid=({g},1,1) block=(256,1,1) lds={l}\n' for k, g, l in launches)
    txt += '.amdgcn_target "amdgcn-amd-amdhsa--gfx950"\n.text\n' + A.text()
    txt += kd('init_kernel', 128, 128) + kd('xw_kernel', 512, 256) + kd(NAME + '_kernel', 512, 256) + kd('fin_kernel', 512, 256)
    return txt, launches
def main_body(A, P):
    rts(A, P, 0)
    chain_dispatch(A, P)
    A('s_cmp_lt_u32 s21, 32\ns_cbranch_scc0 L_exit\ns_cmp_lt_u32 s20, 4\ns_cbranch_scc0 L_far')
    if P.get('FFN', 'near') == 'near':
        A('s_sub_u32 s42, s21, 26\ns_lshl_b32 s42, s42, 2\ns_add_u32 s42, s42, s20\ns_cmp_lt_u32 s42, 21\ns_cbranch_scc0 L_exit')
        A('s_mul_i32 s16, s42, 37\ns_lshr_b32 s16, s16, 8\ns_mul_i32 s20, s16, 7\ns_sub_u32 s17, s42, s20\ns_mov_b32 s41, 3\ns_branch L_x_ffn')
    A('L_exit:\ns_endpgm')
    A('L_far:')
    A('s_and_b32 s20, s20, 3\ns_lshr_b32 s17, s21, 1\ns_and_b32 s17, s17, 7\ns_lshl_b32 s17, s17, 2\ns_add_u32 s17, s17, s20\ns_and_b32 s16, s21, 1')
    A('s_lshl_b32 s42, s17, 1\ns_add_u32 s42, s42, s16\ns_mov_b32 s41, 2\ns_cmp_lt_u32 s21, 16\ns_cbranch_scc0 L_x_vox')
    workers.role_qkx(A, P); A('s_branch L_x_done')
    A('L_x_vox:'); workers.role_vox(A, P)
    A('L_x_done:')
    rts(A, P, 2)
    A('s_lshr_b32 s17, s2, 3\ns_and_b32 s16, s2, 3\ns_mov_b32 s41, 4\ns_cmp_lt_u32 s17, 20\ns_cbranch_scc1 L_x_fin\ns_endpgm\nL_x_fin:')
    workers.role_fin(A, P); rts(A, P, 4); A('s_endpgm')
    A('L_x_ffn:'); workers.role_ffn1(A, P); rts(A, P, 2); A('s_endpgm')
    A('L_qk:'); chain.role_qk(A, P)
    A('L_vo:'); chain.role_vo(A, P)
    A('L_own:'); chain.role_own(A, P)
def v2(P):
    P = dict(P, SYNC=1, NFFN=21)
    A = Asm()
    launches = [('init_kernel', 256, 1024), (NAME + '_kernel', 256, 90112)]
    workers.init_kernel(A, P, 'init_kernel')
    prologue(A, NAME + '_kernel')
    main_body(A, P)
    txt = header() + ''.join(f'; @launch kernel={k} grid=({g},1,1) block=(256,1,1) lds={l}\n' for k, g, l in launches)
    txt += '.amdgcn_target "amdgcn-amd-amdhsa--gfx950"\n.text\n' + A.text()
    txt += kd('init_kernel', 128, 128) + kd(NAME + '_kernel', 512, 256)
    return txt, launches
DEF = dict(FQ=28, FO=10, KQ=1, KO=1)
if __name__ == '__main__':
    txt, _ = globals()[sys.argv[1] if len(sys.argv) > 1 else 'v2'](DEF)
    open(f'cdna_kernels/{NAME}.s', 'w').write(txt)
    print(len(txt), 'bytes', txt.count('\n'), 'lines')
```

```python
from common import *
SM = 'v_smfmac_f32_16x16x64_bf16'
MF = 'v_mfma_f32_16x16x32_bf16'
L_MEM, L_Q, L_K, L_KX, L_QX = 0, 10240, 13312, 16384, 24576
AR = 100
DPP = 'row_mask:0xf bank_mask:0xf'
def memw(opbase):
    return [grp(lambda half, jp, c: 64*ks + half + 2*OFFS[jp][c], 8192, 0, opbase + 2*ks, opbase + 2*ks + 1) for ks in range(10)]
def chain_lane(A):
    common_lane(A)
    A('v_and_b32 v3, 2, v1\nv_cmp_eq_u32 vcc, 0, v3\nv_mov_b32 v3, 0xeeee\nv_mov_b32 v5, 0x4444\nv_cndmask_b32 v3, v3, v5, vcc')
    A('v_lshrrev_b32 v2, 1, v13\nv_lshlrev_b32 v2, 8, v2\nv_and_b32 v14, 3, v12\nv_lshl_add_u32 v2, v14, 6, v2\nv_and_b32 v14, 1, v13\nv_lshl_add_u32 v2, v14, 5, v2\nv_lshrrev_b32 v14, 2, v12\nv_lshl_add_u32 v2, v14, 3, v2')
    A('v_and_b32 v14, 1, v13\nv_lshlrev_b32 v14, 18, v14\nv_lshrrev_b32 v15, 1, v13\nv_lshlrev_b32 v15, 17, v15')
    A('v_add_u32 v14, v14, v15\nv_lshl_add_u32 v14, v12, 2, v14')
    A('s_lshl_b32 s20, s17, 8\ns_lshl_b32 s21, s18, 6\ns_add_u32 s20, s20, s21\nv_add_u32 v10, s20, v14')
    A(f's_mul_i32 s20, s18, 768\ns_add_u32 s20, s20, {L_Q}\nv_mul_u32_u24 v5, 192, v13\nv_lshl_add_u32 v5, v12, 3, v5\nv_add_u32 v5, s20, v5')
def q_raddr(A):
    A('v_and_b32 v14, 3, v1\nv_mul_u32_u24 v176, 192, v14\nv_lshrrev_b32 v14, 2, v1\nv_lshl_add_u32 v176, v14, 3, v176')
def dma_mem(A, P):
    A('s_mov_b32 m0, 0\ns_add_u32 s20, s22, 4096')
    for c in range(4): A(f'buffer_load_dwordx4 v4, s[8:11], s22 offen offset:{c*1024} sc1 lds')
    A('s_mov_b32 m0, 4096')
    for c in range(4): A(f'buffer_load_dwordx4 v4, s[8:11], s20 offen offset:{c*1024} sc1 lds')
    A('s_mov_b32 m0, 8192')
    for c in range(2): A(f'buffer_load_dwordx4 v4, s[8:11], s23 offen offset:{c*1024} sc1 lds')
def mem_slot(A, P):
    A(f's_and_b32 s20, s16, 3\ns_lshl_b32 s22, s20, 14\ns_add_u32 s22, s22, s19\ns_lshl_b32 s23, s20, 11\ns_add_u32 s23, s23, s19\ns_add_u32 s23, s23, {4*MBLK}')
def trread(A, k): A(f'ds_read_b64_tr_b16 v[{AR+2*k}:{AR+2*k+1}], v2 offset:{L_MEM + k*512}')
def first_pass(A, P, acc0, acc1, opbase, fill=None):
    pg = P.get('PG', 3)
    A(f's_waitcnt vmcnt({10 - pg if pg else 0})\ns_barrier')
    stamp(A, P, 1)
    n0 = 2*pg if pg else 6
    for k in range(n0): trread(A, k)
    issued = n0
    for ks in range(10):
        A(f's_waitcnt lgkmcnt({issued - 2*(ks+1)})')
        A(f'{SM} v[{acc0}:{acc0+3}], v[{AR+4*ks}:{AR+4*ks+3}], {wreg(opbase+2*ks)}, v3')
        if ks == 0 and pg: A('s_waitcnt vmcnt(0)\ns_barrier')
        if issued < 20: trread(A, issued); trread(A, issued + 1); issued += 2
        A(f'{SM} v[{acc1}:{acc1+3}], v[{AR+4*ks}:{AR+4*ks+3}], {wreg(opbase+2*ks+1)}, v3')
        if fill and ks in fill: A(fill[ks])
def slow_check(A, lab_slow, lab_back, lab_retry, lab_fail):
    A(f'{lab_slow}:')
    A(f'v_pk_max_u16 v140, v{AR}, v{AR+1}')
    for k in range(2, 40): A(f'v_pk_max_u16 v140, v140, v{AR+k}')
    A('v_lshrrev_b32 v141, 16, v140\nv_max_u16 v140, v140, v141\nv_and_b32 v140, 0xffff, v140\nv_cmp_eq_u32 vcc, 0xffff, v140')
    A(f's_cbranch_vccz {lab_back}')
    A(f's_add_u32 s24, s24, 1\ns_cmp_gt_u32 s24, 200000\ns_cbranch_scc1 {lab_fail}')
    A(f's_waitcnt lgkmcnt(0)\ns_barrier\ns_branch {lab_retry}')
def stats(A, P):
    rts(A, P, 2)
    if P.get('DBG'):
        A(f's_lshl_b32 s20, s2, 4\ns_add_u32 s20, s20, {OFF_REC + 2*MB}\nv_mov_b32 v20, s24\nv_mov_b32 v21, s16\nv_mov_b32 v22, s26\nv_mov_b32 v23, s27\nv_mov_b32 v24, 0')
        A('buffer_store_dwordx4 v[20:23], v24, s[4:7], s20 offen')
    A('s_endpgm')
def lane0_addr(A, dst, cond):
    A(f'{cond}\ns_cselect_b32 s20, s20, {OOB}\nv_mov_b32 {dst}, s20\nv_cmp_eq_u32 vcc, 0, v1\nv_mov_b32 v15, {OOB}\nv_cndmask_b32 {dst}, v15, {dst}, vcc')
FS = 1280
def flag_cons_addr(A, dst, base, P):
    nc = P.get('NC', 4)
    A(f's_and_b32 s20, s2, {nc-1}\ns_mul_i32 s20, s20, {FS}\ns_add_u32 s20, s20, s19\ns_add_u32 s20, s20, {base}\nv_mov_b32 {dst}, s20')
def flag_prod_addr(A, dst, base, P, cond):
    nc = P.get('NC', 4)
    A(f's_add_u32 s20, s19, {base}\n{cond}\ns_cselect_b32 s20, s20, {OOB}\nv_mul_u32_u24 {dst}, {FS}, v1\nv_add_u32 {dst}, s20, {dst}\nv_cmp_gt_u32 vcc, {nc}, v1\nv_mov_b32 v15, {OOB}\nv_cndmask_b32 {dst}, v15, {dst}, vcc')
def poll(A, P, addr, sval, r0):
    N = P.get('NP', 4); l = A.lab('poll')
    A('s_mov_b32 s21, 0')
    for i in range(N):
        A(f'buffer_load_dword v{r0+i}, {addr}, s[8:11], 0 offen sc1')
        if i < N-1: A('s_sleep 1')
    A(f'{l}:')
    for i in range(N):
        A(f's_waitcnt vmcnt({N-1})\nv_cmp_gt_i32 vcc, {sval}, v{r0+i}\ns_cbranch_vccz {l}_got')
        A(f'buffer_load_dword v{r0+i}, {addr}, s[8:11], 0 offen sc1')
    A(f's_add_u32 s21, s21, 1\ns_cmp_lt_u32 s21, 100000\ns_cbranch_scc1 {l}\ns_mov_b32 s24, 0x7000000\n{l}_got:')
def stamp(A, P, k):
    if P.get('TS'): A(f'{"s_memrealtime" if P["TS"] == 3 else "s_memtime"} s[{80+2*k}:{81+2*k}]')
def stamp_out(A, P, vt):
    if not P.get('TS'): return
    A(f's_waitcnt lgkmcnt(0)\ns_lshl_b32 s20, s2, 2\ns_add_u32 s20, s20, s18\ns_lshl_b32 s20, s20, 7\ns_add_u32 s20, s20, s16\ns_lshl_b32 s20, s20, 5\ns_add_u32 s20, s20, {OFF_TS}')
    for k in range(8): A(f'v_mov_b32 v{vt+k}, s{80+2*k}')
    A(f'v_mov_b32 v{vt+8}, 0\nbuffer_store_dwordx4 v[{vt}:{vt+3}], v{vt+8}, s[4:7], s20 offen\nbuffer_store_dwordx4 v[{vt+4}:{vt+7}], v{vt+8}, s[4:7], s20 offen offset:16')
def cached_wait(A, P, addr, tmp, need, cache):
    if not P.get('SYNC'): return
    l = A.lab('cw')
    A(f's_cmp_ge_i32 {cache}, {need}\ns_cbranch_scc1 {l}_ok\ns_mov_b32 s21, 0\n{l}:')
    A(f'buffer_load_dword v{tmp}, {addr}, s[8:11], 0 offen sc1\ns_add_u32 s20, {need}, 6\ns_waitcnt vmcnt(0)')
    A(f'v_cmp_gt_i32 vcc, s20, v{tmp}\ns_mov_b32 {cache}, s20\ns_cbranch_vccz {l}_ok')
    A(f'v_cmp_gt_i32 vcc, {need}, v{tmp}\ns_mov_b32 {cache}, {need}\ns_cbranch_vccz {l}_ok')
    A(f's_sleep 2\ns_add_u32 s21, s21, 1\ns_cmp_lt_u32 s21, 200000\ns_cbranch_scc1 {l}\n{l}_ok:')
def role_qk(A, P):
    chain_lane(A)
    set_srd(A, 12, 16, 640*8192); load_weights(A, memw(0), 's[12:15]', 'v10')
    set_srd(A, 12, 24, 640*8192); load_weights(A, memw(20), 's[12:15]', 'v10')
    q_raddr(A)
    A(f's_mul_i32 s20, s18, 576\ns_add_u32 s20, s20, {L_K}\nv_lshlrev_b32 v6, 4, v12\nv_and_b32 v14, 1, v13\nv_lshl_add_u32 v6, v14, 3, v6\nv_lshrrev_b32 v14, 1, v13\nv_lshl_add_u32 v6, v14, 2, v6\nv_add_u32 v6, s20, v6')
    A(f'v_and_b32 v14, 1, v13\nv_mul_u32_u24 v7, 576, v14\nv_lshrrev_b32 v14, 3, v12\nv_mul_u32_u24 v14, 288, v14\nv_add_u32 v7, v7, v14')
    A(f'v_lshrrev_b32 v14, 1, v13\nv_lshl_add_u32 v7, v14, 6, v7\nv_bfe_u32 v14, v12, 2, 1\nv_lshl_add_u32 v7, v14, 4, v7\nv_and_b32 v14, 1, v12\nv_lshl_add_u32 v7, v14, 3, v7\nv_add_u32 v7, {L_K}, v7')
    A('v_lshrrev_b32 v8, 3, v12\nv_lshlrev_b32 v8, 8, v8\nv_lshl_add_u32 v8, v13, 5, v8\nv_and_b32 v15, 7, v12\nv_lshl_add_u32 v8, v15, 2, v8')
    A('s_lshr_b32 s20, s17, 4\ns_lshl_b32 s20, s20, 14\ns_and_b32 s21, s17, 15\ns_lshl_b32 s21, s21, 9\ns_add_u32 s20, s20, s21\ns_lshl_b32 s21, s18, 7\ns_add_u32 s20, s20, s21\nv_add_u32 v8, s20, v8')
    A('v_lshlrev_b32 v9, 5, v13\nv_lshrrev_b32 v14, 2, v12\nv_lshl_add_u32 v9, v14, 4, v9\nv_and_b32 v14, 2, v12\nv_lshl_add_u32 v9, v14, 1, v9')
    A('s_lshr_b32 s20, s17, 1\ns_lshl_b32 s20, s20, 8\ns_lshl_b32 s21, s18, 7\ns_add_u32 s20, s20, s21\ns_and_b32 s21, s17, 1\ns_lshl_b32 s21, s21, 3\ns_add_u32 s20, s20, s21\nv_add_u32 v9, s20, v9')
    A(f'v_and_b32 v15, 9, v12\nv_cmp_eq_u32 vcc, 0, v15\nv_mov_b32 v15, {OOB}\nv_cndmask_b32 v9, v15, v9, vcc')
    A('v_and_b32 v10, 8, v12\nv_and_b32 v14, 3, v12\nv_lshl_add_u32 v10, v14, 1, v10\nv_bfe_u32 v14, v12, 2, 1\nv_add_u32 v10, v10, v14\nv_lshlrev_b32 v10, 4, v10\nv_lshl_add_u32 v10, v13, 8, v10')
    A('s_cmp_lt_u32 s18, 2\ns_cbranch_scc1 L_qk_i0\nv_mov_b32 v10, v4\nL_qk_i0:')
    A(f's_and_b32 s20, s18, 1\ns_lshl_b32 s20, s20, 12\nv_add_u32 v177, s20, v4')
    A('s_and_b32 s20, s18, 1\ns_lshl_b32 s20, s20, 4\nv_add_u32 v14, s20, v12\nv_lshlrev_b32 v15, 2, v13\nv_sub_u32 v14, v14, v15')
    for rt in range(2):
        for r in range(4): A(f'v_cmp_le_i32 s[{64+8*rt+2*r}:{65+8*rt+2*r}], {16*rt+r}, v14')
    A(f'v_mov_b32 v178, {f32(-1e9*LOG2E)}')
    A(f'v_lshlrev_b32 v179, 4, v12\nv_lshl_add_u32 v179, v13, 2, v179\nv_cmp_gt_u32 vcc, 2, v13\nv_mov_b32 v15, {OOB}\nv_cndmask_b32 v179, v15, v179, vcc')
    A(f's_and_b32 s20, s18, 1\ns_lshl_b32 s20, s20, 5\ns_add_u32 s20, s20, s17\ns_lshl_b32 s36, s20, 10\ns_add_u32 s36, s36, {OFF_PXX}\ns_lshl_b32 s37, s20, 8\ns_add_u32 s37, s37, {OFF_PXM}')
    A(f's_mov_b32 s33, {f32(CSC)}')
    A(f's_lshl_b32 s25, s17, 14\ns_add_u32 s25, s25, {OFF_KQ}')
    A('s_mov_b32 s16, 0\ns_mov_b32 s24, 0\ns_mov_b32 s26, 0\ns_mov_b32 s27, 0\ns_mov_b32 s38, -1\ns_mov_b32 s39, -1')
    flag_prod_addr(A, 'v142', FQ, P, f's_lshl_b32 s21, s17, 2\ns_add_u32 s21, s21, s18\ns_cmp_eq_u32 s21, {4*P.get("MQ", 0) + 3}')
    flag_cons_addr(A, 'v143', FO, P)
    A(f's_lshl_b32 s20, s17, 7\ns_add_u32 s20, s20, {FCH}\ns_add_u32 s20, s20, s19')
    lane0_addr(A, 'v180', 's_cmp_eq_u32 s18, 3')
    A(f's_lshl_b32 s20, s17, 8\ns_add_u32 s20, s20, {FWK}\ns_add_u32 s20, s20, s19\nv_mov_b32 v181, s20')
    A(f's_lshl_b32 s20, s18, 12\ns_add_u32 s25, s25, s20\ns_add_u32 s40, s20, {L_KX}')
    def kq_wait(need):
        if P.get('SYNC'):
            cached_wait(A, P, 'v181', 144, need, 's38')
            A('v_xor_b32 v181, 128, v181\ns_mov_b32 s20, s38\ns_mov_b32 s38, s39\ns_mov_b32 s39, s20')
    def kq(j): A(f'buffer_load_dwordx4 v4, s[4:7], s25 offen offset:{j*1024} sc1 lds')
    kqinc = f's_add_u32 s25, s25, {0 if P.get("FAKE", 0) & 1 else 32*16384}'
    rts(A, P, 1)
    kq_wait('s16')
    A('s_mov_b32 m0, s40')
    for j in range(4): kq(j)
    A(kqinc)
    A('L_qk_next:')
    if P.get('SYNC'):
        A('s_cmp_eq_u32 s18, 3\ns_cbranch_scc0 L_qk_nokq\ns_add_u32 s41, s16, 1')
        kq_wait('s41')
        A('L_qk_nokq:')
    stamp_out(A, P, 150)
    A('s_waitcnt vmcnt(0)\ns_barrier')
    for j in range(8): A(f'ds_read_b128 v[{68+4*j}:{71+4*j}], v10 offset:{L_KX + j*1024}')
    for j in range(4): A(f'ds_read_b128 v[{160+4*j}:{163+4*j}], v177 offset:{L_QX + j*1024}')
    A('v_mov_b32 v149, s16\nv_add_u32 v148, -1, v149\ns_waitcnt lgkmcnt(0)')
    A('s_cmp_eq_u32 s18, 2\ns_cbranch_scc0 L_qk_nodma')
    mem_slot(A, P)
    A('s_sub_u32 s35, s16, 1')
    poll(A, P, 'v143', 's35', 182)
    delay(A, P.get('DF', 0))
    if P.get('TS') == 3: stamp(A, P, 4)
    A('s_branch L_qk_dma')
    A('L_qk_retry:')
    A('s_cmp_eq_u32 s18, 2\ns_cbranch_scc0 L_qk_nodma')
    A('L_qk_dma:')
    dma_mem(A, P)
    stamp(A, P, 0)
    A('L_qk_nodma:')
    for r in range(16, 44): A(f'v_mov_b32 v{r}, 0')
    A(f's_and_b32 s20, s16, 3\ns_lshl_b32 s28, s20, 15\ns_add_u32 s28, s28, s19\ns_add_u32 s28, s28, {8*MBLK}')
    A(f's_lshr_b32 s21, s20, 1\ns_lshl_b32 s21, s21, 14\ns_and_b32 s20, s20, 1\ns_lshl_b32 s20, s20, 12\ns_add_u32 s29, s20, s21\ns_add_u32 s29, s29, s19\ns_add_u32 s29, s29, {5*MBLK}')
    first_pass(A, P, 16, 20, 0, {8: 'buffer_store_dword v148, v180, s[8:11], 0 offen sc1'})
    def k(i, ks):
        if P['FQ'] == 10*i + ks: A('buffer_store_dword v149, v142, s[8:11], 0 offen sc1')
        A(f'{SM} v[{24+4*i}:{27+4*i}], v[{AR+4*ks}:{AR+4*ks+3}], {wreg(20+2*ks+i)}, v3')
    if P.get('TS') == 2: stamp(A, P, 4)
    k(0, 0); A('s_nop 2'); k(0, 1); A('s_nop 1')
    A('v_add_f32 v16, v16, v18'); k(0, 2)
    A('v_add_f32 v17, v17, v19\nv_add_f32 v20, v20, v22\nv_cmp_u_f32 vcc, v16, v17'); k(0, 3)
    A('v_add_f32 v21, v21, v23\ns_cbranch_vccnz L_qk_slow\nL_qk_back:')
    A('v_mul_f32 v16, s33, v16'); k(0, 4)
    A('v_mul_f32 v17, s33, v17\nv_mul_f32 v20, s33, v20\nv_mul_f32 v21, s33, v21'); k(0, 5)
    A('v_cvt_pk_bf16_f32 v16, v16, v17\nv_cvt_pk_bf16_f32 v17, v20, v21\nds_write_b64 v5, v[16:17]'); k(0, 6)
    A('s_mov_b32 m0, s40'); k(0, 7); kq(0); k(0, 8); k(0, 9); k(1, 0); k(1, 1); kq(1); k(1, 2)
    A('s_waitcnt lgkmcnt(0)\ns_barrier')
    if P.get('TS') == 2: stamp(A, P, 5)
    k(1, 3)
    for j in range(2): A(f'ds_read_b64_tr_b16 v[{60+2*j}:{61+2*j}], v176 offset:{L_Q + j*768}')
    k(1, 4)
    for j in range(2, 4): A(f'ds_read_b64_tr_b16 v[{60+2*j}:{61+2*j}], v176 offset:{L_Q + j*768}')
    kq(2); k(1, 5)
    A('v_add_f32 v24, v24, v26\nv_add_f32 v25, v25, v27\nv_cvt_pk_bf16_f32 v24, v24, v25'); k(1, 6)
    A('ds_write_b32 v6, v24'); k(1, 7); k(1, 8); kq(3); A(kqinc); k(1, 9)
    if P['FQ'] == 20: A('buffer_store_dword v149, v142, s[8:11], 0 offen sc1')
    A('s_waitcnt lgkmcnt(1)')
    if P.get('TS') == 2: stamp(A, P, 6)
    A(f'{SM} v[32:35], v[60:63], v[68:75], v3\ns_add_u32 s16, s16, 1\ns_cmp_lt_u32 s18, 2\ns_nop 0')
    A(f'{SM} v[36:39], v[60:63], v[84:91], v3\ns_nop 1')
    A('v_add_f32 v28, v28, v30\nv_add_f32 v29, v29, v31')
    A(f'{SM} v[32:35], v[64:67], v[76:83], v3')
    A('v_cvt_pk_bf16_f32 v25, v28, v29\nds_write_b32 v6, v25 offset:288')
    A(f'{SM} v[36:39], v[64:67], v[92:99], v3')
    A('s_waitcnt lgkmcnt(0)\ns_barrier')
    stamp(A, P, 2)
    A('s_cbranch_scc0 L_qk_xa')
    def kmr():
        for ks in range(2):
            for half in range(2):
                for rd in range(2):
                    r = 44 + 8*ks + 4*half + 2*rd
                    A(f'ds_read_b64_tr_b16 v[{r}:{r+1}], v7 offset:{ks*1152 + half*128 + rd*32}')
    kmr()
    A('s_cmp_eq_u32 s18, 0\ns_cbranch_scc0 L_qk_u1')
    for u in range(2):
        if u: A('L_qk_u1:')
        A(f'v_add_f32 v32, v{32+u}, v{34+u}\nv_add_f32 v36, v{36+u}, v{38+u}\nv_max_f32 v33, v32, v36')
        A('s_waitcnt lgkmcnt(4)')
        A(f'{SM} v[40:43], v[60:63], v[44:51], v3')
        A('s_waitcnt lgkmcnt(0)')
        A(f'{SM} v[40:43], v[64:67], v[52:59], v3')
        if P.get('TS') == 2: stamp(A, P, 7)
        A(f'v_max_f32_dpp v33, v33, v33 row_ror:8 {DPP}')
        A(f'v_add_f32 v40, v{40+u}, v{42+u}')
        A('v_max_f32 v33, v33, v40')
        for r in (4, 2, 1): A(f'v_max_f32_dpp v33, v33, v33 row_ror:{r} {DPP}')
        A('v_sub_f32 v32, v32, v33\nv_sub_f32 v36, v36, v33\nv_sub_f32 v40, v40, v33')
        A('v_exp_f32 v32, v32\nv_exp_f32 v36, v36\nv_exp_f32 v40, v40')
        A('v_add_f32 v33, v32, v36\nv_fma_f32 v33, v40, 0.5, v33')
        A(f'v_mov_b32_dpp v41, v40 quad_perm:[1,0,3,2] {DPP}')
        for r in (8, 4, 2, 1): A(f'v_add_f32_dpp v33, v33, v33 row_ror:{r} {DPP}')
        A('v_rcp_f32 v33, v33')
        A('v_mul_f32 v32, v32, v33\nv_mul_f32 v36, v36, v33')
        A('v_cvt_pk_bf16_f32 v32, v32, v36\nbuffer_store_dword v32, v8, s[8:11], s28 offen sc1')
        A('v_mul_f32 v40, v40, v33\nv_mul_f32 v41, v41, v33')
        A('v_cvt_pk_bf16_f32 v40, v40, v41\nbuffer_store_dword v40, v9, s[8:11], s29 offen sc1')
        if u == 0: A('s_branch L_qk_sm')
    A('L_qk_sm:')
    stamp(A, P, 3)
    A(f's_xor_b32 s28, s28, {4*MBLK}\ns_xor_b32 s29, s29, {3*MBLK}')
    A('buffer_store_dword v11, v8, s[8:11], s28 offen sc1\nbuffer_store_dword v11, v9, s[8:11], s29 offen sc1')
    A('s_cmp_lt_u32 s16, 64\ns_cbranch_scc1 L_qk_next\ns_branch L_qk_fin')
    A('L_qk_xa:')
    if P['FQ'] > 20: delay(A, (P['FQ'] - 21) * 16); A('buffer_store_dword v149, v142, s[8:11], 0 offen sc1')
    A('s_nop 7')
    for j in range(4):
        for rt in range(2): A(f'{MF} v[{32+4*rt}:{35+4*rt}], v[{68+16*rt+4*j}:{71+16*rt+4*j}], v[{160+4*j}:{163+4*j}], {"0" if j == 0 else f"v[{32+4*rt}:{35+4*rt}]"}')
    kmr()
    A('s_waitcnt lgkmcnt(0)')
    for j in range(4): A(f'{MF} v[40:43], v[{44+4*j}:{47+4*j}], v[{160+4*j}:{163+4*j}], {"0" if j == 0 else "v[40:43]"}')
    for r in range(8): A(f'v_cndmask_b32 v{32+r}, v178, v{32+r}, s[{64+2*r}:{65+2*r}]')
    A('v_max3_f32 v16, v32, v33, v34\nv_max3_f32 v17, v35, v36, v37\nv_max3_f32 v16, v16, v38, v39\nv_max3_f32 v17, v17, v40, v41\nv_max3_f32 v16, v16, v42, v43\nv_max_f32 v16, v16, v17')
    def xred(op):
        A(f'v_mov_b32 v17, v16\nv_permlane32_swap_b32 v16, v17\n{op} v16, v16, v17\nv_mov_b32 v17, v16\nv_permlane16_swap_b32 v16, v17\n{op} v16, v16, v17')
    xred('v_max_f32')
    for r in range(32, 44): A(f'v_sub_f32 v{r}, v{r}, v16')
    for r in range(32, 44): A(f'v_exp_f32 v{r}, v{r}')
    A('v_add_f32 v17, v40, v41\nv_add_f32 v18, v42, v43\nv_add_f32 v16, v32, v33\nv_add_f32 v17, v17, v18')
    for r in range(34, 40): A(f'v_add_f32 v16, v16, v{r}')
    A('v_fma_f32 v16, v17, 0.5, v16')
    xred('v_add_f32')
    A('v_rcp_f32 v16, v16')
    for r in range(32, 44): A(f'v_mul_f32 v{r}, v{r}, v16')
    for r in range(4): A(f'v_cvt_pk_bf16_f32 v{20+r}, v{32+r}, v{36+r}')
    A('v_cvt_pk_bf16_f32 v24, v40, v41\nv_cvt_pk_bf16_f32 v25, v42, v43')
    if not P.get('FAKE', 0) & 2: A('buffer_store_dwordx4 v[20:23], v4, s[4:7], s36 offen sc1\nbuffer_store_dword v24, v179, s[4:7], s37 offen sc1\nbuffer_store_dword v25, v179, s[4:7], s37 offen offset:8 sc1')
    A('s_add_u32 s36, s36, 65536\ns_add_u32 s37, s37, 16384')
    A('s_cmp_lt_u32 s16, 64\ns_cbranch_scc1 L_qk_next')
    A('L_qk_fin:\ns_waitcnt vmcnt(0)\ns_barrier\nbuffer_store_dword v149, v180, s[8:11], 0 offen sc1\ns_branch L_qk_end')
    slow_check(A, 'L_qk_slow', 'L_qk_back', 'L_qk_retry', 'L_qk_end')
    A('L_qk_end:')
    stats(A, P)
def role_vo(A, P):
    chain_lane(A)
    set_srd(A, 12, 32, 640*8192); load_weights(A, memw(0), 's[12:15]', 'v10')
    A('v_and_b32 v14, 1, v13\nv_mul_u32_u24 v10, 40960, v14\nv_lshrrev_b32 v14, 1, v13\nv_mul_u32_u24 v14, 10240, v14\nv_add_u32 v10, v10, v14\nv_lshl_add_u32 v10, v12, 2, v10')
    A('s_mul_i32 s20, s17, 163840\ns_mul_i32 s21, s18, 320\ns_add_u32 s20, s20, s21\nv_add_u32 v10, s20, v10')
    g = [grp(lambda half, jp, c: 64*ks + 16*half + OFFS[jp][c], 1280, j*64, 20 + 4*j + ks, 22 + 4*j + ks) for j in range(5) for ks in range(2)]
    set_srd(A, 12, 40, 32*163840); load_weights(A, g, 's[12:15]', 'v10')
    q_raddr(A)
    for sh, a, b in ((14, 8, 9), (13, 6, 7)):
        A(f's_mul_i32 s20, s18, {10 << sh}\ns_lshl_b32 s21, s17, 8\ns_add_u32 s20, s20, s21\nv_lshlrev_b32 v{a}, 4, v12\nv_add_u32 v{a}, s20, v{a}')
        A(f'v_and_b32 v14, 1, v13\nv_lshl_add_u32 v{b}, v14, {sh}, v{a}\nv_lshrrev_b32 v14, 1, v13\nv_lshl_add_u32 v{b}, v14, 3, v{b}\nv_lshl_add_u32 v{a}, v13, {sh}, v{a}')
    A(f's_mov_b32 s16, 0\ns_mov_b32 s24, 0\ns_mov_b32 s26, 0\ns_mov_b32 s27, 0\ns_mov_b32 s36, {OFF_UMR}')
    flag_cons_addr(A, 'v143', FO, P)
    A(f's_lshl_b32 s20, s17, 7\ns_add_u32 s20, s20, {FCH + 4096}\ns_add_u32 s20, s20, s19')
    lane0_addr(A, 'v180', 's_cmp_eq_u32 s18, 3')
    rts(A, P, 1)
    A('L_vo_step:')
    stamp_out(A, P, 150)
    A('s_cmp_eq_u32 s18, 2\ns_cbranch_scc0 L_vo_nodma')
    mem_slot(A, P)
    A('s_sub_u32 s35, s16, 1')
    poll(A, P, 'v143', 's35', 182)
    delay(A, P.get('DF', 0))
    if P.get('TS') == 3: stamp(A, P, 4)
    A('s_branch L_vo_dma')
    A('L_vo_retry:')
    A('s_cmp_eq_u32 s18, 2\ns_cbranch_scc0 L_vo_nodma')
    A('L_vo_dma:')
    dma_mem(A, P)
    stamp(A, P, 0)
    A('L_vo_nodma:')
    for r in range(16, 24): A(f'v_mov_b32 v{r}, 0')
    for r in range(32, 72): A(f'v_mov_b32 v{r}, 0')
    A('v_mov_b32 v149, s16\nv_add_u32 v148, -1, v149')
    A(f's_and_b32 s20, s16, 1\ns_mul_i32 s28, s20, {40*MBLK}\ns_add_u32 s28, s28, s19\ns_add_u32 s28, s28, {16*MBLK}')
    first_pass(A, P, 16, 20, 0, {8: 'buffer_store_dword v148, v180, s[8:11], 0 offen sc1'})
    if P.get('TS') == 2: stamp(A, P, 4)
    A('v_add_f32 v16, v16, v18\nv_add_f32 v17, v17, v19\nv_add_f32 v20, v20, v22\nv_add_f32 v21, v21, v23')
    A('v_cmp_u_f32 vcc, v16, v17\nv_cvt_pk_bf16_f32 v16, v16, v17\nv_cvt_pk_bf16_f32 v17, v20, v21')
    A('s_cbranch_vccnz L_vo_slow\nL_vo_back:')
    A('ds_write_b64 v5, v[16:17]\ns_add_u32 s16, s16, 1\ns_waitcnt lgkmcnt(0)\ns_barrier')
    if P.get('TS') == 2: stamp(A, P, 5)
    for k in range(4): A(f'ds_read_b64_tr_b16 v[{24+2*k}:{25+2*k}], v176 offset:{L_Q + k*768}')
    def o(t, ks): A(f'{SM} v[{32+4*t}:{35+4*t}], v[{24+4*ks}:{27+4*ks}], {wreg(20+2*t+ks)}, v3')
    def fin(t):
        r = 32 + 4*t
        return [f'v_add_f32 v{r}, v{r}, v{r+2}', f'v_add_f32 v{r+1}, v{r+1}, v{r+3}', f'v_cvt_pk_bf16_f32 v{72+t}, v{r}, v{r+1}']
    def tr4(b, so):
        return [f'v_permlane32_swap_b32 v{b}, v{b+2}', f'v_permlane32_swap_b32 v{b+1}, v{b+3}', f'v_permlane16_swap_b32 v{b}, v{b+1}', f'v_permlane16_swap_b32 v{b+2}, v{b+3}',
                f'buffer_store_dwordx4 v[{b}:{b+3}], v8, s[8:11], {so} offen sc1']
    A('s_waitcnt lgkmcnt(2)'); o(0, 0); o(1, 0); A('s_waitcnt lgkmcnt(0)'); o(0, 1); o(1, 1)
    if P.get('TS') == 2: stamp(A, P, 6)
    o(2, 0); A(f's_add_u32 s29, s28, {4*MBLK}\ns_add_u32 s30, s28, {8*MBLK}\ns_nop 0'); o(2, 1); A('s_nop 1')
    J = lambda x: A('\n'.join(x))
    a4 = tr4(72, 's28'); b4 = tr4(76, 's29')
    o(3, 0); J(fin(0)); o(3, 1); J(fin(1)); o(4, 0); J(fin(2)); o(4, 1); A('s_nop 2'); o(5, 0); J(fin(3)); o(5, 1); J(a4[:1]); A('s_nop 0')
    o(6, 0); J(a4[1:2]); J(fin(4)[:1]); o(6, 1); J(fin(4)[1:]); o(7, 0); J(a4[2:4]); o(7, 1); J(a4[4:]); J(fin(5)[:2])
    o(8, 0); J(fin(5)[2:]); J(fin(6)[:2]); o(8, 1); J(fin(6)[2:]); A('s_nop 1'); o(9, 0); J(fin(7)); o(9, 1)
    if P.get('TS') == 2: stamp(A, P, 7)
    J(b4[:2]); J(fin(8)[:2]); J(b4[2:]); J(fin(8)[2:]); J(fin(9))
    A('v_permlane16_swap_b32 v80, v81\nbuffer_store_dwordx2 v[80:81], v9, s[8:11], s30 offen sc1')
    stamp(A, P, 3)
    delay(A, P.get('DR', 0))
    A('s_add_u32 s29, s36, 32768\ns_add_u32 s30, s36, 65536')
    if not P.get('FAKE', 0) & 2: A('buffer_store_dwordx4 v[72:75], v6, s[4:7], s36 offen sc1\nbuffer_store_dwordx4 v[76:79], v6, s[4:7], s29 offen sc1\nbuffer_store_dwordx2 v[80:81], v7, s[4:7], s30 offen sc1')
    A(f's_add_u32 s36, s36, {40*8192}')
    A('s_cmp_lt_u32 s16, 64\ns_cbranch_scc1 L_vo_step')
    A('s_waitcnt vmcnt(0)\ns_barrier\nbuffer_store_dword v149, v180, s[8:11], 0 offen sc1\ns_branch L_vo_end')
    slow_check(A, 'L_vo_slow', 'L_vo_back', 'L_vo_retry', 'L_vo_end')
    A('L_vo_end:')
    stats(A, P)
def role_own(A, P):
    common_lane(A)
    A('s_cmp_eq_u32 s18, 0\ns_cbranch_scc1 L_own_go\ns_endpgm\nL_own_go:')
    A('v_and_b32 v3, 1, v1\nv_cmp_eq_u32 vcc, 0, v3\nv_mov_b32 v3, 0xeeee\nv_mov_b32 v5, 0x4444\nv_cndmask_b32 v3, v3, v5, vcc')
    A('v_lshlrev_b32 v5, 8, v13\nv_lshl_add_u32 v5, v12, 3, v5\nv_lshlrev_b32 v6, 2, v1')
    for r in range(8, 11): A(f'v_mov_b32 v{r}, -1')
    A(f's_lshl_b32 s36, s17, 8\ns_mov_b32 s35, {MBLK}\ns_cmp_lt_u32 s17, 32\ns_cbranch_scc1 L_own_a\ns_movk_i32 s35, 2048\ns_add_u32 s36, s36, {4*MBLK - 8192}\nL_own_a:\ns_add_u32 s36, s36, s19')
    A(f's_lshl_b32 s25, s17, 15\ns_add_u32 s25, s25, {OFF_UX}')
    A(f's_lshl_b32 s37, s17, 8\ns_add_u32 s37, s37, {OFF_REC + 16384}')
    A('s_mov_b32 s16, 0\ns_mov_b32 s24, 0\ns_mov_b32 s26, 0\ns_mov_b32 s27, 0\ns_mov_b32 s48, -1\ns_mov_b32 s49, -1')
    flag_prod_addr(A, 'v2', FO, P, f's_cmp_eq_u32 s17, {P.get("MO", 0)}')
    flag_cons_addr(A, 'v7', FQ, P)
    A(f's_and_b32 s21, s2, {3 if P.get("ROT", 1) else 0}')
    for g in range(4):
        A(f's_xor_b32 s20, s21, {g}\ns_lshl_b32 s{56+g}, s20, 13\ns_lshl_b32 s{60+g}, s20, 10\ns_lshr_b32 s{52+g}, s20, 1\ns_lshl_b32 s{52+g}, s{52+g}, 14\ns_and_b32 s20, s20, 1\ns_lshl_b32 s20, s20, 12\ns_add_u32 s{52+g}, s{52+g}, s20')
    A(f'v_and_b32 v1, 31, v1\nv_lshlrev_b32 v1, 8, v1\ns_add_u32 s20, s19, {FWV}\nv_add_u32 v1, s20, v1')
    A('L_own_step:')
    if P.get('SYNC'):
        cached_wait(A, P, 'v1', 16, 's16', 's48')
        A('v_xor_b32 v1, 128, v1\ns_mov_b32 s20, s48\ns_mov_b32 s48, s49\ns_mov_b32 s49, s20')
    delay(A, P.get('DU', 0))
    for j in range(32):
        if (j & 7) == 0: A(f's_add_u32 s20, s25, s{56 + (j>>3)}')
        if (j & 7) == 4: A('s_add_u32 s20, s20, 4096')
        A(f'buffer_load_dwordx4 v[{64+4*j}:{67+4*j}], v4, s[4:7], s20 offen offset:{(j&3)*1024} sc1')
    A(f's_add_u32 s25, s25, {0 if P.get("FAKE", 0) & 1 else 40*32768}')
    A(f's_and_b32 s20, s16, 1\ns_mul_i32 s20, s20, 40\ns_add_u32 s20, s20, s17\ns_add_u32 s20, s20, 16\ns_lshl_b32 s28, s20, 14\ns_add_u32 s28, s28, s19\ns_add_u32 s38, s28, 4096')
    A(f's_and_b32 s20, s16, 3\ns_lshl_b32 s29, s20, 15\ns_add_u32 s29, s29, s19\ns_add_u32 s29, s29, {8*MBLK}')
    A('s_add_u32 s39, s29, s53\ns_add_u32 s40, s29, s54\ns_add_u32 s41, s29, s55\ns_add_u32 s29, s29, s52')
    A(f's_lshr_b32 s21, s20, 1\ns_lshl_b32 s21, s21, 14\ns_and_b32 s20, s20, 1\ns_lshl_b32 s20, s20, 12\ns_add_u32 s30, s20, s21\ns_add_u32 s30, s30, s19\ns_add_u32 s30, s30, {5*MBLK}')
    A('s_add_u32 s20, s16, 1\ns_and_b32 s20, s20, 3\ns_mul_i32 s42, s20, s35\ns_add_u32 s42, s42, s36\ns_xor_b32 s20, s20, 2\ns_mul_i32 s43, s20, s35\ns_add_u32 s43, s43, s36')
    for g in range(4): A(f's_add_u32 s{64+g}, s30, s{60+g}\ns_lshl_b32 s20, s{60+g}, 1\ns_add_u32 s{68+g}, s28, s20')
    A('v_mov_b32 v0, s16')
    A('s_waitcnt vmcnt(0)')
    stamp(A, P, 4)
    poll(A, P, 'v7', 's16', 16)
    stamp(A, P, 0)
    if P['FO'] == -1: A('buffer_store_dword v0, v2, s[8:11], 0 offen sc1')
    A('L_own_retry:')
    for j in range(8): A(f'buffer_load_dwordx4 v[{32+4*j}:{35+4*j}], v4, s[8:11], s{68+(j>>1)} offen offset:{(j&1)*1024} sc1')
    fo = P['FO']
    def flag(pos):
        if fo == pos: A('buffer_store_dword v0, v2, s[8:11], 0 offen sc1')
    for j in range(16): A(f'buffer_load_dwordx4 v[{192+4*j}:{195+4*j}], v4, s[8:11], s{[29,39,40,41][j>>2]} offen offset:{(j&3)*1024} sc1')
    for j in range(4): A(f'buffer_load_dwordx4 v[{16+4*j}:{19+4*j}], v4, s[8:11], s{64+j} offen sc1')
    flag(0)
    for r in range(12, 16): A(f'v_mov_b32 v{r}, 0')
    stamp(A, P, 1)
    for j in range(16):
        A(f's_waitcnt vmcnt({19-j + (0 <= fo <= j)})')
        flag(j + 1)
        if j == 0: stamp(A, P, 2)
        A(f'{SM} v[12:15], v[{192+4*j}:{195+4*j}], v[{64+8*j}:{71+8*j}], v3')
    for j in range(4):
        A(f's_waitcnt vmcnt({3-j + (0 <= fo <= 16)})')
        A(f'{SM} v[12:15], v[{16+4*j}:{19+4*j}], v[{32+8*j}:{39+8*j}], v3')
    A('v_add_f32 v12, v12, v13\nv_add_f32 v14, v14, v15\nv_cmp_u_f32 vcc, v12, v14\nv_cvt_pk_bf16_f32 v12, v12, v14')
    A('s_cbranch_vccnz L_own_slow\nL_own_back:')
    A('buffer_store_dword v12, v6, s[8:11], s42 offen sc1')
    stamp(A, P, 3)
    flag(17)
    delay(A, P.get('DP', 0))
    A('buffer_store_dword v11, v6, s[8:11], s43 offen sc1')
    for j in range(8): A(f'buffer_store_dwordx4 v[8:11], v4, s[8:11], {"s28" if j < 4 else "s38"} offen offset:{(j&3)*1024} sc1')
    if P.get('DBG'):
        A('buffer_store_dword v12, v6, s[4:7], s37 offen\ns_add_u32 s37, s37, 16384')
        A('s_cmp_eq_u32 s16, 2\ns_cbranch_scc0 L_own_nt\ns_memtime s[44:45]\ns_mov_b32 s27, s24\ns_mov_b32 s50, 0\nL_own_nt:')
    if P.get('RT'):
        for k, st in ((1, 0), (3, 1), (4, 10), (5, 20), (6, 30), (7, 40)):
            l = A.lab('rt'); A(f's_cmp_eq_u32 s16, {st}\ns_cbranch_scc0 {l}'); rts(A, P, k); A(f'{l}:')
    A('s_add_u32 s16, s16, 1')
    stamp_out(A, P, 16)
    A('s_cmp_lt_u32 s16, 63\ns_cbranch_scc1 L_own_step')
    if P.get('DBG'): A('s_memtime s[46:47]\ns_waitcnt lgkmcnt(0)\ns_sub_u32 s26, s46, s44\ns_mov_b32 s16, s50')
    A('s_branch L_own_end')
    A('L_own_slow:')
    if P.get('DBG'):
        for lo, hi, unit in ((32, 64, 1), (192, 256, 1 << 10), (16, 32, 1 << 20)):
            A(f'v_max_u32 v13, v{lo}, v{lo+1}')
            for r in range(lo + 2, hi, 2): A(f'v_max3_u32 v13, v13, v{r}, v{r+1}')
            l = A.lab('dg'); A(f'v_cmp_eq_u32 vcc, -1, v13\ns_cbranch_vccz {l}\ns_add_u32 s50, s50, {unit}\n{l}:')
    A('v_max3_u32 v13, v16, v17, v18')
    rs = list(range(19, 64)) + list(range(192, 256))
    A(f'v_max_u32 v13, v13, v{rs.pop()}')
    for a, b in zip(rs[0::2], rs[1::2]): A(f'v_max3_u32 v13, v13, v{a}, v{b}')
    A('v_cmp_eq_u32 vcc, -1, v13\ns_cbranch_vccz L_own_back')
    A('s_add_u32 s24, s24, 1\ns_cmp_gt_u32 s24, 200000\ns_cbranch_scc0 L_own_retry')
    A('L_own_end:')
    stats(A, P)
```

```python
import math, struct
MBLK = 16384
MB = 1 << 20
OFF_XN = 4*MB
OFF_KQ = 8*MB
OFF_H = 40*MB
OFF_PXX = 48*MB
OFF_PXM = 52*MB
OFF_UMR = 56*MB
OFF_UX = 80*MB
OFF_REC = 170*MB
OFF_TS = OFF_REC + 4*MB
OFF_POL = 7*MB
FQ = 7*MBLK; FO = 96*MBLK
FCH = 97*MBLK
FWK = 98*MBLK
FWV = 99*MBLK
FWF = 100*MBLK
LOG2E = math.log2(math.e)
CSC = 128 ** -0.5 * LOG2E
OOB = '0x40000000'
def f32(x): return hex(struct.unpack('<I', struct.pack('<f', x))[0])
def wreg(o): return f'a[{8*o}:{8*o+7}]' if o < 32 else f'v[{192+8*(o-32)}:{192+8*(o-32)+7}]'
def wreg4(o, half):
    b = 8*o + 4*half
    return f'a[{b}:{b+3}]' if o < 32 else f'v[{b-64}:{b-61}]'
def wsingle(o, r): return ('a', 8*o + r) if o < 32 else ('v', 192 + 8*(o-32) + r)
OFFS = [(0, 2), (1, 3), (4, 6), (5, 7)]
NAT = [(0, 1), (2, 3), (4, 5), (6, 7)]
def delay(A, cyc):
    n = cyc // 64
    while n > 0:
        k = min(n, 100); A(f's_sleep {k}'); n -= k
    r = (cyc % 64) // 4
    if r: A(f's_nop {r-1}')
def load_weights(A, groups, srd, voff):
    T = 128
    n = len(groups)
    def issue(gi):
        for k, o in enumerate(groups[gi][0]):
            A(f's_mov_b32 s30, {o}')
            A(f'buffer_load_dword v{T+16*(gi&3)+k}, {voff}, {srd}, s30 offen')
    for gi in range(min(3, n)): issue(gi)
    for gi in range(n):
        A(f's_waitcnt vmcnt({16*min(n-1-gi, 2)})')
        _, o0, o1 = groups[gi]
        for R in range(8):
            a = T + 16*(gi & 3) + 2*R
            for o, sel in ((o0, 's31'), (o1, 's32')):
                kind, idx = wsingle(o, R)
                if kind == 'v': A(f'v_perm_b32 v{idx}, v{a+1}, v{a}, {sel}')
                else:
                    tmp = 120 + (2*R + (o == o1)) % 8
                    A(f'v_perm_b32 v{tmp}, v{a+1}, v{a}, {sel}')
                    A(f'v_accvgpr_write_b32 a{idx}, v{tmp}')
        if gi + 3 < n: issue(gi + 3)
def grp(rowfn, stride, coff, o0, o1):
    return ([rowfn(half, jp, c) * stride + coff for half in range(2) for jp in range(4) for c in range(2)], o0, o1)
def set_srd(A, base, ptr_off, size):
    A(f's_load_dwordx2 s[{base}:{base+1}], s[0:1], {ptr_off}')
    A(f's_mov_b32 s{base+2}, {size}\ns_mov_b32 s{base+3}, 0x20000\ns_waitcnt lgkmcnt(0)')
def common_lane(A):
    A('v_and_b32 v1, 63, v0\nv_lshrrev_b32 v2, 6, v0\nv_readfirstlane_b32 s18, v2')
    A('v_and_b32 v12, 15, v1\nv_lshrrev_b32 v13, 4, v1\nv_lshlrev_b32 v4, 4, v1\nv_mov_b32 v11, -1')
    A('s_mov_b32 s31, 0x05040100\ns_mov_b32 s32, 0x07060302')
def prologue(A, name, pol=True):
    A(f'.globl {name}\n.p2align 8\n.type {name},@function\n{name}:')
    A('s_load_dwordx2 s[4:5], s[0:1], 96\ns_mov_b32 s6, 0x10000000\ns_mov_b32 s7, 0x20000\ns_mov_b32 s10, 0x200000\ns_mov_b32 s11, 0x20000')
    A('s_waitcnt lgkmcnt(0)')
    A('s_add_u32 s8, s4, 0x1fffff\ns_addc_u32 s9, s5, 0\ns_and_b32 s8, s8, 0xffe00000')
    if pol:
        A(f's_load_dword s19, s[4:5], {OFF_POL & 0xfffff}' if OFF_POL < (1 << 20) else f's_mov_b32 s20, {OFF_POL}\ns_load_dword s19, s[4:5], s20')
        A('s_waitcnt lgkmcnt(0)\ns_and_b32 s19, s19, 0x2000')
def silu(A, r, t):
    for a, b in zip(r, t): A(f'v_mul_f32 v{b}, s33, v{a}')
    for a, b in zip(r, t): A(f'v_exp_f32 v{b}, v{b}')
    for a, b in zip(r, t): A(f'v_add_f32 v{b}, 1.0, v{b}')
    for a, b in zip(r, t): A(f'v_rcp_f32 v{b}, v{b}')
    for a, b in zip(r, t): A(f'v_mul_f32 v{a}, v{a}, v{b}')
def wait_flags(A, base, lanes_expr, sval, cache, tmpv, tmpa, sleep=2):
    l = A.lab('wf')
    A(f's_mov_b32 s21, 0\n{l}:')
    A(f'buffer_load_dword v{tmpv}, v{tmpa}, s[8:11], 0 offen sc1\ns_waitcnt vmcnt(0)\nv_cmp_gt_i32 vcc, {sval}, v{tmpv}\ns_cbranch_vccz {l}_ok')
    A(f's_sleep {sleep}\ns_add_u32 s21, s21, 1\ns_cmp_lt_u32 s21, 200000\ns_cbranch_scc1 {l}\n{l}_ok:')

OFF_RT = OFF_REC + 3*MB
def rts(A, P, k):
    if not P.get('RT'): return
    A(f's_memrealtime s[98:99]\ns_memtime s[96:97]\ns_lshl_b32 s100, s2, 7\ns_add_u32 s100, s100, {OFF_RT + k*8}\ns_waitcnt lgkmcnt(0)\nv_mov_b32 v126, s98\nv_mov_b32 v127, s96\nbuffer_store_dwordx2 v[126:127], off, s[4:7], s100')
```

```python
from common import *
MF = 'v_mfma_f32_16x16x32_bf16'
def role_ln(A, P):
    common_lane(A)
    set_srd(A, 12, 0, 2048*1280)
    A('v_mul_u32_u24 v5, 1280, v12\nv_lshl_add_u32 v5, v13, 4, v5\ns_mul_i32 s20, s17, 20480\ns_mul_i32 s21, s18, 320\ns_add_u32 s20, s20, s21')
    for j in range(5): A(f'buffer_load_dwordx4 v[{20+4*j}:{23+4*j}], v5, s[12:15], s20 offen offset:{j*64}')
    A('v_lshlrev_b32 v6, 2, v12\ns_lshl_b32 s21, s18, 6\nv_add_u32 v7, s21, v6')
    A('s_waitcnt vmcnt(0)')
    for j in range(20):
        A(f'v_lshlrev_b32 v{40+2*j}, 16, v{20+j}\nv_and_b32 v{41+2*j}, 0xffff0000, v{20+j}')
    def red(base):
        A('v_mov_b32 v9, v8\nv_permlane32_swap_b32 v8, v9\nv_add_f32 v8, v8, v9\nv_mov_b32 v9, v8\nv_permlane16_swap_b32 v8, v9\nv_add_f32 v8, v8, v9')
        A(f'ds_write_b32 v7, v8 offset:{base}\ns_waitcnt lgkmcnt(0)\ns_barrier')
        A(f'ds_read_b32 v8, v6 offset:{base}\nds_read_b32 v9, v6 offset:{base+64}\nds_read_b32 v10, v6 offset:{base+128}\nds_read_b32 v14, v6 offset:{base+192}')
        A('s_waitcnt lgkmcnt(0)\nv_add_f32 v8, v8, v9\nv_add_f32 v10, v10, v14\nv_add_f32 v8, v8, v10')
    A('v_add_f32 v8, v40, v41\nv_add_f32 v9, v42, v43')
    for j in range(2, 20): A(f'v_add_f32 v8, v8, v{40+2*j}\nv_add_f32 v9, v9, v{41+2*j}')
    A('v_add_f32 v8, v8, v9')
    red(0)
    A(f'v_mul_f32 v8, {f32(1/640)}, v8')
    for j in range(40): A(f'v_sub_f32 v{40+j}, v{40+j}, v8')
    A('v_mul_f32 v8, v40, v40\nv_mul_f32 v9, v41, v41')
    for j in range(1, 20): A(f'v_fmac_f32 v8, v{40+2*j}, v{40+2*j}\nv_fmac_f32 v9, v{41+2*j}, v{41+2*j}')
    A('v_add_f32 v8, v8, v9')
    red(256)
    A(f'v_mov_b32 v9, {f32(1e-5)}\nv_fmac_f32 v9, {f32(1/640)}, v8\nv_rsq_f32 v8, v9')
    for j in range(40): A(f'v_mul_f32 v{40+j}, v{40+j}, v8')
    for j in range(20): A(f'v_cvt_pk_bf16_f32 v{20+j}, v{40+2*j}, v{41+2*j}')
    A(f's_mul_i32 s20, s17, 20480\ns_mul_i32 s21, s18, 5120\ns_add_u32 s20, s20, s21\ns_add_u32 s20, s20, {OFF_XN}\ns_add_u32 s21, s20, 4096')
    for j in range(5): A(f'buffer_store_dwordx4 v[{20+4*j}:{23+4*j}], v4, s[4:7], {"s20" if j < 4 else "s21"} offen offset:{(j&3)*1024} sc1')
def role_poison(A, P):
    A('v_lshlrev_b32 v20, 4, v0\nv_mov_b32 v21, v20\ns_lshl_b32 s20, s17, 14')
    for r in range(24, 28): A(f'v_mov_b32 v{r}, -1')
    l = A.lab('po')
    A(f's_cmp_eq_u32 s17, 4\ns_cbranch_scc0 {l}\nv_cmp_gt_u32 vcc, 128, v0\nv_mov_b32 v22, {OOB}\nv_cndmask_b32 v21, v20, v22, vcc\n{l}:')
    for j in range(4):
        A(f'buffer_store_dwordx4 v[24:27], {"v21" if j in (0, 2) else "v20"}, s[8:11], s20 offen sc1\ns_add_u32 s20, s20, 4096')
def role_mem0(A, P):
    common_lane(A)
    set_srd(A, 12, 8, 8*1280)
    A('s_lshl_b32 s20, s17, 2\ns_add_u32 s20, s20, s18')
    A('s_lshr_b32 s21, s20, 1\ns_lshl_b32 s21, s21, 6\ns_and_b32 s22, s20, 1\ns_lshl_b32 s22, s22, 1\ns_add_u32 s21, s21, s22')
    A('v_mul_u32_u24 v5, 2560, v13\nv_lshl_add_u32 v5, v12, 2, v5')
    A('buffer_load_ushort v6, v5, s[12:15], s21 offen\nbuffer_load_ushort v7, v5, s[12:15], s21 offen offset:1280')
    A(f's_lshl_b32 s21, s20, 8\ns_add_u32 s22, s21, {4*MBLK - 8192}\ns_cmp_lt_u32 s20, 32\ns_cselect_b32 s21, s21, s22\ns_add_u32 s22, s21, 8192')
    A('v_lshlrev_b32 v5, 2, v1\ns_waitcnt vmcnt(0)\nv_lshl_or_b32 v6, v7, 16, v6')
    A('buffer_store_dword v6, v5, s[8:11], s21 offen sc1\nbuffer_store_dword v6, v5, s[8:11], s22 offen sc1')
def role_calib(A, P):
    N = 4
    A('v_mov_b32 v5, 0\nv_mov_b32 v6, 0')
    for j in range(N):
        for h in range(2): A(f's_mov_b32 s20, {(112+j)*MBLK + h*8192 + j*1280}\nbuffer_store_dword v6, v5, s[8:11], s20 offen sc1')
    A('s_waitcnt vmcnt(0)\ns_mov_b32 s26, -1\ns_mov_b32 s27, -1')
    for j in range(N):
        for h in range(2):
            A(f's_mov_b32 s20, {(112+j)*MBLK + h*8192 + j*1280}\ns_memtime s[22:23]\ns_waitcnt lgkmcnt(0)')
            A('buffer_load_dword v6, v5, s[8:11], s20 offen sc1\ns_waitcnt vmcnt(0)\ns_memtime s[24:25]\ns_waitcnt lgkmcnt(0)')
            A(f's_sub_u32 s24, s24, s22\ns_min_u32 s{26+h}, s{26+h}, s24')
    A(f's_cmp_le_u32 s26, s27\ns_cselect_b32 s19, 0, 0x2000')
def init_kernel(A, P, name):
    prologue(A, name, pol=False)
    rts(A, P, 8)
    A('s_mov_b32 s17, s2\ns_cmp_lt_u32 s2, 128\ns_cbranch_scc1 L_i_ln')
    A('s_sub_u32 s17, s2, 128\ns_cmp_eq_u32 s17, 0\ns_cbranch_scc1 L_i_cal\ns_cmp_lt_u32 s17, 112\ns_cbranch_scc1 L_i_po')
    A('s_sub_u32 s17, s17, 112\ns_cmp_lt_u32 s17, 10\ns_cbranch_scc1 L_i_m0\ns_endpgm')
    A('L_i_cal:\nv_lshrrev_b32 v2, 6, v0\nv_readfirstlane_b32 s18, v2\ns_cmp_eq_u32 s18, 0\ns_cbranch_scc1 L_i_cal2\ns_endpgm\nL_i_cal2:')
    role_calib(A, P)
    rts(A, P, 9)
    if 'POL' in P: A(f's_mov_b32 s19, {P["POL"]}')
    A(f'v_mov_b32 v6, s19\nv_mov_b32 v7, s26\nv_mov_b32 v8, s27\ns_mov_b32 s20, {OFF_POL}\nbuffer_store_dwordx3 v[6:8], v5, s[4:7], s20 offen\ns_endpgm')
    A('L_i_po:'); role_poison(A, P); A('s_endpgm')
    A('L_i_m0:'); role_mem0(A, P); A('s_endpgm')
    A('L_i_ln:'); role_ln(A, P); rts(A, P, 9); A('s_endpgm')
XB = 40960
def xn_dma(A, seg_sreg):
    A(f's_mul_i32 s20, {seg_sreg}, 40960\ns_mul_i32 s21, s18, 10240\ns_add_u32 s20, s20, s21\ns_add_u32 s20, s20, {OFF_XN}\ns_add_u32 s21, s21, s40')
    for j in range(10):
        if (j & 3) == 0: A('s_mov_b32 m0, s21')
        A(f'buffer_load_dwordx4 v4, s[4:7], s20 offen offset:{(j&3)*1024} sc1 lds')
        if (j & 3) == 3: A('s_add_u32 s20, s20, 4096\ns_add_u32 s21, s21, 4096')
def xn_pass(A, nt, acc, mid=None):
    F = 100; NS = 5
    seq = [(kk, rt) for kk in range(20) for rt in range(2)]
    def rd(i):
        kk, rt = seq[i]; A(f'ds_read_b128 v[{F+4*(i%NS)}:{F+3+4*(i%NS)}], v5 offset:{(rt*20+kk)*1024}')
    for i in range(NS - 1): rd(i)
    for i, (kk, rt) in enumerate(seq):
        A(f's_waitcnt lgkmcnt({min(NS-2, 39-i)})')
        for t in range(nt):
            a = acc + 4*(rt*nt + t)
            A(f'{MF} v[{a}:{a+3}], {wreg4(20*(t>>1) + 2*(kk>>1) + (t&1), kk&1)}, v[{F+4*(i%NS)}:{F+3+4*(i%NS)}], {"0" if kk == 0 else f"v[{a}:{a+3}]"}')
            if t == 0 and i + NS - 1 < 40: rd(i + NS - 1)
        if mid and i == mid[0]: mid[1]()
def pack(A, dst, x, y):
    A(f'v_cvt_pk_bf16_f32 v{dst}, v{x}, v{x+1}\nv_cvt_pk_bf16_f32 v{dst+1}, v{y}, v{y+1}\nv_cvt_pk_bf16_f32 v{dst+2}, v{x+2}, v{x+3}\nv_cvt_pk_bf16_f32 v{dst+3}, v{y+2}, v{y+3}')
def natw(opbase, stride, coff):
    return [grp(lambda half, jp, c: 64*ks + 32*half + NAT[jp][c], stride, coff, opbase + 2*ks, opbase + 2*ks + 1) for ks in range(10)]
def xw_loop(A, P, nm, body, nst, flagbase):
    A(f's_lshl_b32 s20, s42, 7\ns_add_u32 s20, s20, {flagbase}\ns_add_u32 s20, s20, s19\ns_cmp_eq_u32 s18, 0\ns_cselect_b32 s20, s20, {OOB}')
    A(f'v_mov_b32 v9, s20\nv_cmp_eq_u32 vcc, 0, v1\nv_mov_b32 v15, {OOB}\nv_cndmask_b32 v9, v15, v9, vcc\nv_mov_b32 v10, -1')
    rts(A, P, 1)
    A('s_waitcnt vmcnt(0)\ns_barrier')
    A(f'{nm}_loop:')
    A(f'v_add_u32 v5, s40, v4\ns_xor_b32 s40, s40, {XB}\ns_add_u32 s43, s16, s41\ns_min_u32 s44, s43, 63')
    xn_dma(A, 's44')
    def mid():
        A('s_waitcnt vmcnt(10)\ns_barrier\nbuffer_store_dword v10, v9, s[8:11], 0 offen sc1')
    body(mid)
    A(f'v_mov_b32 v10, s16\ns_mov_b32 s16, s43\ns_cmp_lt_u32 s16, 64\ns_waitcnt vmcnt({nst})\ns_barrier\ns_cbranch_scc1 {nm}_loop')
    A('v_mov_b32 v10, 64\ns_waitcnt vmcnt(0)\ns_barrier\nbuffer_store_dword v10, v9, s[8:11], 0 offen sc1')
def role_qkx(A, P):
    common_lane(A)
    A('s_mov_b32 s40, 0'); xn_dma(A, 's16')
    A('v_lshlrev_b32 v10, 16, v13\nv_lshl_add_u32 v10, v12, 2, v10\ns_lshl_b32 s20, s17, 8\ns_lshl_b32 s21, s18, 6\ns_add_u32 s20, s20, s21\nv_add_u32 v10, s20, v10')
    set_srd(A, 12, 24, 640*8192); load_weights(A, natw(0, 8192, 0), 's[12:15]', 'v10')
    set_srd(A, 12, 16, 640*8192); load_weights(A, natw(20, 8192, 0), 's[12:15]', 'v10')
    A('v_lshrrev_b32 v8, 1, v13\nv_lshlrev_b32 v8, 10, v8\nv_and_b32 v14, 1, v13\nv_lshl_add_u32 v8, v14, 9, v8\nv_lshl_add_u32 v8, v12, 4, v8')
    A('s_lshr_b32 s20, s18, 1\ns_lshl_b32 s20, s20, 11\ns_and_b32 s21, s18, 1\ns_lshl_b32 s21, s21, 8\ns_add_u32 s20, s20, s21\nv_add_u32 v8, s20, v8')
    A(f's_mov_b32 s33, {f32(CSC)}')
    def body(mid):
        xn_pass(A, 4, 16, (12, mid))
        A(f's_lshl_b32 s20, s16, 5\ns_add_u32 s20, s20, s17\ns_lshl_b32 s20, s20, 14\ns_add_u32 s20, s20, {OFF_KQ}')
        for rt in range(2):
            pack(A, 48 + 4*rt, 16 + 16*rt, 20 + 16*rt)
            A(f'buffer_store_dwordx4 v[{48+4*rt}:{51+4*rt}], v8, s[4:7], s20 offen sc1\ns_add_u32 s20, s20, 4096')
        for rt in range(2):
            for r in range(8): A(f'v_mul_f32 v{24+16*rt+r}, s33, v{24+16*rt+r}')
            pack(A, 56 + 4*rt, 24 + 16*rt, 28 + 16*rt)
            A(f'buffer_store_dwordx4 v[{56+4*rt}:{59+4*rt}], v8, s[4:7], s20 offen sc1\ns_add_u32 s20, s20, 4096')
    xw_loop(A, P, 'L_qkx', body, 4, FWK)
def role_ffn1(A, P):
    common_lane(A)
    A('s_mov_b32 s40, 0'); xn_dma(A, 's16')
    A('v_mul_u32_u24 v10, 27648, v13\nv_lshl_add_u32 v10, v12, 2, v10\ns_lshl_b32 s20, s17, 9\ns_lshl_b32 s21, s18, 7\ns_add_u32 s20, s20, s21\nv_add_u32 v10, s20, v10')
    set_srd(A, 12, 64, 640*3456); load_weights(A, natw(0, 3456, 0) + natw(20, 3456, 64), 's[12:15]', 'v10')
    A(f's_lshl_b32 s20, s17, 2\ns_add_u32 s20, s20, s18\ns_cmp_lt_u32 s20, 27\ns_cselect_b32 s20, s20, 0x80000\ns_lshl_b32 s20, s20, 11\nv_add_u32 v8, s20, v4')
    A(f's_mov_b32 s33, {f32(-LOG2E)}')
    def body(mid):
        xn_pass(A, 4, 16, (12, mid))
        A(f's_mul_i32 s20, s16, {108*1024}\ns_add_u32 s20, s20, {OFF_H}')
        for rt in range(2):
            for m in range(2):
                b = 16 + 16*rt + 8*m
                silu(A, range(b, b + 8), range(64, 72))
                pack(A, 48 + 8*rt + 4*m, b, b + 4)
                A(f'buffer_store_dwordx4 v[{48+8*rt+4*m}:{51+8*rt+4*m}], v8, s[4:7], s20 offen offset:{m*1024} sc1')
            A(f's_add_u32 s20, s20, {54*1024}')
    xw_loop(A, P, 'L_ffn1', body, 4, FWF)
def role_vox(A, P):
    common_lane(A)
    LV = 2*XB
    A('s_mov_b32 s40, 0'); xn_dma(A, 's16')
    A('v_lshlrev_b32 v10, 16, v13\nv_lshl_add_u32 v10, v12, 2, v10\ns_lshl_b32 s20, s17, 8\ns_lshl_b32 s21, s18, 6\ns_add_u32 s20, s20, s21\nv_add_u32 v10, s20, v10')
    set_srd(A, 12, 32, 640*8192); load_weights(A, natw(0, 8192, 0), 's[12:15]', 'v10')
    A('v_mul_u32_u24 v10, 10240, v13\nv_lshl_add_u32 v10, v12, 2, v10\ns_mul_i32 s20, s17, 163840\ns_mul_i32 s21, s18, 320\ns_add_u32 s20, s20, s21\nv_add_u32 v10, s20, v10')
    g = [grp(lambda half, jp, c: 64*ks + 32*half + OFFS[jp][c], 1280, j*64, 20 + 4*j + ks, 22 + 4*j + ks) for j in range(5) for ks in range(2)]
    set_srd(A, 12, 40, 32*163840); load_weights(A, g, 's[12:15]', 'v10')
    A(f's_lshl_b32 s20, s18, 10\ns_add_u32 s20, s20, {LV}\nv_add_u32 v6, s20, v4\nv_add_u32 v7, {LV}, v4')
    def body(mid):
        xn_pass(A, 2, 16, (24, mid))
        for rt in range(2):
            pack(A, 32 + 4*rt, 16 + 8*rt, 20 + 8*rt)
            A(f'ds_write_b128 v6, v[{32+4*rt}:{35+4*rt}] offset:{rt*4096}')
        A(f's_mul_i32 s20, s16, 40\ns_mul_i32 s21, s18, 10\ns_add_u32 s20, s20, s21\ns_lshl_b32 s20, s20, 5\ns_add_u32 s20, s20, s17\ns_lshl_b32 s20, s20, 10\ns_add_u32 s20, s20, {OFF_UX}')
        A('s_waitcnt lgkmcnt(0)\ns_barrier')
        for kk in range(4):
            for rt in range(2): A(f'ds_read_b128 v[{40+16*rt+4*kk}:{43+16*rt+4*kk}], v7 offset:{rt*4096 + kk*1024}')
        def fin(t):
            a = 72 + 8*(t % 3)
            return [f'v_cvt_pk_bf16_f32 v{16+4*(t&1)+r}, v{a+r}, v{a+4+r}' for r in range(4)] + \
                   [f'buffer_store_dwordx4 v[{16+4*(t&1)}:{19+4*(t&1)}], v4, s[4:7], s20 offen sc1', 's_add_u32 s20, s20, 32768']
        for t in range(10):
            f = fin(t - 1) if t else []
            for kk in range(4):
                if t == 0: A(f's_waitcnt lgkmcnt({6-2*kk})')
                for rt in range(2):
                    a = 72 + 8*(t % 3) + 4*rt
                    A(f'{MF} v[{a}:{a+3}], v[{40+16*rt+4*kk}:{43+16*rt+4*kk}], {wreg4(20 + 2*t + (kk>>1), kk&1)}, {"0" if kk == 0 else f"v[{a}:{a+3}]"}')
                    if t and kk < 2: A('s_nop 1')
                    if f and kk >= 2:
                        A('\n'.join(f[:2])); f = f[2:]
            if f: A('\n'.join(f))
        A('\n'.join(fin(9)))
    xw_loop(A, P, 'L_vox', body, 10, FWV)
def role_fin(A, P):
    sync = P.get('SYNC')
    common_lane(A)
    A('v_mul_u32_u24 v10, 10240, v13\nv_lshl_add_u32 v10, v12, 2, v10\ns_lshl_b32 s20, s17, 6\ns_mul_i32 s21, s18, 573440\ns_add_u32 s20, s20, s21\nv_add_u32 v10, s20, v10')
    g = [grp(lambda half, jp, c: 64*ks + 32*half + OFFS[jp][c], 1280, 0, 2*ks, 2*ks + 1) for ks in range(7)]
    set_srd(A, 12, 72, 1728*1280); load_weights(A, g, 's[12:15]', 'v10')
    set_srd(A, 12, 0, 2048*1280); set_srd(A, 44, 80, 2048*1280)
    A(f's_mov_b32 s33, {f32(-LOG2E)}')
    A('v_mul_u32_u24 v8, 1280, v12\nv_lshl_add_u32 v8, v13, 4, v8\ns_lshr_b32 s20, s18, 1\ns_mul_i32 s20, s20, 20480\ns_and_b32 s21, s18, 1\ns_lshl_b32 s21, s21, 3')
    A('s_add_u32 s20, s20, s21\ns_lshl_b32 s21, s17, 6\ns_add_u32 s20, s20, s21\nv_add_u32 v8, s20, v8')
    A('s_lshl_b32 s20, s18, 12\nv_add_u32 v6, s20, v4\ns_lshr_b32 s20, s18, 1\ns_lshl_b32 s20, s20, 11\ns_and_b32 s21, s18, 1\ns_lshl_b32 s21, s21, 3\ns_add_u32 s20, s20, s21\nv_add_u32 v7, s20, v4')
    if sync:
        A(f'v_lshlrev_b32 v9, 7, v1\ns_add_u32 s20, s19, {FWV}\nv_add_u32 v14, s20, v9')
        wait_flags(A, None, None, '64', None, 15, 14)
        A(f'v_min_u32 v14, {P["NFFN"]-1}, v1\nv_lshlrev_b32 v14, 7, v14\ns_add_u32 s20, s19, {FWF}\nv_add_u32 v14, s20, v14')
        wait_flags(A, None, None, '64', None, 15, 14)
        A(f's_add_u32 s20, s19, {FCH}\nv_add_u32 v9, s20, v9')
    H = 64; UXA = 112
    def reduce(base, dst):
        for j in range(4): A(f'ds_write_b128 v6, v[{16+4*j}:{19+4*j}] offset:{base + j*1024}')
        A('s_waitcnt lgkmcnt(0)\ns_barrier')
        for w in range(4):
            for i in range(2): A(f'ds_read_b64 v[{16+4*w+2*i}:{17+4*w+2*i}], v7 offset:{base + w*4096 + i*1024}')
        A('s_waitcnt lgkmcnt(0)')
        for r in range(4): A(f'v_add_f32 v{16+r}, v{16+r}, v{20+r}\nv_add_f32 v{24+r}, v{24+r}, v{28+r}')
        for r in range(4): A(f'v_add_f32 v{dst+r}, v{16+r}, v{24+r}')
    rts(A, P, 3)
    A('L_fin_loop:')
    A(f's_mul_i32 s20, s16, {108*1024}\ns_mul_i32 s21, s18, {14*1024}\ns_add_u32 s20, s20, s21\ns_add_u32 s20, s20, {OFF_H}\ns_add_u32 s21, s20, {54*1024}')
    A(f's_cmp_eq_u32 s18, 3\ns_cselect_b32 s22, {OOB}, 0\nv_add_u32 v14, s22, v4')
    for kk in range(14):
        for rt in range(2):
            A(f'buffer_load_dwordx4 v[{H+8*kk+4*rt}:{H+3+8*kk+4*rt}], {"v14" if kk >= 12 else "v4"}, s[4:7], s{20+rt} offen offset:{(kk&3)*1024} sc1')
        if (kk & 3) == 3: A('s_add_u32 s20, s20, 4096\ns_add_u32 s21, s21, 4096')
    A(f's_mul_i32 s20, s16, 20\ns_add_u32 s20, s20, s17\ns_lshl_b32 s22, s20, 16\ns_lshl_b32 s21, s18, 13\ns_add_u32 s22, s22, s21\ns_add_u32 s22, s22, {OFF_UX}')
    for i in range(2):
        for h in range(8):
            A(f'buffer_load_dwordx4 a[{UXA+32*i+4*h}:{UXA+3+32*i+4*h}], v4, s[4:7], s22 offen offset:{(h&3)*1024} sc1')
            if h == 3: A('s_add_u32 s22, s22, 4096')
        A(f's_add_u32 s22, s22, {32768-4096}')
    A('s_mul_i32 s29, s16, 40960\nbuffer_load_dwordx2 v[40:41], v8, s[12:15], s29 offen')
    for kk in range(14):
        A(f's_waitcnt vmcnt({17 + 26 - 2*kk})')
        for rt in range(2):
            for i in range(2):
                a = 16 + 8*rt + 4*i
                A(f'{MF} v[{a}:{a+3}], {wreg4(2*(kk>>1)+i, kk&1)}, v[{H+8*kk+4*rt}:{H+3+8*kk+4*rt}], {"0" if kk == 0 else f"v[{a}:{a+3}]"}')
    reduce(0, 32)
    silu(A, range(32, 36), range(36, 40))
    A(f's_lshl_b32 s23, s20, 14\ns_lshl_b32 s21, s18, 11\ns_add_u32 s23, s23, s21\ns_add_u32 s23, s23, {OFF_UMR}\ns_add_u32 s24, s23, 8192')
    A(f's_lshl_b32 s25, s16, 14\ns_add_u32 s25, s25, s21\ns_add_u32 s25, s25, {OFF_PXM}\ns_add_u32 s26, s25, 8192')
    A(f's_lshl_b32 s27, s16, 16\ns_lshl_b32 s21, s18, 13\ns_add_u32 s27, s27, s21\ns_add_u32 s27, s27, {OFF_PXX}\ns_add_u32 s28, s27, 32768')
    if sync: wait_flags(A, None, None, 's16', None, 15, 9)
    for h in range(8):
        for qt in range(2):
            A(f'buffer_load_dwordx4 v[{H+8*h+4*qt}:{H+3+8*h+4*qt}], v4, s[4:7], s{27+qt} offen offset:{(h&3)*1024} sc1')
        if h == 3: A('s_add_u32 s27, s27, 4096\ns_add_u32 s28, s28, 4096')
    for j in range(2):
        for qt in range(2): A(f'buffer_load_dwordx4 v[{128+16*j+4*qt}:{131+16*j+4*qt}], v4, s[4:7], s{25+qt} offen offset:{j*1024} sc1')
        for i in range(2): A(f'buffer_load_dwordx4 v[{136+16*j+4*i}:{139+16*j+4*i}], v4, s[4:7], s{23+i} offen offset:{j*1024} sc1')
    for h in range(8):
        A(f's_waitcnt vmcnt({8 + 14 - 2*h})')
        for qt in range(2):
            for i in range(2):
                a = 16 + 8*qt + 4*i
                A(f'{MF} v[{a}:{a+3}], a[{UXA+32*i+4*h}:{UXA+3+32*i+4*h}], v[{H+8*h+4*qt}:{H+3+8*h+4*qt}], {"0" if h == 0 else f"v[{a}:{a+3}]"}')
    for j in range(2):
        A(f's_waitcnt vmcnt({4 - 4*j})')
        for qt in range(2):
            for i in range(2):
                a = 16 + 8*qt + 4*i
                A(f'{MF} v[{a}:{a+3}], v[{136+16*j+4*i}:{139+16*j+4*i}], v[{128+16*j+4*qt}:{131+16*j+4*qt}], v[{a}:{a+3}]')
    reduce(16384, 36)
    A('v_lshlrev_b32 v42, 16, v40\nv_lshlrev_b32 v43, 16, v41\nv_and_b32 v44, 0xffff0000, v40\nv_and_b32 v45, 0xffff0000, v41')
    for r in range(4): A(f'v_fmac_f32 v{42+r}, v{32+r}, v{36+r}')
    A('v_cvt_pk_bf16_f32 v40, v42, v44\nv_cvt_pk_bf16_f32 v41, v43, v45\nbuffer_store_dwordx2 v[40:41], v8, s[44:47], s29 offen')
    A('s_add_u32 s16, s16, s41\ns_cmp_lt_u32 s16, 64\ns_cbranch_scc1 L_fin_loop')
```

```python
import sys; sys.path.insert(0,'gen')
import build
ver, name = sys.argv[1], sys.argv[2]
P = dict(build.DEF)
for a in sys.argv[3:]:
    k, v = a.split('='); P[k] = int(v) if v.lstrip('-').isdigit() else v
txt, _ = getattr(build, ver)(P)
open(f'scratch/{name}.s', 'w').write(txt)
```

```python
import sys; sys.path.insert(0, 'gen')
from asm import Asm
from common import *
import chain, workers
NAME = 'recurrent_scan__memory_aug_recurrent_mem_tr__dense_activation_silu__prompt'
def kd(name, vgpr, acc):
    return f""".section .rodata,"a"
.p2align 6
.amdhsa_kernel {name}
  .amdhsa_next_free_vgpr {vgpr}
  .amdhsa_next_free_sgpr 102
  .amdhsa_accum_offset {acc}
  .amdhsa_group_segment_fixed_size 0
  .amdhsa_kernarg_size 104
  .amdhsa_user_sgpr_count 2
  .amdhsa_user_sgpr_kernarg_segment_ptr 1
  .amdhsa_system_sgpr_workgroup_id_x 1
.end_amdhsa_kernel
"""
def header():
    ref = open(f'cdna_kernels/{NAME}.s.ref').read().split('\n')
    return '\n'.join(l for l in ref if l.startswith(';') and '@launch' not in l) + '\n'
def chain_dispatch(A, P):
    A('s_and_b32 s20, s2, 7\ns_lshr_b32 s21, s2, 3\ns_cmp_lt_u32 s20, 4\ns_cbranch_scc0 L_notchain')
    A('s_and_b32 s17, s21, 7\ns_lshl_b32 s17, s17, 2\ns_add_u32 s17, s17, s20')
    A('s_cmp_lt_u32 s21, 8\ns_cbranch_scc1 L_qk_j\ns_cmp_lt_u32 s21, 16\ns_cbranch_scc1 L_vo_j')
    A('s_sub_u32 s17, s21, 16\ns_lshl_b32 s17, s17, 2\ns_add_u32 s17, s17, s20\ns_cmp_lt_u32 s21, 26\ns_cbranch_scc1 L_own_j')
    A('s_branch L_notchain')
    A('L_qk_j:\ns_branch L_qk\nL_vo_j:\ns_branch L_vo\nL_own_j:\ns_branch L_own')
    A('L_notchain:')
def v1(P):
    A = Asm()
    launches = [('init_kernel', 256, 1024), ('xw_kernel', 256, 90112), (NAME + '_kernel', 256, 32768), ('fin_kernel', 240, 32768)]
    workers.init_kernel(A, P, 'init_kernel')
    prologue(A, 'xw_kernel', P=P)
    A('s_mov_b32 s41, 2\ns_and_b32 s42, s2, 63\ns_and_b32 s17, s2, 31\ns_lshr_b32 s16, s42, 5\ns_lshl_b32 s42, s17, 1\ns_add_u32 s42, s42, s16')
    A('s_cmp_lt_u32 s2, 64\ns_cbranch_scc1 L_x_qkx\ns_cmp_lt_u32 s2, 128\ns_cbranch_scc1 L_x_vox_j\ns_cmp_lt_u32 s2, 240\ns_cbranch_scc1 L_x_ffn_j\ns_endpgm')
    A('L_x_vox_j:\ns_branch L_x_vox\nL_x_ffn_j:\ns_branch L_x_ffn')
    A('L_x_qkx:'); workers.role_qkx(A, P); A('s_endpgm')
    A('L_x_vox:'); workers.role_vox(A, P); A('s_endpgm')
    A('L_x_ffn:\ns_sub_u32 s42, s2, 128\ns_lshr_b32 s17, s42, 4\ns_and_b32 s16, s42, 15\ns_mov_b32 s41, 16\ns_and_b32 s42, s42, 63')
    workers.role_ffn1(A, P); A('s_endpgm')
    prologue(A, NAME + '_kernel', P=P)
    chain_dispatch(A, P); A('s_endpgm')
    A('L_qk:'); chain.role_qk(A, P)
    A('L_vo:'); chain.role_vo(A, P)
    A('L_own:'); chain.role_own(A, P)
    prologue(A, 'fin_kernel', P=P)
    A('s_cmp_lt_u32 s2, 240\ns_cbranch_scc1 L_f_go\ns_endpgm\nL_f_go:')
    A('s_mul_i32 s16, s2, 3277\ns_lshr_b32 s16, s16, 16\ns_mul_i32 s20, s16, 20\ns_sub_u32 s17, s2, s20\ns_mov_b32 s41, 12')
    workers.role_fin(A, P); A('s_endpgm')
    txt = header() + ''.join(f'; @launch kernel={k} grid=({g},1,1) block=(256,1,1) lds={l}\n' for k, g, l in launches)
    txt += '.amdgcn_target "amdgcn-amd-amdhsa--gfx950"\n.text\n' + A.text()
    txt += kd('init_kernel', 128, 128) + kd('xw_kernel', 512, 256) + kd(NAME + '_kernel', 512, 256) + kd('fin_kernel', 512, 256)
    return txt, launches
def main_body(A, P):
    rts(A, P, 0)
    chain_dispatch(A, P)
    A('s_cmp_lt_u32 s21, 32\ns_cbranch_scc0 L_exit\ns_cmp_lt_u32 s20, 4\ns_cbranch_scc0 L_far')
    if P.get('FFN', 'near') == 'near':
        A('s_sub_u32 s42, s21, 26\ns_lshl_b32 s42, s42, 2\ns_add_u32 s42, s42, s20\ns_cmp_lt_u32 s42, 21\ns_cbranch_scc0 L_exit')
        A('s_mul_i32 s16, s42, 37\ns_lshr_b32 s16, s16, 8\ns_mul_i32 s20, s16, 7\ns_sub_u32 s17, s42, s20\ns_mov_b32 s41, 3\ns_branch L_x_ffn')
    A('L_exit:\ns_endpgm')
    A('L_far:')
    A('s_and_b32 s20, s20, 3\ns_lshr_b32 s17, s21, 1\ns_and_b32 s17, s17, 7\ns_lshl_b32 s17, s17, 2\ns_add_u32 s17, s17, s20\ns_and_b32 s16, s21, 1')
    A('s_lshl_b32 s42, s17, 1\ns_add_u32 s42, s42, s16\ns_mov_b32 s41, 2')
    if P.get('NB'): A('s_mul_i32 s41, s16, 63\ns_add_u32 s41, s41, 1')
    A('s_cmp_lt_u32 s21, 16\ns_cbranch_scc0 L_x_vox')
    workers.role_qkx(A, P); A('s_branch L_x_done')
    A('L_x_vox:'); workers.role_vox(A, P)
    A('L_x_done:')
    rts(A, P, 2)
    if P.get('NB'):
        A('s_lshr_b32 s21, s2, 4\ns_mul_i32 s16, s21, 52\ns_lshr_b32 s16, s16, 8\ns_mul_i32 s20, s16, 5\ns_sub_u32 s17, s21, s20\ns_and_b32 s20, s2, 3\ns_mul_i32 s20, s20, 5\ns_add_u32 s17, s17, s20')
        A('s_mov_b32 s41, 3\ns_bitcmp1_b32 s2, 3\ns_cselect_b32 s21, s21, 15\ns_cmp_lt_u32 s21, 15\ns_cbranch_scc1 L_x_fin\ns_endpgm\nL_x_fin:')
    elif P.get('FIN', 6) == 4: A('s_lshr_b32 s17, s2, 3\ns_and_b32 s16, s2, 3\ns_mov_b32 s41, 4\ns_cmp_lt_u32 s17, 20\ns_cbranch_scc1 L_x_fin\ns_endpgm\nL_x_fin:')
    else:
        A('s_lshr_b32 s21, s2, 3\ns_mul_i32 s16, s21, 52\ns_lshr_b32 s16, s16, 8\ns_mul_i32 s20, s16, 5\ns_sub_u32 s17, s21, s20\ns_and_b32 s20, s2, 3\ns_mul_i32 s20, s20, 5\ns_add_u32 s17, s17, s20')
        A('s_mov_b32 s41, 6\ns_cmp_lt_u32 s21, 30\ns_cbranch_scc1 L_x_fin\ns_endpgm\nL_x_fin:')
    workers.role_fin(A, P); rts(A, P, 4); A('s_endpgm')
    A('L_x_ffn:'); workers.role_ffn1(A, P); rts(A, P, 2); A('s_endpgm')
    A('L_qk:'); chain.role_qk(A, P)
    A('L_vo:'); chain.role_vo(A, P)
    A('L_own:'); chain.role_own(A, P)
def v2(P):
    P = dict(P, SYNC=1, NFFN=21)
    A = Asm()
    launches = [('init_kernel', 256, 1024), (NAME + '_kernel', 256, 90112)]
    workers.init_kernel(A, P, 'init_kernel')
    prologue(A, NAME + '_kernel', P=P)
    main_body(A, P)
    txt = header() + ''.join(f'; @launch kernel={k} grid=({g},1,1) block=(256,1,1) lds={l}\n' for k, g, l in launches)
    txt += '.amdgcn_target "amdgcn-amd-amdhsa--gfx950"\n.text\n' + A.text()
    txt += kd('init_kernel', 128, 128) + kd(NAME + '_kernel', 512, 256)
    return txt, launches
DEF = dict(FQ=21, FO=17, KQ=1, KO=1)
if __name__ == '__main__':
    txt, _ = globals()[sys.argv[1] if len(sys.argv) > 1 else 'v2'](DEF)
    open(f'cdna_kernels/{NAME}.s', 'w').write(txt)
    print(len(txt), 'bytes', txt.count('\n'), 'lines')
```

```python
from common import *
SM = 'v_smfmac_f32_16x16x64_bf16'
MF = 'v_mfma_f32_16x16x32_bf16'
L_MEM, L_Q, L_K, L_KX, L_QX = 0, 10240, 13312, 16384, 24576
AR = 100
DPP = 'row_mask:0xf bank_mask:0xf'
def memw(opbase):
    return [grp(lambda half, jp, c: 64*ks + half + 2*OFFS[jp][c], 8192, 0, opbase + 2*ks, opbase + 2*ks + 1) for ks in range(10)]
def chain_lane(A):
    common_lane(A)
    A('v_and_b32 v3, 2, v1\nv_cmp_eq_u32 vcc, 0, v3\nv_mov_b32 v3, 0xeeee\nv_mov_b32 v5, 0x4444\nv_cndmask_b32 v3, v3, v5, vcc')
    A('v_lshrrev_b32 v2, 1, v13\nv_lshlrev_b32 v2, 8, v2\nv_and_b32 v14, 3, v12\nv_lshl_add_u32 v2, v14, 6, v2\nv_and_b32 v14, 1, v13\nv_lshl_add_u32 v2, v14, 5, v2\nv_lshrrev_b32 v14, 2, v12\nv_lshl_add_u32 v2, v14, 3, v2')
    A('v_and_b32 v14, 1, v13\nv_lshlrev_b32 v14, 18, v14\nv_lshrrev_b32 v15, 1, v13\nv_lshlrev_b32 v15, 17, v15')
    A('v_add_u32 v14, v14, v15\nv_lshl_add_u32 v14, v12, 2, v14')
    A('s_lshl_b32 s20, s17, 8\ns_lshl_b32 s21, s18, 6\ns_add_u32 s20, s20, s21\nv_add_u32 v10, s20, v14')
    A(f's_mul_i32 s20, s18, 768\ns_add_u32 s20, s20, {L_Q}\nv_mul_u32_u24 v5, 192, v13\nv_lshl_add_u32 v5, v12, 3, v5\nv_add_u32 v5, s20, v5')
def q_raddr(A):
    A('v_and_b32 v14, 3, v1\nv_mul_u32_u24 v176, 192, v14\nv_lshrrev_b32 v14, 2, v1\nv_lshl_add_u32 v176, v14, 3, v176')
def dma_mem(A, P):
    A('s_mov_b32 m0, 0\ns_add_u32 s20, s22, 4096')
    for c in range(4): A(f'buffer_load_dwordx4 v4, s[8:11], s22 offen offset:{c*1024} sc1 lds')
    A('s_mov_b32 m0, 4096')
    for c in range(4): A(f'buffer_load_dwordx4 v4, s[8:11], s20 offen offset:{c*1024} sc1 lds')
    A('s_mov_b32 m0, 8192')
    for c in range(2): A(f'buffer_load_dwordx4 v4, s[8:11], s23 offen offset:{c*1024} sc1 lds')
def mem_slot(A, P):
    A(f's_and_b32 s20, s16, 3\ns_lshl_b32 s22, s20, 14\ns_add_u32 s22, s22, s19\ns_lshl_b32 s23, s20, 11\ns_add_u32 s23, s23, s19\ns_add_u32 s23, s23, {4*MBLK}')
def trread(A, k): A(f'ds_read_b64_tr_b16 v[{AR+2*k}:{AR+2*k+1}], v2 offset:{L_MEM + k*512}')
def first_pass(A, P, acc0, acc1, opbase, fill=None):
    pg = P.get('PG', 3)
    A(f's_waitcnt vmcnt({10 - pg if pg else 0})\ns_barrier')
    stamp(A, P, 1)
    n0 = 2*pg if pg else 6
    for k in range(n0): trread(A, k)
    issued = n0
    for ks in range(10):
        A(f's_waitcnt lgkmcnt({issued - 2*(ks+1)})')
        A(f'{SM} v[{acc0}:{acc0+3}], v[{AR+4*ks}:{AR+4*ks+3}], {wreg(opbase+2*ks)}, v3')
        if ks == 0 and pg: A('s_waitcnt vmcnt(0)\ns_barrier')
        if issued < 20: trread(A, issued); trread(A, issued + 1); issued += 2
        A(f'{SM} v[{acc1}:{acc1+3}], v[{AR+4*ks}:{AR+4*ks+3}], {wreg(opbase+2*ks+1)}, v3')
        if fill and ks in fill: A(fill[ks])
def slow_check(A, lab_slow, lab_back, lab_retry, lab_fail):
    A(f'{lab_slow}:')
    A(f'v_pk_max_u16 v140, v{AR}, v{AR+1}')
    for k in range(2, 40): A(f'v_pk_max_u16 v140, v140, v{AR+k}')
    A('v_lshrrev_b32 v141, 16, v140\nv_max_u16 v140, v140, v141\nv_and_b32 v140, 0xffff, v140\nv_cmp_eq_u32 vcc, 0xffff, v140')
    A(f's_cbranch_vccz {lab_back}')
    A(f's_add_u32 s24, s24, 1\ns_cmp_gt_u32 s24, 200000\ns_cbranch_scc1 {lab_fail}')
    A(f's_waitcnt lgkmcnt(0)\ns_barrier\ns_branch {lab_retry}')
def stats(A, P):
    rts(A, P, 2)
    if P.get('DBG'):
        A(f's_lshl_b32 s20, s2, 4\ns_add_u32 s20, s20, {OFF_REC + 2*MB}\nv_mov_b32 v20, s24\nv_mov_b32 v21, s16\nv_mov_b32 v22, s26\nv_mov_b32 v23, s27\nv_mov_b32 v24, 0')
        A('buffer_store_dwordx4 v[20:23], v24, s[4:7], s20 offen')
    A('s_endpgm')
def lane0_addr(A, dst, cond):
    A(f'{cond}\ns_cselect_b32 s20, s20, {OOB}\nv_mov_b32 {dst}, s20\nv_cmp_eq_u32 vcc, 0, v1\nv_mov_b32 v15, {OOB}\nv_cndmask_b32 {dst}, v15, {dst}, vcc')
FS = 1280
def flag_cons_addr(A, dst, base, P):
    nc = P.get('NC', 4)
    A(f's_and_b32 s20, s2, {nc-1}\ns_mul_i32 s20, s20, {FS}\ns_add_u32 s20, s20, s19\ns_add_u32 s20, s20, {base}\nv_mov_b32 {dst}, s20')
def flag_prod_addr(A, dst, base, P, cond):
    nc = P.get('NC', 4)
    A(f's_add_u32 s20, s19, {base}\n{cond}\ns_cselect_b32 s20, s20, {OOB}\nv_mul_u32_u24 {dst}, {FS}, v1\nv_add_u32 {dst}, s20, {dst}\nv_cmp_gt_u32 vcc, {nc}, v1\nv_mov_b32 v15, {OOB}\nv_cndmask_b32 {dst}, v15, {dst}, vcc')
def poll(A, P, addr, sval, r0):
    N = P.get('NP', 4); l = A.lab('poll')
    A('s_mov_b32 s21, 0')
    for i in range(N):
        A(f'buffer_load_dword v{r0+i}, {addr}, s[8:11], 0 offen sc1')
        if i < N-1: A('s_sleep 1')
    A(f'{l}:')
    for i in range(N):
        A(f's_waitcnt vmcnt({N-1})\nv_cmp_gt_i32 vcc, {sval}, v{r0+i}\ns_cbranch_vccz {l}_got')
        A(f'buffer_load_dword v{r0+i}, {addr}, s[8:11], 0 offen sc1')
    A(f's_add_u32 s21, s21, 1\ns_cmp_lt_u32 s21, 100000\ns_cbranch_scc1 {l}\ns_mov_b32 s24, 0x7000000\n{l}_got:')
def stamp(A, P, k):
    if P.get('TS'): A(f'{"s_memrealtime" if P["TS"] == 3 else "s_memtime"} s[{80+2*k}:{81+2*k}]')
def stamp_out(A, P, vt):
    if not P.get('TS'): return
    A(f's_waitcnt lgkmcnt(0)\ns_lshl_b32 s20, s2, 2\ns_add_u32 s20, s20, s18\ns_lshl_b32 s20, s20, 7\ns_add_u32 s20, s20, s16\ns_lshl_b32 s20, s20, 5\ns_add_u32 s20, s20, {OFF_TS}')
    for k in range(8): A(f'v_mov_b32 v{vt+k}, s{80+2*k}')
    A(f'v_mov_b32 v{vt+8}, 0\nbuffer_store_dwordx4 v[{vt}:{vt+3}], v{vt+8}, s[4:7], s20 offen\nbuffer_store_dwordx4 v[{vt+4}:{vt+7}], v{vt+8}, s[4:7], s20 offen offset:16')
def cached_wait(A, P, addr, tmp, need, cache):
    if not P.get('SYNC'): return
    l = A.lab('cw')
    A(f's_cmp_ge_i32 {cache}, {need}\ns_cbranch_scc1 {l}_ok\ns_mov_b32 s21, 0\n{l}:')
    A(f'buffer_load_dword v{tmp}, {addr}, s[8:11], 0 offen sc1\ns_add_u32 s20, {need}, 6\ns_waitcnt vmcnt(0)')
    A(f'v_cmp_gt_i32 vcc, s20, v{tmp}\ns_mov_b32 {cache}, s20\ns_cbranch_vccz {l}_ok')
    A(f'v_cmp_gt_i32 vcc, {need}, v{tmp}\ns_mov_b32 {cache}, {need}\ns_cbranch_vccz {l}_ok')
    A(f's_sleep 2\ns_add_u32 s21, s21, 1\ns_cmp_lt_u32 s21, 200000\ns_cbranch_scc1 {l}\n{l}_ok:')
def role_qk(A, P):
    chain_lane(A)
    set_srd(A, 12, 16, 640*8192); load_weights(A, memw(0), 's[12:15]', 'v10')
    set_srd(A, 12, 24, 640*8192); load_weights(A, memw(20), 's[12:15]', 'v10')
    q_raddr(A)
    A(f's_mul_i32 s20, s18, 576\ns_add_u32 s20, s20, {L_K}\nv_lshlrev_b32 v6, 4, v12\nv_and_b32 v14, 1, v13\nv_lshl_add_u32 v6, v14, 3, v6\nv_lshrrev_b32 v14, 1, v13\nv_lshl_add_u32 v6, v14, 2, v6\nv_add_u32 v6, s20, v6')
    A(f'v_and_b32 v14, 1, v13\nv_mul_u32_u24 v7, 576, v14\nv_lshrrev_b32 v14, 3, v12\nv_mul_u32_u24 v14, 288, v14\nv_add_u32 v7, v7, v14')
    A(f'v_lshrrev_b32 v14, 1, v13\nv_lshl_add_u32 v7, v14, 6, v7\nv_bfe_u32 v14, v12, 2, 1\nv_lshl_add_u32 v7, v14, 4, v7\nv_and_b32 v14, 1, v12\nv_lshl_add_u32 v7, v14, 3, v7\nv_add_u32 v7, {L_K}, v7')
    A('v_lshrrev_b32 v8, 3, v12\nv_lshlrev_b32 v8, 8, v8\nv_lshl_add_u32 v8, v13, 5, v8\nv_and_b32 v15, 7, v12\nv_lshl_add_u32 v8, v15, 2, v8')
    A('s_lshr_b32 s20, s17, 4\ns_lshl_b32 s20, s20, 14\ns_and_b32 s21, s17, 15\ns_lshl_b32 s21, s21, 9\ns_add_u32 s20, s20, s21\ns_lshl_b32 s21, s18, 7\ns_add_u32 s20, s20, s21\nv_add_u32 v8, s20, v8')
    A('v_lshlrev_b32 v9, 5, v13\nv_lshrrev_b32 v14, 2, v12\nv_lshl_add_u32 v9, v14, 4, v9\nv_and_b32 v14, 2, v12\nv_lshl_add_u32 v9, v14, 1, v9')
    A('s_lshr_b32 s20, s17, 1\ns_lshl_b32 s20, s20, 8\ns_lshl_b32 s21, s18, 7\ns_add_u32 s20, s20, s21\ns_and_b32 s21, s17, 1\ns_lshl_b32 s21, s21, 3\ns_add_u32 s20, s20, s21\nv_add_u32 v9, s20, v9')
    A(f'v_and_b32 v15, 9, v12\nv_cmp_eq_u32 vcc, 0, v15\nv_mov_b32 v15, {OOB}\nv_cndmask_b32 v9, v15, v9, vcc')
    A('v_and_b32 v10, 8, v12\nv_and_b32 v14, 3, v12\nv_lshl_add_u32 v10, v14, 1, v10\nv_bfe_u32 v14, v12, 2, 1\nv_add_u32 v10, v10, v14\nv_lshlrev_b32 v10, 4, v10\nv_lshl_add_u32 v10, v13, 8, v10')
    A('s_cmp_lt_u32 s18, 2\ns_cbranch_scc1 L_qk_i0\nv_mov_b32 v10, v4\nL_qk_i0:')
    A(f's_and_b32 s20, s18, 1\ns_lshl_b32 s20, s20, 12\nv_add_u32 v177, s20, v4')
    A('s_and_b32 s20, s18, 1\ns_lshl_b32 s20, s20, 4\nv_add_u32 v14, s20, v12\nv_lshlrev_b32 v15, 2, v13\nv_sub_u32 v14, v14, v15')
    for rt in range(2):
        for r in range(4): A(f'v_cmp_le_i32 s[{64+8*rt+2*r}:{65+8*rt+2*r}], {16*rt+r}, v14')
    A(f'v_mov_b32 v178, {f32(-1e9*LOG2E)}')
    A(f'v_cmp_gt_u32 vcc, 16, v1\nv_mov_b32 v15, {OOB}\nv_cndmask_b32 v179, v15, v4, vcc')
    A(f's_and_b32 s20, s18, 1\ns_lshl_b32 s37, s20, 14\ns_lshl_b32 s36, s20, 16\ns_lshl_b32 s20, s17, 8\ns_add_u32 s37, s37, s20\ns_add_u32 s37, s37, {OFF_SEG + C_PXM}')
    A(f's_lshr_b32 s20, s17, 3\ns_lshl_b32 s20, s20, 14\ns_add_u32 s36, s36, s20\ns_and_b32 s20, s17, 7\ns_lshl_b32 s20, s20, 10\ns_add_u32 s36, s36, s20\ns_add_u32 s36, s36, {OFF_SEG + C_PXX}')
    A(f's_mov_b32 s33, {f32(CSC)}')
    A(f's_lshl_b32 s25, s17, 15\ns_add_u32 s25, s25, {kq_place(P)[0]}')
    A('s_mov_b32 s16, 0\ns_mov_b32 s24, 0\ns_mov_b32 s26, 0\ns_mov_b32 s27, 0\ns_mov_b32 s38, -1\ns_mov_b32 s39, -1')
    flag_prod_addr(A, 'v142', FQ, P, f's_lshl_b32 s21, s17, 2\ns_add_u32 s21, s21, s18\ns_cmp_eq_u32 s21, {4*P.get("MQ", 0) + 3}')
    flag_cons_addr(A, 'v143', FO, P)
    A(f's_lshl_b32 s20, s17, 7\ns_add_u32 s20, s20, {FCH}\ns_add_u32 s20, s20, s19')
    lane0_addr(A, 'v180', 's_cmp_eq_u32 s18, 3')
    A(f's_lshl_b32 s20, s17, 8\ns_add_u32 s20, s20, {FWK}\ns_add_u32 s20, s20, s19\nv_and_b32 v181, 1, v1\nv_lshlrev_b32 v181, 7, v181\nv_add_u32 v181, s20, v181')
    A(f's_lshl_b32 s20, s18, 12\ns_add_u32 s25, s25, s20\ns_add_u32 s40, s20, {L_KX}\ns_and_b32 s20, s20, 0x2000\ns_add_u32 s25, s25, s20')
    def kq_wait(need):
        if P.get('SYNC'):
            min_wait(A, 'v181', 144, need, 's38')
    def kq(j): A(f'buffer_load_dwordx4 v4, s[4:7], s42 offen offset:{j*1024} sc1 lds')
    kqinc = f's_add_u32 s25, s25, {0 if P.get("FAKE", 0) & 1 else MB}'
    rts(A, P, 1)
    kq_wait('s16')
    A('s_mov_b32 m0, s40')
    side(A, 's42', 's25', kq_place(P)[1])
    for j in range(4): kq(j)
    A('L_qk_next:')
    A(f's_add_u32 s21, s16, 1\ns_and_b32 s21, s21, {0 if P.get("FAKE", 0) & 1 else rm(P)}\ns_lshl_b32 s21, s21, 20\ns_add_u32 s42, s25, s21')
    side(A, 's42', 's42', kq_place(P)[1])
    A(f's_and_b32 s21, s16, {rm(P)}\ns_lshl_b32 s21, s21, 20\ns_add_u32 s43, s36, s21\ns_add_u32 s44, s37, s21')
    side(A, 's43', 's43', 's34'); A('s_or_b32 s44, s44, s20')
    if P.get('SYNC'):
        A('s_cmp_eq_u32 s18, 3\ns_cbranch_scc0 L_qk_nokq\ns_add_u32 s41, s16, 1')
        kq_wait('s41')
        A('L_qk_nokq:')
    stamp_out(A, P, 150)
    A('s_waitcnt vmcnt(0)\ns_barrier')
    for j in range(8): A(f'ds_read_b128 v[{68+4*j}:{71+4*j}], v10 offset:{L_KX + j*1024}')
    for j in range(4): A(f'ds_read_b128 v[{160+4*j}:{163+4*j}], v177 offset:{L_QX + j*1024}')
    A('v_mov_b32 v149, s16\ns_waitcnt lgkmcnt(0)')
    A('s_cmp_eq_u32 s18, 2\ns_cbranch_scc0 L_qk_nodma')
    mem_slot(A, P)
    A('s_sub_u32 s35, s16, 1')
    poll(A, P, 'v143', 's35', 182)
    delay(A, P.get('DF', 0))
    if P.get('TS') == 3: stamp(A, P, 4)
    A('s_branch L_qk_dma')
    A('L_qk_retry:')
    A('s_cmp_eq_u32 s18, 2\ns_cbranch_scc0 L_qk_nodma')
    A('L_qk_dma:')
    dma_mem(A, P)
    stamp(A, P, 0)
    A('L_qk_nodma:')
    for r in range(16, 44): A(f'v_mov_b32 v{r}, 0')
    A(f's_and_b32 s20, s16, 3\ns_lshl_b32 s28, s20, 15\ns_add_u32 s28, s28, s19\ns_add_u32 s28, s28, {8*MBLK}')
    A(f's_lshr_b32 s21, s20, 1\ns_lshl_b32 s21, s21, 14\ns_and_b32 s20, s20, 1\ns_lshl_b32 s20, s20, 12\ns_add_u32 s29, s20, s21\ns_add_u32 s29, s29, s19\ns_add_u32 s29, s29, {5*MBLK}')
    first_pass(A, P, 16, 20, 0)
    def k(i, ks):
        if P['FQ'] == 10*i + ks: A('buffer_store_dword v149, v142, s[8:11], 0 offen sc1')
        A(f'{SM} v[{24+4*i}:{27+4*i}], v[{AR+4*ks}:{AR+4*ks+3}], {wreg(20+2*ks+i)}, v3')
    if P.get('TS') == 2: stamp(A, P, 4)
    k(0, 0); A('s_nop 2'); k(0, 1); A('s_nop 1')
    A('v_add_f32 v16, v16, v18'); k(0, 2)
    A('v_add_f32 v17, v17, v19\nv_add_f32 v20, v20, v22\nv_cmp_u_f32 vcc, v16, v17'); k(0, 3)
    A('v_add_f32 v21, v21, v23\ns_cbranch_vccnz L_qk_slow\nL_qk_back:')
    A('v_mul_f32 v16, s33, v16'); k(0, 4)
    A('v_mul_f32 v17, s33, v17\nv_mul_f32 v20, s33, v20\nv_mul_f32 v21, s33, v21'); k(0, 5)
    A('v_cvt_pk_bf16_f32 v16, v16, v17\nv_cvt_pk_bf16_f32 v17, v20, v21\nds_write_b64 v5, v[16:17]'); k(0, 6)
    A('s_mov_b32 m0, s40'); k(0, 7); kq(0); k(0, 8); k(0, 9); k(1, 0); k(1, 1); kq(1); k(1, 2)
    A('s_waitcnt lgkmcnt(0)\ns_barrier')
    if P.get('TS') == 2: stamp(A, P, 5)
    k(1, 3)
    for j in range(2): A(f'ds_read_b64_tr_b16 v[{60+2*j}:{61+2*j}], v176 offset:{L_Q + j*768}')
    k(1, 4)
    for j in range(2, 4): A(f'ds_read_b64_tr_b16 v[{60+2*j}:{61+2*j}], v176 offset:{L_Q + j*768}')
    kq(2); k(1, 5)
    A('v_add_f32 v24, v24, v26\nv_add_f32 v25, v25, v27\nv_cvt_pk_bf16_f32 v24, v24, v25'); k(1, 6)
    A('ds_write_b32 v6, v24'); k(1, 7); k(1, 8); kq(3); k(1, 9)
    if P['FQ'] == 20: A('buffer_store_dword v149, v142, s[8:11], 0 offen sc1')
    A('s_waitcnt lgkmcnt(1)')
    if P.get('TS') == 2: stamp(A, P, 6)
    A(f'{SM} v[32:35], v[60:63], v[68:75], v3\ns_add_u32 s16, s16, 1\ns_cmp_lt_u32 s18, 2\ns_nop 0')
    A(f'{SM} v[36:39], v[60:63], v[84:91], v3\ns_nop 1')
    A('v_add_f32 v28, v28, v30\nv_add_f32 v29, v29, v31')
    A(f'{SM} v[32:35], v[64:67], v[76:83], v3')
    A('v_cvt_pk_bf16_f32 v25, v28, v29\nds_write_b32 v6, v25 offset:288')
    A(f'{SM} v[36:39], v[64:67], v[92:99], v3')
    A('s_waitcnt lgkmcnt(0)\ns_barrier')
    stamp(A, P, 2)
    A('s_cbranch_scc0 L_qk_xa')
    def kmr():
        for ks in range(2):
            for half in range(2):
                for rd in range(2):
                    r = 44 + 8*ks + 4*half + 2*rd
                    A(f'ds_read_b64_tr_b16 v[{r}:{r+1}], v7 offset:{ks*1152 + half*128 + rd*32}')
    kmr()
    A('s_cmp_eq_u32 s18, 0\ns_cbranch_scc0 L_qk_u1')
    for u in range(2):
        if u: A('L_qk_u1:')
        A(f'v_add_f32 v32, v{32+u}, v{34+u}\nv_add_f32 v36, v{36+u}, v{38+u}\nv_max_f32 v33, v32, v36')
        A('s_waitcnt lgkmcnt(4)')
        A(f'{SM} v[40:43], v[60:63], v[44:51], v3')
        A('s_waitcnt lgkmcnt(0)')
        A(f'{SM} v[40:43], v[64:67], v[52:59], v3')
        if P.get('TS') == 2: stamp(A, P, 7)
        A(f'v_max_f32_dpp v33, v33, v33 row_ror:8 {DPP}')
        A(f'v_add_f32 v40, v{40+u}, v{42+u}')
        A('v_max_f32 v33, v33, v40')
        for r in (4, 2, 1): A(f'v_max_f32_dpp v33, v33, v33 row_ror:{r} {DPP}')
        A('v_sub_f32 v32, v32, v33\nv_sub_f32 v36, v36, v33\nv_sub_f32 v40, v40, v33')
        A('v_exp_f32 v32, v32\nv_exp_f32 v36, v36\nv_exp_f32 v40, v40')
        A('v_add_f32 v33, v32, v36\nv_fma_f32 v33, v40, 0.5, v33')
        A(f'v_mov_b32_dpp v41, v40 quad_perm:[1,0,3,2] {DPP}')
        for r in (8, 4, 2, 1): A(f'v_add_f32_dpp v33, v33, v33 row_ror:{r} {DPP}')
        A('v_rcp_f32 v33, v33')
        A('v_mul_f32 v32, v32, v33\nv_mul_f32 v36, v36, v33')
        A('v_cvt_pk_bf16_f32 v32, v32, v36\nbuffer_store_dword v32, v8, s[8:11], s28 offen sc1')
        A('v_mul_f32 v40, v40, v33\nv_mul_f32 v41, v41, v33')
        A('v_cvt_pk_bf16_f32 v40, v40, v41\nbuffer_store_dword v40, v9, s[8:11], s29 offen sc1')
        if u == 0: A('s_branch L_qk_sm')
    A('L_qk_sm:')
    stamp(A, P, 3)
    A(f's_xor_b32 s28, s28, {4*MBLK}\ns_xor_b32 s29, s29, {3*MBLK}')
    A('buffer_store_dword v11, v8, s[8:11], s28 offen sc1\nbuffer_store_dword v11, v9, s[8:11], s29 offen sc1')
    A('s_cmp_lt_u32 s16, 64\ns_cbranch_scc1 L_qk_next\ns_branch L_qk_fin')
    A('L_qk_xa:')
    if P['FQ'] > 20: delay(A, (P['FQ'] - 21) * 16); A('buffer_store_dword v149, v142, s[8:11], 0 offen sc1')
    A('s_nop 7')
    for j in range(4):
        for rt in range(2): A(f'{MF} v[{32+4*rt}:{35+4*rt}], v[{68+16*rt+4*j}:{71+16*rt+4*j}], v[{160+4*j}:{163+4*j}], {"0" if j == 0 else f"v[{32+4*rt}:{35+4*rt}]"}')
    kmr()
    A('s_waitcnt lgkmcnt(0)')
    for j in range(4): A(f'{MF} v[40:43], v[{44+4*j}:{47+4*j}], v[{160+4*j}:{163+4*j}], {"0" if j == 0 else "v[40:43]"}')
    for r in range(8): A(f'v_cndmask_b32 v{32+r}, v178, v{32+r}, s[{64+2*r}:{65+2*r}]')
    A('v_max3_f32 v16, v32, v33, v34\nv_max3_f32 v17, v35, v36, v37\nv_max3_f32 v16, v16, v38, v39\nv_max3_f32 v17, v17, v40, v41\nv_max3_f32 v16, v16, v42, v43\nv_max_f32 v16, v16, v17')
    def xred(op):
        A(f'v_mov_b32 v17, v16\nv_permlane32_swap_b32 v16, v17\n{op} v16, v16, v17\nv_mov_b32 v17, v16\nv_permlane16_swap_b32 v16, v17\n{op} v16, v16, v17')
    xred('v_max_f32')
    for r in range(32, 44): A(f'v_sub_f32 v{r}, v{r}, v16')
    for r in range(32, 44): A(f'v_exp_f32 v{r}, v{r}')
    A('v_add_f32 v17, v40, v41\nv_add_f32 v18, v42, v43\nv_add_f32 v16, v32, v33\nv_add_f32 v17, v17, v18')
    for r in range(34, 40): A(f'v_add_f32 v16, v16, v{r}')
    A('v_fma_f32 v16, v17, 0.5, v16')
    xred('v_add_f32')
    A('v_rcp_f32 v16, v16')
    for r in range(32, 44): A(f'v_mul_f32 v{r}, v{r}, v16')
    for r in range(4): A(f'v_cvt_pk_bf16_f32 v{20+r}, v{32+r}, v{36+r}')
    A('v_cvt_pk_bf16_f32 v24, v40, v41\nv_cvt_pk_bf16_f32 v26, v42, v43\nv_cvt_pk_bf16_f32 v25, v40, v41\nv_cvt_pk_bf16_f32 v27, v42, v43')
    A('v_permlane16_swap_b32 v24, v25\nv_permlane16_swap_b32 v26, v27')
    if not P.get('FAKE', 0) & 2: A('buffer_store_dwordx4 v[20:23], v4, s[4:7], s43 offen sc1\nbuffer_store_dwordx4 v[24:27], v179, s[4:7], s44 offen sc1')
    A('s_cmp_lt_u32 s16, 64\ns_cbranch_scc1 L_qk_next')
    A('L_qk_fin:\ns_waitcnt vmcnt(0)\ns_barrier\nbuffer_store_dword v149, v180, s[8:11], 0 offen sc1\ns_branch L_qk_end')
    slow_check(A, 'L_qk_slow', 'L_qk_back', 'L_qk_retry', 'L_qk_end')
    A('L_qk_end:')
    stats(A, P)
def role_vo(A, P):
    chain_lane(A)
    set_srd(A, 12, 32, 640*8192); load_weights(A, memw(0), 's[12:15]', 'v10')
    A('v_and_b32 v14, 1, v13\nv_mul_u32_u24 v10, 40960, v14\nv_lshrrev_b32 v14, 1, v13\nv_mul_u32_u24 v14, 10240, v14\nv_add_u32 v10, v10, v14\nv_lshl_add_u32 v10, v12, 2, v10')
    A('s_mul_i32 s20, s17, 163840\ns_mul_i32 s21, s18, 320\ns_add_u32 s20, s20, s21\nv_add_u32 v10, s20, v10')
    g = [grp(lambda half, jp, c: 64*ks + 16*half + OFFS[jp][c], 1280, j*64, 20 + 4*j + ks, 22 + 4*j + ks) for j in range(5) for ks in range(2)]
    set_srd(A, 12, 40, 32*163840); load_weights(A, g, 's[12:15]', 'v10')
    q_raddr(A)
    for sh, a, b in ((14, 8, 9),):
        A(f's_mul_i32 s20, s18, {10 << sh}\ns_lshl_b32 s21, s17, 8\ns_add_u32 s20, s20, s21\nv_lshlrev_b32 v{a}, 4, v12\nv_add_u32 v{a}, s20, v{a}')
        A(f'v_and_b32 v14, 1, v13\nv_lshl_add_u32 v{b}, v14, {sh}, v{a}\nv_lshrrev_b32 v14, 1, v13\nv_lshl_add_u32 v{b}, v14, 3, v{b}\nv_lshl_add_u32 v{a}, v13, {sh}, v{a}')
    A(f's_mov_b32 s16, 0\ns_mov_b32 s24, 0\ns_mov_b32 s26, 0\ns_mov_b32 s27, 0\ns_mov_b32 s36, {OFF_SEG + C_UMR}')
    flag_cons_addr(A, 'v143', FO, P)
    A(f's_lshl_b32 s20, s17, 7\ns_add_u32 s20, s20, {FCH + 4096}\ns_add_u32 s20, s20, s19')
    lane0_addr(A, 'v180', 's_cmp_eq_u32 s18, 3')
    rts(A, P, 1)
    A('L_vo_step:')
    stamp_out(A, P, 150)
    A('s_cmp_eq_u32 s18, 2\ns_cbranch_scc0 L_vo_nodma')
    mem_slot(A, P)
    A('s_sub_u32 s35, s16, 1')
    poll(A, P, 'v143', 's35', 182)
    delay(A, P.get('DF', 0))
    if P.get('TS') == 3: stamp(A, P, 4)
    A('s_branch L_vo_dma')
    A('L_vo_retry:')
    A('s_cmp_eq_u32 s18, 2\ns_cbranch_scc0 L_vo_nodma')
    A('L_vo_dma:')
    dma_mem(A, P)
    stamp(A, P, 0)
    A('L_vo_nodma:')
    for r in range(16, 24): A(f'v_mov_b32 v{r}, 0')
    for r in range(32, 72): A(f'v_mov_b32 v{r}, 0')
    A('v_mov_b32 v149, s16')
    A(f's_and_b32 s20, s16, 1\ns_mul_i32 s28, s20, {40*MBLK}\ns_add_u32 s28, s28, s19\ns_add_u32 s28, s28, {16*MBLK}')
    first_pass(A, P, 16, 20, 0)
    if P.get('TS') == 2: stamp(A, P, 4)
    A('v_add_f32 v16, v16, v18\nv_add_f32 v17, v17, v19\nv_add_f32 v20, v20, v22\nv_add_f32 v21, v21, v23')
    A('v_cmp_u_f32 vcc, v16, v17\nv_cvt_pk_bf16_f32 v16, v16, v17\nv_cvt_pk_bf16_f32 v17, v20, v21')
    A('s_cbranch_vccnz L_vo_slow\nL_vo_back:')
    A('ds_write_b64 v5, v[16:17]\ns_add_u32 s16, s16, 1\ns_waitcnt lgkmcnt(0)\ns_barrier')
    if P.get('TS') == 2: stamp(A, P, 5)
    for k in range(4): A(f'ds_read_b64_tr_b16 v[{24+2*k}:{25+2*k}], v176 offset:{L_Q + k*768}')
    def o(t, ks): A(f'{SM} v[{32+4*t}:{35+4*t}], v[{24+4*ks}:{27+4*ks}], {wreg(20+2*t+ks)}, v3')
    def fin(t):
        r = 32 + 4*t
        return [f'v_add_f32 v{r}, v{r}, v{r+2}', f'v_add_f32 v{r+1}, v{r+1}, v{r+3}', f'v_cvt_pk_bf16_f32 v{72+t}, v{r}, v{r+1}']
    def tr4(b, so):
        return [f'v_permlane32_swap_b32 v{b}, v{b+2}', f'v_permlane32_swap_b32 v{b+1}, v{b+3}', f'v_permlane16_swap_b32 v{b}, v{b+1}', f'v_permlane16_swap_b32 v{b+2}, v{b+3}',
                f'buffer_store_dwordx4 v[{b}:{b+3}], v8, s[8:11], {so} offen sc1']
    A('s_waitcnt lgkmcnt(2)'); o(0, 0); o(1, 0); A('s_waitcnt lgkmcnt(0)'); o(0, 1); o(1, 1)
    if P.get('TS') == 2: stamp(A, P, 6)
    o(2, 0); A(f's_add_u32 s29, s28, {4*MBLK}\ns_add_u32 s30, s28, {8*MBLK}\ns_nop 0'); o(2, 1); A('s_nop 1')
    J = lambda x: A('\n'.join(x))
    a4 = tr4(72, 's28'); b4 = tr4(76, 's29')
    o(3, 0); J(fin(0)); o(3, 1); J(fin(1)); o(4, 0); J(fin(2)); o(4, 1); A('s_nop 2'); o(5, 0); J(fin(3)); o(5, 1); J(a4[:1]); A('s_nop 0')
    o(6, 0); J(a4[1:2]); J(fin(4)[:1]); o(6, 1); J(fin(4)[1:]); o(7, 0); J(a4[2:4]); o(7, 1); J(a4[4:]); J(fin(5)[:2])
    o(8, 0); J(fin(5)[2:]); J(fin(6)[:2]); o(8, 1); J(fin(6)[2:]); A('s_nop 1'); o(9, 0); J(fin(7)); o(9, 1)
    if P.get('TS') == 2: stamp(A, P, 7)
    J(b4[:2]); J(fin(8)[:2]); J(b4[2:]); J(fin(8)[2:]); J(fin(9))
    A('v_permlane16_swap_b32 v80, v81\nbuffer_store_dwordx2 v[80:81], v9, s[8:11], s30 offen sc1')
    stamp(A, P, 3)
    delay(A, P.get('DR', 0))
    A(f's_sub_u32 s28, s16, 1\ns_and_b32 s28, s28, {rm(P)}\ns_lshl_b32 s28, s28, 20\ns_add_u32 s28, s28, s36')
    side(A, 's28', 's28', 's34')
    A(f's_add_u32 s29, s28, {4*MBLK}\ns_add_u32 s30, s28, {8*MBLK}')
    if not P.get('FAKE', 0) & 2: A('buffer_store_dwordx4 v[72:75], v8, s[4:7], s28 offen sc1\nbuffer_store_dwordx4 v[76:79], v8, s[4:7], s29 offen sc1\nbuffer_store_dwordx2 v[80:81], v9, s[4:7], s30 offen sc1')
    A('s_cmp_lt_u32 s16, 64\ns_cbranch_scc1 L_vo_step')
    A('s_waitcnt vmcnt(0)\ns_barrier\nbuffer_store_dword v149, v180, s[8:11], 0 offen sc1\ns_branch L_vo_end')
    slow_check(A, 'L_vo_slow', 'L_vo_back', 'L_vo_retry', 'L_vo_end')
    A('L_vo_end:')
    stats(A, P)
def role_own(A, P):
    common_lane(A)
    A('s_cmp_eq_u32 s18, 0\ns_cbranch_scc1 L_own_go\ns_endpgm\nL_own_go:')
    A('v_and_b32 v3, 1, v1\nv_cmp_eq_u32 vcc, 0, v3\nv_mov_b32 v3, 0xeeee\nv_mov_b32 v5, 0x4444\nv_cndmask_b32 v3, v3, v5, vcc')
    A('v_lshlrev_b32 v6, 2, v1')
    for r in range(8, 11): A(f'v_mov_b32 v{r}, -1')
    A(f's_lshl_b32 s36, s17, 8\ns_mov_b32 s35, {MBLK}\ns_cmp_lt_u32 s17, 32\ns_cbranch_scc1 L_own_a\ns_movk_i32 s35, 2048\ns_add_u32 s36, s36, {4*MBLK - 8192}\nL_own_a:\ns_add_u32 s36, s36, s19')
    A(f's_lshl_b32 s25, s17, 16\ns_add_u32 s25, s25, {OFF_UX}')
    A(f's_lshl_b32 s37, s17, 8\ns_add_u32 s37, s37, {OFF_REC + 16384}')
    A('s_mov_b32 s16, 0\ns_mov_b32 s24, 0\ns_mov_b32 s26, 0\ns_mov_b32 s27, 0\ns_mov_b32 s48, -1\ns_mov_b32 s49, -1')
    flag_prod_addr(A, 'v2', FO, P, f's_cmp_eq_u32 s17, {P.get("MO", 0)}')
    flag_cons_addr(A, 'v7', FQ, P)
    A(f's_xor_b32 s20, s19, 0x2000\ns_add_u32 s20, s20, {FAG}')
    lane0_addr(A, 'v5', f's_cmp_eq_u32 s17, {P.get("MA", 39)}')
    A(f's_and_b32 s21, s2, {3 if P.get("ROT", 1) else 0}')
    for g in range(4):
        A(f's_xor_b32 s20, s21, {g}\ns_lshl_b32 s{56+g}, s20, 14\ns_lshl_b32 s{60+g}, s20, 10\ns_lshr_b32 s{52+g}, s20, 1\ns_lshl_b32 s{52+g}, s{52+g}, 14\ns_and_b32 s20, s20, 1\ns_lshl_b32 s20, s20, 12\ns_add_u32 s{52+g}, s{52+g}, s20')
        if P.get('UXS', 1) == 1: A(f's_lshl_b32 s20, s20, 1\ns_add_u32 s{56+g}, s{56+g}, s20')
    A(f'v_lshlrev_b32 v1, 7, v1\ns_add_u32 s20, s19, {FWV}\nv_add_u32 v1, s20, v1')
    A('L_own_step:')
    if P.get('SYNC'):
        min_wait(A, 'v1', 16, 's16', 's48')
    delay(A, P.get('DU', 0))
    A(f's_and_b32 s21, s16, {0 if P.get("FAKE", 0) & 1 else rm(P)}\ns_mul_i32 s21, s21, {40*65536}\ns_add_u32 s21, s21, s25')
    side(A, 's21', 's21', 's19' if P.get('UXS', 1) == 2 else 's34')
    for j in range(32):
        if (j & 7) == 0: A(f's_xor_b32 s20, s21, s{56 + (j>>3)}')
        if (j & 7) == 4: A('s_add_u32 s20, s20, 4096')
        A(f'buffer_load_dwordx4 v[{64+4*j}:{67+4*j}], v4, s[4:7], s20 offen offset:{(j&3)*1024} sc1')
    A(f's_and_b32 s20, s16, 1\ns_mul_i32 s20, s20, 40\ns_add_u32 s20, s20, s17\ns_add_u32 s20, s20, 16\ns_lshl_b32 s28, s20, 14\ns_add_u32 s28, s28, s19\ns_add_u32 s38, s28, 4096')
    A(f's_and_b32 s20, s16, 3\ns_lshl_b32 s29, s20, 15\ns_add_u32 s29, s29, s19\ns_add_u32 s29, s29, {8*MBLK}')
    A('s_add_u32 s39, s29, s53\ns_add_u32 s40, s29, s54\ns_add_u32 s41, s29, s55\ns_add_u32 s29, s29, s52')
    A(f's_lshr_b32 s21, s20, 1\ns_lshl_b32 s21, s21, 14\ns_and_b32 s20, s20, 1\ns_lshl_b32 s20, s20, 12\ns_add_u32 s30, s20, s21\ns_add_u32 s30, s30, s19\ns_add_u32 s30, s30, {5*MBLK}')
    A('s_add_u32 s20, s16, 1\ns_and_b32 s20, s20, 3\ns_mul_i32 s42, s20, s35\ns_add_u32 s42, s42, s36\ns_xor_b32 s20, s20, 2\ns_mul_i32 s43, s20, s35\ns_add_u32 s43, s43, s36')
    for g in range(4): A(f's_add_u32 s{64+g}, s30, s{60+g}\ns_lshl_b32 s20, s{60+g}, 1\ns_add_u32 s{68+g}, s28, s20')
    A('v_mov_b32 v0, s16')
    if P.get('SYNC'):
        A(f's_add_u32 s20, s16, {P.get("PA", 3)}\ns_min_u32 s20, s20, 63\ns_cmp_ge_i32 s48, s20\ns_cbranch_scc1 L_own_known')
        A('buffer_load_dword v16, v1, s[8:11], 0 offen sc1\ns_waitcnt vmcnt(0)')
        min_lanes(A, 16, 's48')
        A('L_own_known:')
    A('s_waitcnt vmcnt(0)')
    stamp(A, P, 4)
    poll(A, P, 'v7', 's16', 16)
    stamp(A, P, 0)
    if P['FO'] == -1: A('buffer_store_dword v0, v2, s[8:11], 0 offen sc1')
    A('L_own_retry:')
    for j in range(8): A(f'buffer_load_dwordx4 v[{32+4*j}:{35+4*j}], v4, s[8:11], s{68+(j>>1)} offen offset:{(j&1)*1024} sc1')
    fo = P['FO']
    def flag(pos):
        if fo == pos: A('buffer_store_dword v0, v2, s[8:11], 0 offen sc1')
    for j in range(16): A(f'buffer_load_dwordx4 v[{192+4*j}:{195+4*j}], v4, s[8:11], s{[29,39,40,41][j>>2]} offen offset:{(j&3)*1024} sc1')
    for j in range(4): A(f'buffer_load_dwordx4 v[{16+4*j}:{19+4*j}], v4, s[8:11], s{64+j} offen sc1')
    flag(0)
    for r in range(12, 16): A(f'v_mov_b32 v{r}, 0')
    stamp(A, P, 1)
    for j in range(16):
        A(f's_waitcnt vmcnt({19-j + (0 <= fo <= j)})')
        flag(j + 1)
        if j == 0: stamp(A, P, 2)
        A(f'{SM} v[12:15], v[{192+4*j}:{195+4*j}], v[{64+8*j}:{71+8*j}], v3')
    for j in range(4):
        A(f's_waitcnt vmcnt({3-j + (0 <= fo <= 16)})')
        A(f'{SM} v[12:15], v[{16+4*j}:{19+4*j}], v[{32+8*j}:{39+8*j}], v3')
    A('v_add_f32 v12, v12, v13\nv_add_f32 v14, v14, v15\nv_cmp_u_f32 vcc, v12, v14\nv_cvt_pk_bf16_f32 v12, v12, v14')
    A('s_cbranch_vccnz L_own_slow\nL_own_back:')
    A('buffer_store_dword v12, v6, s[8:11], s42 offen sc1')
    stamp(A, P, 3)
    flag(17)
    delay(A, P.get('DP', 0))
    A('buffer_store_dword v11, v6, s[8:11], s43 offen sc1\nbuffer_store_dword v0, v5, s[8:11], 0 offen sc1')
    for j in range(8): A(f'buffer_store_dwordx4 v[8:11], v4, s[8:11], {"s28" if j < 4 else "s38"} offen offset:{(j&3)*1024} sc1')
    if P.get('DBG'):
        A('buffer_store_dword v12, v6, s[4:7], s37 offen\ns_add_u32 s37, s37, 16384')
        A('s_cmp_eq_u32 s16, 2\ns_cbranch_scc0 L_own_nt\ns_memtime s[44:45]\ns_mov_b32 s27, s24\ns_mov_b32 s50, 0\nL_own_nt:')
    if P.get('RT'):
        for k, st in ((1, 0), (3, 1), (4, 10), (5, 20), (6, 30), (7, 40)):
            l = A.lab('rt'); A(f's_cmp_eq_u32 s16, {st}\ns_cbranch_scc0 {l}'); rts(A, P, k); A(f'{l}:')
    A('s_add_u32 s16, s16, 1')
    stamp_out(A, P, 16)
    A('s_cmp_lt_u32 s16, 63\ns_cbranch_scc1 L_own_step')
    if P.get('DBG'): A('s_memtime s[46:47]\ns_waitcnt lgkmcnt(0)\ns_sub_u32 s26, s46, s44\ns_mov_b32 s16, s50')
    A('s_branch L_own_end')
    A('L_own_slow:')
    if P.get('DBG'):
        for lo, hi, unit in ((32, 64, 1), (192, 256, 1 << 10), (16, 32, 1 << 20)):
            A(f'v_max_u32 v13, v{lo}, v{lo+1}')
            for r in range(lo + 2, hi, 2): A(f'v_max3_u32 v13, v13, v{r}, v{r+1}')
            l = A.lab('dg'); A(f'v_cmp_eq_u32 vcc, -1, v13\ns_cbranch_vccz {l}\ns_add_u32 s50, s50, {unit}\n{l}:')
    A('v_max3_u32 v13, v16, v17, v18')
    rs = list(range(19, 64)) + list(range(192, 256))
    A(f'v_max_u32 v13, v13, v{rs.pop()}')
    for a, b in zip(rs[0::2], rs[1::2]): A(f'v_max3_u32 v13, v13, v{a}, v{b}')
    A('v_cmp_eq_u32 vcc, -1, v13\ns_cbranch_vccz L_own_back')
    A('s_add_u32 s24, s24, 1\ns_cmp_gt_u32 s24, 200000\ns_cbranch_scc0 L_own_retry')
    A('L_own_end:')
    stats(A, P)
```

```python
import math, struct
MBLK = 16384
MB = 1 << 20
OFF_XN = 2*MB
OFF_POL = 5*MB
OFF_SEG = 8*MB
C_UMR = 0
C_PXX = 40*MBLK
C_PXM = 48*MBLK
C_H = 50*MBLK
OFF_UX = 72*MB
OFF_KQF = 240*MB
OFF_REC = 320*MB
OFF_TS = OFF_REC + 4*MB
def side(A, dst, src, pol, tmp='s20'):
    A(f's_lshr_b32 {tmp}, {src}, 8\ns_xor_b32 {tmp}, {tmp}, {pol}\ns_and_b32 {tmp}, {tmp}, 0x2000\ns_or_b32 {dst}, {src}, {tmp}')
def rm(P): return P.get('RD', 64) - 1
def kq_place(P): return (OFF_KQF, 's34') if P.get('KQF') else (OFF_SEG, 's19')
FQ = 7*MBLK; FO = 96*MBLK
FCH = 97*MBLK
FWK = 98*MBLK
FWV = 99*MBLK
FWF = 100*MBLK
FAG = 101*MBLK
LOG2E = math.log2(math.e)
CSC = 128 ** -0.5 * LOG2E
OOB = '0x40000000'
def f32(x): return hex(struct.unpack('<I', struct.pack('<f', x))[0])
def wreg(o): return f'a[{8*o}:{8*o+7}]' if o < 32 else f'v[{192+8*(o-32)}:{192+8*(o-32)+7}]'
def wreg4(o, half):
    b = 8*o + 4*half
    return f'a[{b}:{b+3}]' if o < 32 else f'v[{b-64}:{b-61}]'
def wsingle(o, r): return ('a', 8*o + r) if o < 32 else ('v', 192 + 8*(o-32) + r)
OFFS = [(0, 2), (1, 3), (4, 6), (5, 7)]
NAT = [(0, 1), (2, 3), (4, 5), (6, 7)]
def delay(A, cyc):
    n = cyc // 64
    while n > 0:
        k = min(n, 100); A(f's_sleep {k}'); n -= k
    r = (cyc % 64) // 4
    if r: A(f's_nop {r-1}')
def load_weights(A, groups, srd, voff):
    T = 128
    n = len(groups)
    def issue(gi):
        for k, o in enumerate(groups[gi][0]):
            A(f's_mov_b32 s30, {o}')
            A(f'buffer_load_dword v{T+16*(gi&3)+k}, {voff}, {srd}, s30 offen')
    for gi in range(min(3, n)): issue(gi)
    for gi in range(n):
        A(f's_waitcnt vmcnt({16*min(n-1-gi, 2)})')
        _, o0, o1 = groups[gi]
        for R in range(8):
            a = T + 16*(gi & 3) + 2*R
            for o, sel in ((o0, 's31'), (o1, 's32')):
                kind, idx = wsingle(o, R)
                if kind == 'v': A(f'v_perm_b32 v{idx}, v{a+1}, v{a}, {sel}')
                else:
                    tmp = 120 + (2*R + (o == o1)) % 8
                    A(f'v_perm_b32 v{tmp}, v{a+1}, v{a}, {sel}')
                    A(f'v_accvgpr_write_b32 a{idx}, v{tmp}')
        if gi + 3 < n: issue(gi + 3)
def grp(rowfn, stride, coff, o0, o1):
    return ([rowfn(half, jp, c) * stride + coff for half in range(2) for jp in range(4) for c in range(2)], o0, o1)
def set_srd(A, base, ptr_off, size):
    A(f's_load_dwordx2 s[{base}:{base+1}], s[0:1], {ptr_off}')
    A(f's_mov_b32 s{base+2}, {size}\ns_mov_b32 s{base+3}, 0x20000\ns_waitcnt lgkmcnt(0)')
def common_lane(A):
    A('v_and_b32 v1, 63, v0\nv_lshrrev_b32 v2, 6, v0\nv_readfirstlane_b32 s18, v2')
    A('v_and_b32 v12, 15, v1\nv_lshrrev_b32 v13, 4, v1\nv_lshlrev_b32 v4, 4, v1\nv_mov_b32 v11, -1')
    A('s_mov_b32 s31, 0x05040100\ns_mov_b32 s32, 0x07060302')
def prologue(A, name, pol=True, P={}):
    A(f'.globl {name}\n.p2align 8\n.type {name},@function\n{name}:')
    size = hex(382*MB if any(P.get(k) for k in ('DBG', 'TS', 'RT', 'KQF')) else 254*MB)
    A(f's_load_dwordx2 s[4:5], s[0:1], 96\ns_mov_b32 s6, {size}\ns_mov_b32 s7, 0x20000\ns_mov_b32 s10, 0x200000\ns_mov_b32 s11, 0x20000')
    A('s_waitcnt lgkmcnt(0)')
    A('s_add_u32 s8, s4, 0x1fffff\ns_addc_u32 s9, s5, 0\ns_and_b32 s8, s8, 0xffe00000\ns_add_u32 s4, s4, 0x1fffff\ns_addc_u32 s5, s5, 0\ns_and_b32 s4, s4, 0xffe00000')
    if pol:
        A(f's_load_dword s19, s[4:5], {OFF_POL & 0xfffff}' if OFF_POL < (1 << 20) else f's_mov_b32 s20, {OFF_POL}\ns_load_dword s19, s[4:5], s20')
        A('s_waitcnt lgkmcnt(0)\ns_and_b32 s19, s19, 0x2000\ns_xor_b32 s34, s19, 0x2000')
        if P.get('NOSTEER'): A('s_mov_b32 s34, s19')
def silu(A, r, t):
    for a, b in zip(r, t): A(f'v_mul_f32 v{b}, s33, v{a}')
    for a, b in zip(r, t): A(f'v_exp_f32 v{b}, v{b}')
    for a, b in zip(r, t): A(f'v_add_f32 v{b}, 1.0, v{b}')
    for a, b in zip(r, t): A(f'v_rcp_f32 v{b}, v{b}')
    for a, b in zip(r, t): A(f'v_mul_f32 v{a}, v{a}, v{b}')
def wait_flags(A, base, lanes_expr, sval, cache, tmpv, tmpa, sleep=2):
    l = A.lab('wf')
    A(f's_mov_b32 s21, 0\n{l}:')
    A(f'buffer_load_dword v{tmpv}, v{tmpa}, s[8:11], 0 offen sc1\ns_waitcnt vmcnt(0)\nv_cmp_gt_i32 vcc, {sval}, v{tmpv}\ns_cbranch_vccz {l}_ok')
    A(f's_sleep {sleep}\ns_add_u32 s21, s21, 1\ns_cmp_lt_u32 s21, 200000\ns_cbranch_scc1 {l}\n{l}_ok:')

def min_wait(A, addr, tmp, need, cache, sleep=2):
    l = A.lab('mw'); D = 'row_mask:0xf bank_mask:0xf'
    A(f's_cmp_ge_i32 {cache}, {need}\ns_cbranch_scc1 {l}_ok\ns_mov_b32 s21, 0\n{l}:')
    A(f'buffer_load_dword v{tmp}, {addr}, s[8:11], 0 offen sc1\ns_waitcnt vmcnt(0)\nv_cmp_gt_i32 vcc, {need}, v{tmp}\ns_cbranch_vccz {l}_got')
    A(f's_sleep {sleep}\ns_add_u32 s21, s21, 1\ns_cmp_lt_u32 s21, 200000\ns_cbranch_scc1 {l}\n{l}_got:')
    min_lanes(A, tmp, cache)
    A(f'{l}_ok:')
def min_lanes(A, tmp, cache):
    D = 'row_mask:0xf bank_mask:0xf'
    for r in (8, 4, 2, 1): A(f'v_min_i32_dpp v{tmp}, v{tmp}, v{tmp} row_ror:{r} {D}')
    A(f'v_readlane_b32 {cache}, v{tmp}, 0\nv_readlane_b32 s20, v{tmp}, 16\nv_readlane_b32 s21, v{tmp}, 32\ns_min_i32 {cache}, {cache}, s20\nv_readlane_b32 s20, v{tmp}, 48\ns_min_i32 {cache}, {cache}, s21\ns_min_i32 {cache}, {cache}, s20')
OFF_RT = OFF_REC + 3*MB
def rts(A, P, k):
    if not P.get('RT'): return
    A(f's_memrealtime s[98:99]\ns_memtime s[96:97]\ns_lshl_b32 s100, s2, 7\ns_add_u32 s100, s100, {OFF_RT + k*8}\ns_waitcnt lgkmcnt(0)\nv_mov_b32 v126, s98\nv_mov_b32 v127, s96\nbuffer_store_dwordx2 v[126:127], off, s[4:7], s100')
```

```python
from common import *
MF = 'v_mfma_f32_16x16x32_bf16'
def role_ln(A, P):
    common_lane(A)
    set_srd(A, 12, 0, 2048*1280)
    A('v_mul_u32_u24 v5, 1280, v12\nv_lshl_add_u32 v5, v13, 4, v5\ns_mul_i32 s20, s17, 20480\ns_mul_i32 s21, s18, 320\ns_add_u32 s20, s20, s21')
    for j in range(5): A(f'buffer_load_dwordx4 v[{20+4*j}:{23+4*j}], v5, s[12:15], s20 offen offset:{j*64}')
    A('v_lshlrev_b32 v6, 2, v12\ns_lshl_b32 s21, s18, 6\nv_add_u32 v7, s21, v6')
    A('s_waitcnt vmcnt(0)')
    for j in range(20):
        A(f'v_lshlrev_b32 v{40+2*j}, 16, v{20+j}\nv_and_b32 v{41+2*j}, 0xffff0000, v{20+j}')
    def red(base):
        A('v_mov_b32 v9, v8\nv_permlane32_swap_b32 v8, v9\nv_add_f32 v8, v8, v9\nv_mov_b32 v9, v8\nv_permlane16_swap_b32 v8, v9\nv_add_f32 v8, v8, v9')
        A(f'ds_write_b32 v7, v8 offset:{base}\ns_waitcnt lgkmcnt(0)\ns_barrier')
        A(f'ds_read_b32 v8, v6 offset:{base}\nds_read_b32 v9, v6 offset:{base+64}\nds_read_b32 v10, v6 offset:{base+128}\nds_read_b32 v14, v6 offset:{base+192}')
        A('s_waitcnt lgkmcnt(0)\nv_add_f32 v8, v8, v9\nv_add_f32 v10, v10, v14\nv_add_f32 v8, v8, v10')
    A('v_add_f32 v8, v40, v41\nv_add_f32 v9, v42, v43')
    for j in range(2, 20): A(f'v_add_f32 v8, v8, v{40+2*j}\nv_add_f32 v9, v9, v{41+2*j}')
    A('v_add_f32 v8, v8, v9')
    red(0)
    A(f'v_mul_f32 v8, {f32(1/640)}, v8')
    for j in range(40): A(f'v_sub_f32 v{40+j}, v{40+j}, v8')
    A('v_mul_f32 v8, v40, v40\nv_mul_f32 v9, v41, v41')
    for j in range(1, 20): A(f'v_fmac_f32 v8, v{40+2*j}, v{40+2*j}\nv_fmac_f32 v9, v{41+2*j}, v{41+2*j}')
    A('v_add_f32 v8, v8, v9')
    red(256)
    A(f'v_mov_b32 v9, {f32(1e-5)}\nv_fmac_f32 v9, {f32(1/640)}, v8\nv_rsq_f32 v8, v9')
    for j in range(40): A(f'v_mul_f32 v{40+j}, v{40+j}, v8')
    for j in range(20): A(f'v_cvt_pk_bf16_f32 v{20+j}, v{40+2*j}, v{41+2*j}')
    A(f's_mul_i32 s20, s17, 20480\ns_mul_i32 s21, s18, 5120\ns_add_u32 s20, s20, s21\ns_add_u32 s20, s20, {OFF_XN}\ns_add_u32 s21, s20, 4096')
    for j in range(5): A(f'buffer_store_dwordx4 v[{20+4*j}:{23+4*j}], v4, s[4:7], {"s20" if j < 4 else "s21"} offen offset:{(j&3)*1024} sc1')
def role_poison(A, P):
    A('v_lshlrev_b32 v20, 4, v0\nv_mov_b32 v21, v20\ns_lshl_b32 s20, s17, 14')
    for r in range(24, 28): A(f'v_mov_b32 v{r}, -1')
    l = A.lab('po')
    A(f's_cmp_eq_u32 s17, 4\ns_cbranch_scc0 {l}\nv_cmp_gt_u32 vcc, 128, v0\nv_mov_b32 v22, {OOB}\nv_cndmask_b32 v21, v20, v22, vcc\n{l}:')
    for j in range(4):
        A(f'buffer_store_dwordx4 v[24:27], {"v21" if j in (0, 2) else "v20"}, s[8:11], s20 offen sc1\ns_add_u32 s20, s20, 4096')
def role_mem0(A, P):
    common_lane(A)
    set_srd(A, 12, 8, 8*1280)
    A('s_lshl_b32 s20, s17, 2\ns_add_u32 s20, s20, s18')
    A('s_lshr_b32 s21, s20, 1\ns_lshl_b32 s21, s21, 6\ns_and_b32 s22, s20, 1\ns_lshl_b32 s22, s22, 1\ns_add_u32 s21, s21, s22')
    A('v_mul_u32_u24 v5, 2560, v13\nv_lshl_add_u32 v5, v12, 2, v5')
    A('buffer_load_ushort v6, v5, s[12:15], s21 offen\nbuffer_load_ushort v7, v5, s[12:15], s21 offen offset:1280')
    A(f's_lshl_b32 s21, s20, 8\ns_add_u32 s22, s21, {4*MBLK - 8192}\ns_cmp_lt_u32 s20, 32\ns_cselect_b32 s21, s21, s22\ns_add_u32 s22, s21, 8192')
    A('v_lshlrev_b32 v5, 2, v1\ns_waitcnt vmcnt(0)\nv_lshl_or_b32 v6, v7, 16, v6')
    A('buffer_store_dword v6, v5, s[8:11], s21 offen sc1\nbuffer_store_dword v6, v5, s[8:11], s22 offen sc1')
def role_calib(A, P):
    N = 4
    A('v_mov_b32 v5, 0\nv_mov_b32 v6, 0')
    for j in range(N):
        for h in range(2): A(f's_mov_b32 s20, {(112+j)*MBLK + h*8192 + j*1280}\nbuffer_store_dword v6, v5, s[8:11], s20 offen sc1')
    A('s_waitcnt vmcnt(0)\ns_mov_b32 s26, -1\ns_mov_b32 s27, -1')
    for j in range(N):
        for h in range(2):
            A(f's_mov_b32 s20, {(112+j)*MBLK + h*8192 + j*1280}\ns_memtime s[22:23]\ns_waitcnt lgkmcnt(0)')
            A('buffer_load_dword v6, v5, s[8:11], s20 offen sc1\ns_waitcnt vmcnt(0)\ns_memtime s[24:25]\ns_waitcnt lgkmcnt(0)')
            A(f's_sub_u32 s24, s24, s22\ns_min_u32 s{26+h}, s{26+h}, s24')
    A(f's_cmp_le_u32 s26, s27\ns_cselect_b32 s19, 0, 0x2000')
def init_kernel(A, P, name):
    prologue(A, name, pol=False, P=P)
    rts(A, P, 8)
    A('s_mov_b32 s17, s2\ns_cmp_lt_u32 s2, 128\ns_cbranch_scc1 L_i_ln')
    A('s_sub_u32 s17, s2, 128\ns_cmp_eq_u32 s17, 0\ns_cbranch_scc1 L_i_cal\ns_cmp_lt_u32 s17, 112\ns_cbranch_scc1 L_i_po')
    A('s_sub_u32 s17, s17, 112\ns_cmp_lt_u32 s17, 10\ns_cbranch_scc1 L_i_m0\ns_endpgm')
    A('L_i_cal:\nv_lshrrev_b32 v2, 6, v0\nv_readfirstlane_b32 s18, v2\ns_cmp_eq_u32 s18, 0\ns_cbranch_scc1 L_i_cal2\ns_endpgm\nL_i_cal2:')
    role_calib(A, P)
    rts(A, P, 9)
    if 'POL' in P: A(f's_mov_b32 s19, {P["POL"]}')
    A(f'v_mov_b32 v6, s19\nv_mov_b32 v7, s26\nv_mov_b32 v8, s27\ns_mov_b32 s20, {OFF_POL}\nbuffer_store_dwordx3 v[6:8], v5, s[4:7], s20 offen\ns_endpgm')
    A('L_i_po:'); role_poison(A, P); A('s_endpgm')
    A('L_i_m0:'); role_mem0(A, P); A('s_endpgm')
    A('L_i_ln:'); role_ln(A, P); rts(A, P, 9); A('s_endpgm')
XB = 40960
def xn_dma(A, seg_sreg):
    A(f's_mul_i32 s20, {seg_sreg}, 40960\ns_mul_i32 s21, s18, 10240\ns_add_u32 s20, s20, s21\ns_add_u32 s20, s20, {OFF_XN}\ns_add_u32 s21, s21, s40')
    for j in range(10):
        if (j & 3) == 0: A('s_mov_b32 m0, s21')
        A(f'buffer_load_dwordx4 v4, s[4:7], s20 offen offset:{(j&3)*1024} sc1 lds')
        if (j & 3) == 3: A('s_add_u32 s20, s20, 4096\ns_add_u32 s21, s21, 4096')
def xn_pass(A, nt, acc, mid=None):
    F = 100; NS = 5
    seq = [(kk, rt) for kk in range(20) for rt in range(2)]
    def rd(i):
        kk, rt = seq[i]; A(f'ds_read_b128 v[{F+4*(i%NS)}:{F+3+4*(i%NS)}], v5 offset:{(rt*20+kk)*1024}')
    for i in range(NS - 1): rd(i)
    for i, (kk, rt) in enumerate(seq):
        A(f's_waitcnt lgkmcnt({min(NS-2, 39-i)})')
        for t in range(nt):
            a = acc + 4*(rt*nt + t)
            A(f'{MF} v[{a}:{a+3}], {wreg4(20*(t>>1) + 2*(kk>>1) + (t&1), kk&1)}, v[{F+4*(i%NS)}:{F+3+4*(i%NS)}], {"0" if kk == 0 else f"v[{a}:{a+3}]"}')
            if t == 0 and i + NS - 1 < 40: rd(i + NS - 1)
        if mid and i == mid[0]: mid[1]()
def pack(A, dst, x, y):
    A(f'v_cvt_pk_bf16_f32 v{dst}, v{x}, v{x+1}\nv_cvt_pk_bf16_f32 v{dst+1}, v{y}, v{y+1}\nv_cvt_pk_bf16_f32 v{dst+2}, v{x+2}, v{x+3}\nv_cvt_pk_bf16_f32 v{dst+3}, v{y+2}, v{y+3}')
def natw(opbase, stride, coff):
    return [grp(lambda half, jp, c: 64*ks + 32*half + NAT[jp][c], stride, coff, opbase + 2*ks, opbase + 2*ks + 1) for ks in range(10)]
def xw_loop(A, P, nm, body, nst, flagbase, nb=0):
    A(f's_lshl_b32 s20, s42, 7\ns_add_u32 s20, s20, {flagbase}\ns_add_u32 s20, s20, s19\ns_cmp_eq_u32 s18, 0\ns_cselect_b32 s20, s20, {OOB}')
    A(f'v_mov_b32 v9, s20\nv_cmp_eq_u32 vcc, 0, v1\nv_mov_b32 v15, {OOB}\nv_cndmask_b32 v9, v15, v9, vcc')
    rts(A, P, 1)
    A('s_waitcnt vmcnt(0)\ns_barrier')
    A(f'{nm}_loop:')
    A(f'v_add_u32 v5, s40, v4\ns_xor_b32 s40, s40, {XB}\ns_sub_u32 s20, s16, 1\nv_mov_b32 v10, s20')
    if nb: A(f's_cmp_lt_u32 s16, {2*nb-1}\ns_cselect_b32 s20, 2, s41\ns_add_u32 s43, s16, s20')
    else: A('s_add_u32 s43, s16, s41')
    A('s_min_u32 s44, s43, 63')
    xn_dma(A, 's44')
    def mid():
        A('s_waitcnt vmcnt(10)\ns_barrier\nbuffer_store_dword v10, v9, s[8:11], 0 offen sc1')
    body(mid)
    A(f's_mov_b32 s16, s43\ns_cmp_lt_u32 s16, 64\ns_waitcnt vmcnt({nst})\ns_barrier\ns_cbranch_scc1 {nm}_loop')
    A('v_mov_b32 v10, 64\ns_waitcnt vmcnt(0)\ns_barrier\nbuffer_store_dword v10, v9, s[8:11], 0 offen sc1')
def role_qkx(A, P):
    common_lane(A)
    A('s_mov_b32 s40, 0'); xn_dma(A, 's16')
    A('v_lshlrev_b32 v10, 16, v13\nv_lshl_add_u32 v10, v12, 2, v10\ns_lshl_b32 s20, s17, 8\ns_lshl_b32 s21, s18, 6\ns_add_u32 s20, s20, s21\nv_add_u32 v10, s20, v10')
    set_srd(A, 12, 24, 640*8192); load_weights(A, natw(0, 8192, 0), 's[12:15]', 'v10')
    set_srd(A, 12, 16, 640*8192); load_weights(A, natw(20, 8192, 0), 's[12:15]', 'v10')
    A('v_lshrrev_b32 v8, 1, v13\nv_lshlrev_b32 v8, 10, v8\nv_and_b32 v14, 1, v13\nv_lshl_add_u32 v8, v14, 9, v8\nv_lshl_add_u32 v8, v12, 4, v8')
    A('s_lshr_b32 s20, s18, 1\ns_lshl_b32 s20, s20, 11\ns_and_b32 s21, s18, 1\ns_lshl_b32 s21, s21, 8\ns_add_u32 s20, s20, s21\nv_add_u32 v8, s20, v8')
    A(f's_mov_b32 s33, {f32(CSC)}')
    def body(mid):
        xn_pass(A, 4, 16, (P.get('MQX', 12), mid))
        A(f's_and_b32 s20, s16, {rm(P)}\ns_lshl_b32 s20, s20, 5\ns_add_u32 s20, s20, s17\ns_lshl_b32 s20, s20, 15\ns_add_u32 s20, s20, {kq_place(P)[0]}')
        side(A, 's20', 's20', kq_place(P)[1], 's21')
        for rt in range(2):
            pack(A, 48 + 4*rt, 16 + 16*rt, 20 + 16*rt)
            A(f'buffer_store_dwordx4 v[{48+4*rt}:{51+4*rt}], v8, s[4:7], s20 offen sc1\ns_add_u32 s20, s20, {4096 + 8192*rt}')
        for rt in range(2):
            for r in range(8): A(f'v_mul_f32 v{24+16*rt+r}, s33, v{24+16*rt+r}')
            pack(A, 56 + 4*rt, 24 + 16*rt, 28 + 16*rt)
            A(f'buffer_store_dwordx4 v[{56+4*rt}:{59+4*rt}], v8, s[4:7], s20 offen sc1\ns_add_u32 s20, s20, 4096')
    xw_loop(A, P, 'L_qkx', body, 4, FWK, P.get('NB', 0))
def role_ffn1(A, P):
    common_lane(A)
    A('s_mov_b32 s40, 0'); xn_dma(A, 's16')
    A('v_mul_u32_u24 v10, 27648, v13\nv_lshl_add_u32 v10, v12, 2, v10\ns_lshl_b32 s20, s17, 9\ns_lshl_b32 s21, s18, 7\ns_add_u32 s20, s20, s21\nv_add_u32 v10, s20, v10')
    set_srd(A, 12, 64, 640*3456); load_weights(A, natw(0, 3456, 0) + natw(20, 3456, 64), 's[12:15]', 'v10')
    A(f's_lshl_b32 s20, s17, 2\ns_add_u32 s20, s20, s18\ns_cmp_lt_u32 s20, 27\ns_cselect_b32 s20, s20, 0x20000\ns_and_b32 s21, s20, 1\ns_lshr_b32 s20, s20, 1\ns_lshl_b32 s20, s20, 14\ns_lshl_b32 s21, s21, 12\ns_add_u32 s20, s20, s21\nv_add_u32 v8, s20, v4')
    A(f's_mov_b32 s33, {f32(-LOG2E)}')
    def body(mid):
        xn_pass(A, 4, 16, (P.get('MFX', 36), mid))
        A(f's_and_b32 s20, s16, {rm(P)}\ns_lshl_b32 s20, s20, 20\ns_add_u32 s20, s20, {OFF_SEG + C_H}')
        side(A, 's20', 's20', 's34', 's21')
        for rt in range(2):
            for m in range(2):
                b = 16 + 16*rt + 8*m
                silu(A, range(b, b + 8), range(64, 72))
                pack(A, 48 + 8*rt + 4*m, b, b + 4)
                A(f'buffer_store_dwordx4 v[{48+8*rt+4*m}:{51+8*rt+4*m}], v8, s[4:7], s20 offen offset:{m*2048 + rt*1024} sc1')
    xw_loop(A, P, 'L_ffn1', body, 4, FWF)
def role_vox(A, P):
    common_lane(A)
    LV = 2*XB
    A('s_mov_b32 s40, 0'); xn_dma(A, 's16')
    A('v_lshlrev_b32 v10, 16, v13\nv_lshl_add_u32 v10, v12, 2, v10\ns_lshl_b32 s20, s17, 8\ns_lshl_b32 s21, s18, 6\ns_add_u32 s20, s20, s21\nv_add_u32 v10, s20, v10')
    set_srd(A, 12, 32, 640*8192); load_weights(A, natw(0, 8192, 0), 's[12:15]', 'v10')
    A('v_mul_u32_u24 v10, 10240, v13\nv_lshl_add_u32 v10, v12, 2, v10\ns_mul_i32 s20, s17, 163840\ns_mul_i32 s21, s18, 320\ns_add_u32 s20, s20, s21\nv_add_u32 v10, s20, v10')
    g = [grp(lambda half, jp, c: 64*ks + 32*half + OFFS[jp][c], 1280, j*64, 20 + 4*j + ks, 22 + 4*j + ks) for j in range(5) for ks in range(2)]
    set_srd(A, 12, 40, 32*163840); load_weights(A, g, 's[12:15]', 'v10')
    A(f's_lshr_b32 s45, s17, 3\ns_lshl_b32 s45, s45, 14\ns_and_b32 s20, s17, 7\ns_lshl_b32 s20, s20, 10\ns_add_u32 s45, s45, s20\ns_add_u32 s45, s45, {OFF_UX}')
    A(['s_mov_b32 s35, s34', 's_lshl_b32 s35, s17, 10\ns_xor_b32 s35, s35, s34', 's_mov_b32 s35, s19'][P.get('UXS', 1)])
    A(f's_lshl_b32 s20, s18, 10\ns_add_u32 s20, s20, {LV}\nv_add_u32 v6, s20, v4\nv_add_u32 v7, {LV}, v4')
    def body(mid):
        xn_pass(A, 2, 16, (P.get('MVX', 24), mid))
        for rt in range(2):
            pack(A, 32 + 4*rt, 16 + 8*rt, 20 + 8*rt)
            A(f'ds_write_b128 v6, v[{32+4*rt}:{35+4*rt}] offset:{rt*4096}')
        A(f's_and_b32 s20, s16, {rm(P)}\ns_mul_i32 s20, s20, 40\ns_mul_i32 s21, s18, 10\ns_add_u32 s20, s20, s21\ns_lshl_b32 s20, s20, 16\ns_add_u32 s20, s20, s45')
        A('s_waitcnt lgkmcnt(0)\ns_barrier')
        for kk in range(4):
            for rt in range(2): A(f'ds_read_b128 v[{40+16*rt+4*kk}:{43+16*rt+4*kk}], v7 offset:{rt*4096 + kk*1024}')
        def fin(t):
            a = 72 + 8*(t % 3)
            return [f'v_cvt_pk_bf16_f32 v{16+4*(t&1)+r}, v{a+r}, v{a+4+r}' for r in range(4)] + \
                   [f'buffer_store_dwordx4 v[{16+4*(t&1)}:{19+4*(t&1)}], v4, s[4:7], s22 offen sc1', 's_add_u32 s20, s20, 65536']
        sd = ['s_lshr_b32 s21, s20, 8', 's_xor_b32 s21, s21, s35', 's_and_b32 s21, s21, 0x2000', 's_or_b32 s22, s20, s21']
        for t in range(10):
            f = fin(t - 1) if t else []
            for kk in range(4):
                if t == 0: A(f's_waitcnt lgkmcnt({6-2*kk})')
                for rt in range(2):
                    a = 72 + 8*(t % 3) + 4*rt
                    A(f'{MF} v[{a}:{a+3}], v[{40+16*rt+4*kk}:{43+16*rt+4*kk}], {wreg4(20 + 2*t + (kk>>1), kk&1)}, {"0" if kk == 0 else f"v[{a}:{a+3}]"}')
                    if t and kk < 2: A('s_nop 0\n' + sd[2*kk + rt])
                    if f and kk >= 2:
                        A('\n'.join(f[:2])); f = f[2:]
            if f: A('\n'.join(f))
        A('\n'.join(sd + fin(9)))
    xw_loop(A, P, 'L_vox', body, 10, FWV, P.get('NB', 0))
def role_fin(A, P):
    sync = P.get('SYNC')
    common_lane(A)
    A('v_mul_u32_u24 v10, 10240, v13\nv_lshl_add_u32 v10, v12, 2, v10\ns_lshl_b32 s20, s17, 6\ns_mul_i32 s21, s18, 573440\ns_add_u32 s20, s20, s21\nv_add_u32 v10, s20, v10')
    g = [grp(lambda half, jp, c: 64*ks + 32*half + OFFS[jp][c], 1280, 0, 2*ks, 2*ks + 1) for ks in range(7)]
    set_srd(A, 12, 72, 1728*1280); load_weights(A, g, 's[12:15]', 'v10')
    set_srd(A, 12, 0, 2048*1280); set_srd(A, 44, 80, 2048*1280)
    A(f's_mov_b32 s33, {f32(-LOG2E)}')
    A('v_mul_u32_u24 v8, 1280, v12\nv_lshl_add_u32 v8, v13, 4, v8\ns_lshr_b32 s20, s18, 1\ns_mul_i32 s20, s20, 20480\ns_and_b32 s21, s18, 1\ns_lshl_b32 s21, s21, 3')
    A('s_add_u32 s20, s20, s21\ns_lshl_b32 s21, s17, 6\ns_add_u32 s20, s20, s21\nv_add_u32 v8, s20, v8')
    A('s_lshl_b32 s20, s18, 12\nv_add_u32 v6, s20, v4\ns_lshr_b32 s20, s18, 1\ns_lshl_b32 s20, s20, 11\ns_and_b32 s21, s18, 1\ns_lshl_b32 s21, s21, 3\ns_add_u32 s20, s20, s21\nv_add_u32 v7, s20, v4')
    if sync:
        A(f'v_lshlrev_b32 v9, 7, v1\ns_add_u32 s20, s19, {FWV}\nv_add_u32 v2, s20, v9')
        A(f'v_min_u32 v3, {P["NFFN"]-1}, v1\nv_lshlrev_b32 v3, 7, v3\ns_add_u32 s20, s19, {FWF}\nv_add_u32 v3, s20, v3\ns_mov_b32 s36, -1\ns_mov_b32 s37, -1')
        A(f's_add_u32 s20, s19, {FCH}\nv_add_u32 v9, s20, v9\ns_xor_b32 s20, s19, 0x2000\ns_add_u32 s20, s20, {FAG}\nv_mov_b32 v10, s20')
    H = 64; UXA = 112
    def reduce(base, dst):
        for j in range(4): A(f'ds_write_b128 v6, v[{16+4*j}:{19+4*j}] offset:{base + j*1024}')
        A('s_waitcnt lgkmcnt(0)\ns_barrier')
        for w in range(4):
            for i in range(2): A(f'ds_read_b64 v[{16+4*w+2*i}:{17+4*w+2*i}], v7 offset:{base + w*4096 + i*1024}')
        A('s_waitcnt lgkmcnt(0)')
        for r in range(4): A(f'v_add_f32 v{16+r}, v{16+r}, v{20+r}\nv_add_f32 v{24+r}, v{24+r}, v{28+r}')
        for r in range(4): A(f'v_add_f32 v{dst+r}, v{16+r}, v{24+r}')
    PX = 176; PM = 176
    A(f's_mul_i32 s20, s18, 7\ns_and_b32 s21, s20, 1\ns_lshr_b32 s20, s20, 1\ns_lshl_b32 s20, s20, 14\ns_lshl_b32 s22, s21, 12\ns_add_u32 s50, s20, s22\ns_add_u32 s50, s50, {OFF_SEG + C_H}')
    A('s_lshl_b32 s21, s21, 13\ns_add_u32 s48, s21, 4096\ns_sub_u32 s49, 16384, s48')
    A(['s_mov_b32 s35, s34', 's_lshl_b32 s35, s18, 13\ns_xor_b32 s35, s35, s34', 's_mov_b32 s35, s19'][P.get('UXS', 1)])
    def ld_h(seg):
        if sync: A(f's_min_u32 s39, {seg}, 63'); min_wait(A, 'v3', 15, 's39', 's36', 4)
        A(f's_and_b32 s20, {seg}, {rm(P)}\ns_lshl_b32 s20, s20, 20\ns_add_u32 s20, s20, s50')
        side(A, 's20', 's20', 's34', 's21')
        A(f's_cmp_eq_u32 s18, 3\ns_cselect_b32 s22, {OOB}, 0\nv_add_u32 v14, s22, v5')
        for kk in range(14):
            for rt in range(2):
                A(f'buffer_load_dwordx4 v[{H+8*kk+4*rt}:{H+3+8*kk+4*rt}], {"v14" if kk >= 12 else "v5"}, s[4:7], s20 offen offset:{(kk&1)*2048 + rt*1024} sc1')
            if kk & 1: A(f's_add_u32 s20, s20, s{48 + ((kk>>1)&1)}')
    def ld_ux(seg):
        if sync: A(f's_min_u32 s39, {seg}, 63'); min_wait(A, 'v2', 15, 's39', 's37', 4)
        A(f's_and_b32 s22, {seg}, {rm(P)}\ns_mul_i32 s22, s22, 20\ns_add_u32 s22, s22, s17\ns_lshl_b32 s22, s22, 17\ns_lshl_b32 s21, s18, 14\ns_add_u32 s22, s22, s21\ns_add_u32 s22, s22, {OFF_UX}')
        side(A, 's22', 's22', 's35', 's21')
        for i in range(2):
            for h in range(8):
                A(f'buffer_load_dwordx4 a[{UXA+32*i+4*h}:{UXA+3+32*i+4*h}], v5, s[4:7], s22 offen offset:{(h&3)*1024} sc1')
                if h == 3: A('s_add_u32 s22, s22, 4096')
            A(f's_add_u32 s22, s22, {65536-4096}')
    rts(A, P, 3)
    A('v_mov_b32 v5, v4\ns_mov_b32 s38, -1')
    ld_h('s16')
    A(f'v_mov_b32 v15, {OOB}\nbuffer_load_dword v15, v15, s[4:7], 0 offen')
    A('L_fin_loop:')
    ld_ux('s16')
    for kk in range(14):
        A(f's_waitcnt vmcnt({17 + 26 - 2*kk})')
        for rt in range(2):
            for i in range(2):
                a = 16 + 8*rt + 4*i
                A(f'{MF} v[{a}:{a+3}], {wreg4(2*(kk>>1)+i, kk&1)}, v[{H+8*kk+4*rt}:{H+3+8*kk+4*rt}], {"0" if kk == 0 else f"v[{a}:{a+3}]"}')
    reduce(0, 32)
    silu(A, range(32, 36), range(36, 40))
    A(f's_and_b32 s22, s16, {rm(P)}\ns_lshl_b32 s22, s22, 20\ns_add_u32 s22, s22, {OFF_SEG}')
    side(A, 's22', 's22', 's34')
    A(f's_lshl_b32 s21, s18, 11\ns_add_u32 s21, s21, s22\ns_lshl_b32 s23, s17, 15\ns_add_u32 s23, s23, s21\ns_add_u32 s24, s23, {MBLK}')
    A(f's_add_u32 s25, s21, {C_PXM}\ns_add_u32 s26, s25, {MBLK}')
    A(f's_lshl_b32 s21, s18, 14\ns_add_u32 s27, s22, s21\ns_add_u32 s27, s27, {C_PXX}\ns_add_u32 s28, s27, {4*MBLK}')
    A(f's_mul_i32 s29, s16, 40960\ns_add_u32 s43, s16, s41\ns_cmp_lt_u32 s43, 64\ns_cselect_b32 s20, 0, {OOB}\nv_add_u32 v5, s20, v4')
    if sync:
        A('s_cmp_eq_u32 s18, 0\ns_cbranch_scc0 L_fin_go\ns_add_u32 s39, s16, 1\ns_min_u32 s39, s39, 62')
        min_wait(A, 'v10', 15, 's39', 's38', P.get('FS', 4))
        A('s_cmp_lt_u32 s16, 62\ns_cbranch_scc1 L_fin_go')
        wait_flags(A, None, None, '63', None, 15, 9, 1)
        A('L_fin_go:\ns_barrier')
    for h in range(8):
        for qt in range(2):
            A(f'buffer_load_dwordx4 v[{PX+8*h+4*qt}:{PX+3+8*h+4*qt}], v4, s[4:7], s{27+qt} offen offset:{(h&3)*1024} sc1')
        if h == 3: A('s_add_u32 s27, s27, 4096\ns_add_u32 s28, s28, 4096')
    for j in range(2):
        for qt in range(2): A(f'buffer_load_dwordx4 a[{PM+16*j+4*qt}:{PM+3+16*j+4*qt}], v4, s[4:7], s{25+qt} offen offset:{j*1024} sc1')
        for i in range(2): A(f'buffer_load_dwordx4 a[{PM+8+16*j+4*i}:{PM+11+16*j+4*i}], v4, s[4:7], s{23+i} offen offset:{j*1024} sc1')
    A('buffer_load_dwordx2 v[40:41], v8, s[12:15], s29 offen\ns_waitcnt vmcnt(25)')
    ld_h('s43')
    for h in range(8):
        A(f's_waitcnt vmcnt({28 + 9 + 14 - 2*h})')
        for qt in range(2):
            for i in range(2):
                a = 16 + 8*qt + 4*i
                A(f'{MF} v[{a}:{a+3}], a[{UXA+32*i+4*h}:{UXA+3+32*i+4*h}], v[{PX+8*h+4*qt}:{PX+3+8*h+4*qt}], {"0" if h == 0 else f"v[{a}:{a+3}]"}')
    for j in range(2):
        A(f's_waitcnt vmcnt({28 + 5 - 5*j})')
        for qt in range(2):
            for i in range(2):
                a = 16 + 8*qt + 4*i
                A(f'{MF} v[{a}:{a+3}], a[{PM+8+16*j+4*i}:{PM+11+16*j+4*i}], a[{PM+16*j+4*qt}:{PM+3+16*j+4*qt}], v[{a}:{a+3}]')
    reduce(16384, 36)
    A('v_lshlrev_b32 v42, 16, v40\nv_lshlrev_b32 v43, 16, v41\nv_and_b32 v44, 0xffff0000, v40\nv_and_b32 v45, 0xffff0000, v41')
    for r in range(4): A(f'v_fmac_f32 v{42+r}, v{32+r}, v{36+r}')
    A('v_cvt_pk_bf16_f32 v40, v42, v44\nv_cvt_pk_bf16_f32 v41, v43, v45\nbuffer_store_dwordx2 v[40:41], v8, s[44:47], s29 offen')
    A('s_mov_b32 s16, s43\ns_cmp_lt_u32 s16, 64\ns_cbranch_scc1 L_fin_loop')
```

```python
import sys; sys.path.insert(0, 'gen')
from asm import Asm
from common import *
import chain, workers
NAME = 'recurrent_scan__memory_aug_recurrent_mem_tr__dense_activation_silu__prompt'
def kd(name, vgpr, acc):
    return f""".section .rodata,"a"
.p2align 6
.amdhsa_kernel {name}
  .amdhsa_next_free_vgpr {vgpr}
  .amdhsa_next_free_sgpr 102
  .amdhsa_accum_offset {acc}
  .amdhsa_group_segment_fixed_size 0
  .amdhsa_kernarg_size 104
  .amdhsa_user_sgpr_count 2
  .amdhsa_user_sgpr_kernarg_segment_ptr 1
  .amdhsa_system_sgpr_workgroup_id_x 1
.end_amdhsa_kernel
"""
def header():
    ref = open(f'cdna_kernels/{NAME}.s.ref').read().split('\n')
    return '\n'.join(l for l in ref if l.startswith(';') and '@launch' not in l) + '\n'
def chain_dispatch(A, P):
    A('s_and_b32 s20, s2, 7\ns_lshr_b32 s21, s2, 3\ns_cmp_lt_u32 s20, 4\ns_cbranch_scc0 L_notchain')
    if P.get('HM', 1): A('s_and_b32 s17, s21, 7\ns_lshl_b32 s16, s20, 3\ns_add_u32 s17, s17, s16')
    else: A('s_and_b32 s17, s21, 7\ns_lshl_b32 s17, s17, 2\ns_add_u32 s17, s17, s20')
    A('s_cmp_lt_u32 s21, 8\ns_cbranch_scc1 L_qk_j\ns_cmp_lt_u32 s21, 16\ns_cbranch_scc1 L_vo_j')
    A('s_sub_u32 s17, s21, 16\ns_lshl_b32 s17, s17, 2\ns_add_u32 s17, s17, s20\ns_cmp_lt_u32 s21, 26\ns_cbranch_scc1 L_own_j')
    A('s_branch L_notchain')
    A('L_qk_j:\ns_branch L_qk\nL_vo_j:\ns_branch L_vo\nL_own_j:\ns_branch L_own')
    A('L_notchain:')
def v1(P):
    A = Asm()
    launches = [('init_kernel', 256, 1024), ('xw_kernel', 256, 122880), (NAME + '_kernel', 256, 122880), ('fin_kernel', 240, 122880)]
    workers.init_kernel(A, P, 'init_kernel')
    prologue(A, 'xw_kernel', P=P)
    A('s_mov_b32 s41, 2\ns_and_b32 s42, s2, 63\ns_and_b32 s17, s2, 31\ns_lshr_b32 s16, s42, 5\ns_lshl_b32 s42, s17, 1\ns_add_u32 s42, s42, s16')
    A('s_cmp_lt_u32 s2, 64\ns_cbranch_scc1 L_x_qkx\ns_cmp_lt_u32 s2, 128\ns_cbranch_scc1 L_x_vox_j\ns_cmp_lt_u32 s2, 240\ns_cbranch_scc1 L_x_ffn_j\ns_endpgm')
    A('L_x_vox_j:\ns_branch L_x_vox\nL_x_ffn_j:\ns_branch L_x_ffn')
    A('L_x_qkx:'); workers.role_qkx(A, P); A('s_endpgm')
    A('L_x_vox:'); workers.role_vox(A, P); A('s_endpgm')
    A('L_x_ffn:\ns_sub_u32 s42, s2, 128\ns_lshr_b32 s17, s42, 4\ns_and_b32 s16, s42, 15\ns_mov_b32 s41, 16\ns_and_b32 s42, s42, 63')
    workers.role_ffn1(A, P); A('s_endpgm')
    prologue(A, NAME + '_kernel', P=P)
    chain_dispatch(A, P); A('s_endpgm')
    A('L_qk:'); chain.role_qk(A, P)
    A('L_vo:'); chain.role_vo(A, P)
    A('L_own:'); chain.role_own(A, P)
    prologue(A, 'fin_kernel', P=P)
    A('s_cmp_lt_u32 s2, 240\ns_cbranch_scc1 L_f_go\ns_endpgm\nL_f_go:')
    A('s_mul_i32 s16, s2, 3277\ns_lshr_b32 s16, s16, 16\ns_mul_i32 s20, s16, 20\ns_sub_u32 s17, s2, s20\ns_mov_b32 s41, 12')
    workers.role_fin(A, P); A('s_endpgm')
    txt = header() + ''.join(f'; @launch kernel={k} grid=({g},1,1) block=(256,1,1) lds={l}\n' for k, g, l in launches)
    txt += '.amdgcn_target "amdgcn-amd-amdhsa--gfx950"\n.text\n' + A.text()
    txt += kd('init_kernel', 128, 128) + kd('xw_kernel', 512, 256) + kd(NAME + '_kernel', 512, 256) + kd('fin_kernel', 512, 256)
    return txt, launches
def main_body(A, P):
    rts(A, P, 0)
    if P.get('ONE'):
        A('s_and_b32 s20, s2, 0x184\ns_cmp_eq_u32 s20, 0x80\ns_cbranch_scc0 L_noinit')
        A('s_lshr_b32 s17, s2, 3\ns_and_b32 s17, s17, 15\ns_lshl_b32 s17, s17, 2\ns_and_b32 s20, s2, 3\ns_add_u32 s17, s17, s20')
        workers.init_phase(A, P)
        A('L_noinit:')
    chain_dispatch(A, P)
    A('s_cmp_lt_u32 s21, 32\ns_cbranch_scc0 L_exit\ns_cmp_lt_u32 s20, 4\ns_cbranch_scc0 L_far')
    if P.get('FFN', 'near') == 'near':
        A('s_sub_u32 s42, s21, 26\ns_lshl_b32 s42, s42, 2\ns_add_u32 s42, s42, s20\ns_cmp_lt_u32 s42, 21\ns_cbranch_scc0 L_exit')
        A('s_mul_i32 s16, s42, 37\ns_lshr_b32 s16, s16, 8\ns_mul_i32 s20, s16, 7\ns_sub_u32 s17, s42, s20\ns_mov_b32 s41, 3\ns_branch L_x_ffn')
    A('L_exit:\ns_endpgm')
    A('L_far:')
    A('s_and_b32 s20, s20, 3\ns_lshr_b32 s17, s21, 1\ns_and_b32 s17, s17, 7')
    A('s_lshl_b32 s20, s20, 3' if P.get('HM', 1) else 's_lshl_b32 s17, s17, 2')
    A('s_add_u32 s17, s17, s20\ns_and_b32 s16, s21, 1')
    A('s_lshl_b32 s42, s17, 1\ns_add_u32 s42, s42, s16\ns_mov_b32 s41, 2')
    if P.get('NB'): A('s_mul_i32 s41, s16, 63\ns_add_u32 s41, s41, 1')
    A('s_cmp_lt_u32 s21, 16\ns_cbranch_scc0 L_x_vox')
    workers.role_qkx(A, P); A('s_branch L_x_done')
    A('L_x_vox:'); workers.role_vox(A, P)
    A('L_x_done:')
    rts(A, P, 2)
    if P.get('NB'):
        A('s_lshr_b32 s21, s2, 4\ns_mul_i32 s16, s21, 52\ns_lshr_b32 s16, s16, 8\ns_mul_i32 s20, s16, 5\ns_sub_u32 s17, s21, s20\ns_and_b32 s20, s2, 3\ns_mul_i32 s20, s20, 5\ns_add_u32 s17, s17, s20')
        A('s_mov_b32 s41, 3\ns_bitcmp1_b32 s2, 3\ns_cselect_b32 s21, s21, 15\ns_cmp_lt_u32 s21, 15\ns_cbranch_scc1 L_x_fin\ns_endpgm\nL_x_fin:')
    elif P.get('FIN', 6) == 4: A('s_lshr_b32 s17, s2, 3\ns_and_b32 s16, s2, 3\ns_mov_b32 s41, 4\ns_cmp_lt_u32 s17, 20\ns_cbranch_scc1 L_x_fin\ns_endpgm\nL_x_fin:')
    else:
        A('s_lshr_b32 s21, s2, 3\ns_mul_i32 s16, s21, 52\ns_lshr_b32 s16, s16, 8\ns_mul_i32 s20, s16, 5\ns_sub_u32 s17, s21, s20\ns_and_b32 s20, s2, 3\ns_mul_i32 s20, s20, 5\ns_add_u32 s17, s17, s20')
        A('s_mov_b32 s41, 6\ns_cmp_lt_u32 s21, 30\ns_cbranch_scc1 L_x_fin\ns_endpgm\nL_x_fin:')
    workers.role_fin(A, P); rts(A, P, 4); A('s_endpgm')
    A('L_x_ffn:'); workers.role_ffn1(A, P); rts(A, P, 2); A('s_endpgm')
    A('L_qk:'); chain.role_qk(A, P)
    A('L_vo:'); chain.role_vo(A, P)
    A('L_own:'); chain.role_own(A, P)
def v2(P):
    P = dict(P, SYNC=1, NFFN=21); GP.clear(); GP.update(P)
    A = Asm()
    launches = [('init_kernel', 256, 1024), (NAME + '_kernel', 256, 122880)]
    workers.init_kernel(A, P, 'init_kernel')
    prologue(A, NAME + '_kernel', P=P)
    main_body(A, P)
    txt = header() + ''.join(f'; @launch kernel={k} grid=({g},1,1) block=(256,1,1) lds={l}\n' for k, g, l in launches)
    txt += '.amdgcn_target "amdgcn-amd-amdhsa--gfx950"\n.text\n' + A.text()
    txt += kd('init_kernel', 128, 128) + kd(NAME + '_kernel', 512, 256)
    return txt, launches
def v3(P):
    P = dict(P, SYNC=1, NFFN=21, ONE=1); GP.clear(); GP.update(P)
    A = Asm()
    launches = [(NAME + '_kernel', 256, 122880)]
    prologue(A, NAME + '_kernel', pol=False, P=P)
    A('s_cmp_lt_u32 s2, 256\ns_cbranch_scc1 L_in\ns_endpgm\nL_in:')
    main_body(A, P)
    txt = header() + '; @launch grid=(256,1,1) block=(256,1,1) lds=122880\n'
    txt += '.amdgcn_target "amdgcn-amd-amdhsa--gfx950"\n.text\n' + A.text()
    txt += kd(NAME + '_kernel', 512, 256)
    return txt, launches
DEF = dict(FQ=21, FO=10, NB=16, KQ=1, KO=1)
if __name__ == '__main__':
    txt, _ = globals()[sys.argv[1] if len(sys.argv) > 1 else 'v3'](DEF)
    open(f'cdna_kernels/{NAME}.s', 'w').write(txt)
    print(len(txt), 'bytes', txt.count('\n'), 'lines')
```

```python
from common import *
SM = 'v_smfmac_f32_16x16x64_bf16'
MF = 'v_mfma_f32_16x16x32_bf16'
L_MEM, L_Q, L_K, L_KX, L_QX = 0, 10240, 13312, 16384, 24576
AR = 100
DPP = 'row_mask:0xf bank_mask:0xf'
def memw(opbase):
    return [grp(lambda half, jp, c: 64*ks + half + 2*OFFS[jp][c], 8192, 0, opbase + 2*ks, opbase + 2*ks + 1) for ks in range(10)]
def chain_lane(A):
    common_lane(A)
    A('v_and_b32 v3, 2, v1\nv_cmp_eq_u32 vcc, 0, v3\nv_mov_b32 v3, 0xeeee\nv_mov_b32 v5, 0x4444\nv_cndmask_b32 v3, v3, v5, vcc')
    A('v_lshrrev_b32 v2, 1, v13\nv_lshlrev_b32 v2, 8, v2\nv_and_b32 v14, 3, v12\nv_lshl_add_u32 v2, v14, 6, v2\nv_and_b32 v14, 1, v13\nv_lshl_add_u32 v2, v14, 5, v2\nv_lshrrev_b32 v14, 2, v12\nv_lshl_add_u32 v2, v14, 3, v2')
    A('v_and_b32 v14, 1, v13\nv_lshlrev_b32 v14, 18, v14\nv_lshrrev_b32 v15, 1, v13\nv_lshlrev_b32 v15, 17, v15')
    A('v_add_u32 v14, v14, v15\nv_lshl_add_u32 v14, v12, 2, v14')
    A('s_lshl_b32 s20, s17, 8\ns_lshl_b32 s21, s18, 6\ns_add_u32 s20, s20, s21\nv_add_u32 v10, s20, v14')
    A(f's_mul_i32 s20, s18, 768\ns_add_u32 s20, s20, {L_Q}\nv_mul_u32_u24 v5, 192, v13\nv_lshl_add_u32 v5, v12, 3, v5\nv_add_u32 v5, s20, v5')
def q_raddr(A):
    A('v_and_b32 v14, 3, v1\nv_mul_u32_u24 v176, 192, v14\nv_lshrrev_b32 v14, 2, v1\nv_lshl_add_u32 v176, v14, 3, v176')
def dma_mem(A, P):
    A('s_mov_b32 m0, 0\ns_add_u32 s20, s22, 4096')
    for c in range(4): A(f'buffer_load_dwordx4 v4, s[8:11], s22 offen offset:{c*1024} sc1 lds')
    A('s_mov_b32 m0, 4096')
    for c in range(4): A(f'buffer_load_dwordx4 v4, s[8:11], s20 offen offset:{c*1024} sc1 lds')
    A('s_mov_b32 m0, 8192')
    for c in range(2): A(f'buffer_load_dwordx4 v4, s[8:11], s23 offen offset:{c*1024} sc1 lds')
def mem_slot(A, P):
    A(f's_and_b32 s20, s16, 3\ns_lshl_b32 s22, s20, 14\ns_add_u32 s22, s22, s19\ns_lshl_b32 s23, s20, 11\ns_add_u32 s23, s23, s19\ns_add_u32 s23, s23, {4*MBLK}')
def trread(A, k): A(f'ds_read_b64_tr_b16 v[{AR+2*k}:{AR+2*k+1}], v2 offset:{L_MEM + k*512}')
def first_pass(A, P, acc0, acc1, opbase, fill=None):
    pg = P.get('PG', 3)
    A(f's_waitcnt vmcnt({10 - pg if pg else 0})\ns_barrier')
    stamp(A, P, 1)
    n0 = 2*pg if pg else 6
    for k in range(n0): trread(A, k)
    issued = n0
    for ks in range(10):
        A(f's_waitcnt lgkmcnt({issued - 2*(ks+1)})')
        A(f'{SM} v[{acc0}:{acc0+3}], v[{AR+4*ks}:{AR+4*ks+3}], {wreg(opbase+2*ks)}, v3')
        if ks == 0 and pg: A('s_waitcnt vmcnt(0)\ns_barrier')
        if issued < 20: trread(A, issued); trread(A, issued + 1); issued += 2
        A(f'{SM} v[{acc1}:{acc1+3}], v[{AR+4*ks}:{AR+4*ks+3}], {wreg(opbase+2*ks+1)}, v3')
        if fill and ks in fill: A(fill[ks])
def slow_check(A, lab_slow, lab_back, lab_retry, lab_fail):
    A(f'{lab_slow}:')
    A(f'v_pk_max_u16 v140, v{AR}, v{AR+1}')
    for k in range(2, 40): A(f'v_pk_max_u16 v140, v140, v{AR+k}')
    A('v_lshrrev_b32 v141, 16, v140\nv_max_u16 v140, v140, v141\nv_and_b32 v140, 0xffff, v140\nv_cmp_eq_u32 vcc, 0xffff, v140')
    A(f's_cbranch_vccz {lab_back}')
    A(f's_add_u32 s24, s24, 1\ns_cmp_gt_u32 s24, 200000\ns_cbranch_scc1 {lab_fail}')
    A(f's_waitcnt lgkmcnt(0)\ns_barrier\ns_branch {lab_retry}')
def stats(A, P):
    rts(A, P, 2)
    if P.get('DBG'):
        A(f's_lshl_b32 s20, s2, 4\ns_add_u32 s20, s20, {OFF_REC + 2*MB}\nv_mov_b32 v20, s24\nv_mov_b32 v21, s16\nv_mov_b32 v22, s26\nv_mov_b32 v23, s27\nv_mov_b32 v24, 0')
        A('buffer_store_dwordx4 v[20:23], v24, s[4:7], s20 offen')
    A('s_endpgm')
def lane0_addr(A, dst, cond):
    A(f'{cond}\ns_cselect_b32 s20, s20, {OOB}\nv_mov_b32 {dst}, s20\nv_cmp_eq_u32 vcc, 0, v1\nv_mov_b32 v15, {OOB}\nv_cndmask_b32 {dst}, v15, {dst}, vcc')
FS = 1280
def flag_cons_addr(A, dst, base, P):
    nc = P.get('NC', 4)
    A(f's_and_b32 s20, s2, {nc-1}\ns_mul_i32 s20, s20, {FS}\ns_add_u32 s20, s20, s19\ns_add_u32 s20, s20, {base}\nv_mov_b32 {dst}, s20')
def flag_prod_addr(A, dst, base, P, cond):
    nc = P.get('NC', 4)
    A(f's_add_u32 s20, s19, {base}\n{cond}\ns_cselect_b32 s20, s20, {OOB}\nv_mul_u32_u24 {dst}, {FS}, v1\nv_add_u32 {dst}, s20, {dst}\nv_cmp_gt_u32 vcc, {nc}, v1\nv_mov_b32 v15, {OOB}\nv_cndmask_b32 {dst}, v15, {dst}, vcc')
def poll(A, P, addr, sval, r0):
    N = P.get('NP', 4); l = A.lab('poll')
    A('s_mov_b32 s21, 0')
    for i in range(N):
        A(f'buffer_load_dword v{r0+i}, {addr}, s[8:11], 0 offen sc1')
        if i < N-1: A('s_sleep 1')
    A(f'{l}:')
    for i in range(N):
        A(f's_waitcnt vmcnt({N-1})\nv_cmp_gt_i32 vcc, {sval}, v{r0+i}\ns_cbranch_vccz {l}_got')
        A(f'buffer_load_dword v{r0+i}, {addr}, s[8:11], 0 offen sc1')
    A(f's_add_u32 s21, s21, 1\ns_cmp_lt_u32 s21, 100000\ns_cbranch_scc1 {l}\ns_mov_b32 s24, 0x7000000\n{l}_got:')
def stamp(A, P, k):
    if P.get('TS'): A(f'{"s_memrealtime" if P["TS"] == 3 else "s_memtime"} s[{80+2*k}:{81+2*k}]')
def stamp_out(A, P, vt):
    if not P.get('TS'): return
    A(f's_waitcnt lgkmcnt(0)\ns_lshl_b32 s20, s2, 2\ns_add_u32 s20, s20, s18\ns_lshl_b32 s20, s20, 7\ns_add_u32 s20, s20, s16\ns_lshl_b32 s20, s20, 5\ns_add_u32 s20, s20, {OFF_TS}')
    for k in range(8): A(f'v_mov_b32 v{vt+k}, s{80+2*k}')
    A(f'v_mov_b32 v{vt+8}, 0\nbuffer_store_dwordx4 v[{vt}:{vt+3}], v{vt+8}, s[4:7], s20 offen\nbuffer_store_dwordx4 v[{vt+4}:{vt+7}], v{vt+8}, s[4:7], s20 offen offset:16')
def cached_wait(A, P, addr, tmp, need, cache):
    if not P.get('SYNC'): return
    l = A.lab('cw')
    A(f's_cmp_ge_i32 {cache}, {need}\ns_cbranch_scc1 {l}_ok\ns_mov_b32 s21, 0\n{l}:')
    A(f'buffer_load_dword v{tmp}, {addr}, s[8:11], 0 offen sc1\ns_add_u32 s20, {need}, 6\ns_waitcnt vmcnt(0)')
    A(f'v_cmp_gt_i32 vcc, s20, v{tmp}\ns_mov_b32 {cache}, s20\ns_cbranch_vccz {l}_ok')
    A(f'v_cmp_gt_i32 vcc, {need}, v{tmp}\ns_mov_b32 {cache}, {need}\ns_cbranch_vccz {l}_ok')
    A(f's_sleep 2\ns_add_u32 s21, s21, 1\ns_cmp_lt_u32 s21, 200000\ns_cbranch_scc1 {l}\n{l}_ok:')
def role_qk(A, P):
    chain_lane(A)
    set_srd(A, 12, 16, 640*8192); set_srd(A, 92, 24, 640*8192)
    load_weights2(A, [(memw(0), 's[12:15]', 'v10', 1), (memw(20), 's[92:95]', 'v10', 1)])
    wait_init(A, P, 171)
    q_raddr(A)
    A(f's_mul_i32 s20, s18, 576\ns_add_u32 s20, s20, {L_K}\nv_lshlrev_b32 v6, 4, v12\nv_and_b32 v14, 1, v13\nv_lshl_add_u32 v6, v14, 3, v6\nv_lshrrev_b32 v14, 1, v13\nv_lshl_add_u32 v6, v14, 2, v6\nv_add_u32 v6, s20, v6')
    A(f'v_and_b32 v14, 1, v13\nv_mul_u32_u24 v7, 576, v14\nv_lshrrev_b32 v14, 3, v12\nv_mul_u32_u24 v14, 288, v14\nv_add_u32 v7, v7, v14')
    A(f'v_lshrrev_b32 v14, 1, v13\nv_lshl_add_u32 v7, v14, 6, v7\nv_bfe_u32 v14, v12, 2, 1\nv_lshl_add_u32 v7, v14, 4, v7\nv_and_b32 v14, 1, v12\nv_lshl_add_u32 v7, v14, 3, v7\nv_add_u32 v7, {L_K}, v7')
    A('v_lshrrev_b32 v8, 3, v12\nv_lshlrev_b32 v8, 8, v8\nv_lshl_add_u32 v8, v13, 5, v8\nv_and_b32 v15, 7, v12\nv_lshl_add_u32 v8, v15, 2, v8')
    A('s_lshr_b32 s20, s17, 4\ns_lshl_b32 s20, s20, 14\ns_and_b32 s21, s17, 15\ns_lshl_b32 s21, s21, 9\ns_add_u32 s20, s20, s21\ns_lshl_b32 s21, s18, 7\ns_add_u32 s20, s20, s21\nv_add_u32 v8, s20, v8')
    A('v_lshlrev_b32 v9, 5, v13\nv_lshrrev_b32 v14, 2, v12\nv_lshl_add_u32 v9, v14, 4, v9\nv_and_b32 v14, 2, v12\nv_lshl_add_u32 v9, v14, 1, v9')
    A('s_lshr_b32 s20, s17, 1\ns_lshl_b32 s20, s20, 8\ns_lshl_b32 s21, s18, 7\ns_add_u32 s20, s20, s21\ns_and_b32 s21, s17, 1\ns_lshl_b32 s21, s21, 3\ns_add_u32 s20, s20, s21\nv_add_u32 v9, s20, v9')
    A(f'v_and_b32 v15, 9, v12\nv_cmp_eq_u32 vcc, 0, v15\nv_mov_b32 v15, {OOB}\nv_cndmask_b32 v9, v15, v9, vcc')
    A('v_and_b32 v10, 8, v12\nv_and_b32 v14, 3, v12\nv_lshl_add_u32 v10, v14, 1, v10\nv_bfe_u32 v14, v12, 2, 1\nv_add_u32 v10, v10, v14\nv_lshlrev_b32 v10, 4, v10\nv_lshl_add_u32 v10, v13, 8, v10')
    A('s_cmp_lt_u32 s18, 2\ns_cbranch_scc1 L_qk_i0\nv_mov_b32 v10, v4\nL_qk_i0:')
    A(f's_and_b32 s20, s18, 1\ns_lshl_b32 s20, s20, 12\nv_add_u32 v177, s20, v4')
    A('s_and_b32 s20, s18, 1\ns_lshl_b32 s20, s20, 4\nv_add_u32 v14, s20, v12\nv_lshlrev_b32 v15, 2, v13\nv_sub_u32 v14, v14, v15')
    for rt in range(2):
        for r in range(4): A(f'v_cmp_le_i32 s[{64+8*rt+2*r}:{65+8*rt+2*r}], {16*rt+r}, v14')
    A(f'v_mov_b32 v178, {f32(-1e9*LOG2E)}')
    A(f'v_cmp_gt_u32 vcc, 16, v1\nv_mov_b32 v15, {OOB}\nv_cndmask_b32 v179, v15, v4, vcc')
    A(f's_and_b32 s20, s18, 1\ns_lshl_b32 s37, s20, 14\ns_lshl_b32 s36, s20, 16\ns_lshl_b32 s20, s17, 8\ns_add_u32 s37, s37, s20\ns_add_u32 s37, s37, {OFF_SEG + C_PXM}')
    A(f's_lshr_b32 s20, s17, 3\ns_lshl_b32 s20, s20, 14\ns_add_u32 s36, s36, s20\ns_and_b32 s20, s17, 7\ns_lshl_b32 s20, s20, 10\ns_add_u32 s36, s36, s20\ns_add_u32 s36, s36, {OFF_SEG + C_PXX}')
    A(f's_mov_b32 s33, {f32(CSC)}')
    A(f's_lshl_b32 s25, s17, 15\ns_add_u32 s25, s25, {kq_place(P)[0]}')
    A('s_mov_b32 s16, 0\ns_mov_b32 s24, 0\ns_mov_b32 s26, 0\ns_mov_b32 s27, 0\ns_mov_b32 s38, -1\ns_mov_b32 s39, -1')
    flag_prod_addr(A, 'v142', FQ, P, f's_lshl_b32 s21, s17, 2\ns_add_u32 s21, s21, s18\ns_cmp_eq_u32 s21, {4*P.get("MQ", 0) + 3}')
    flag_cons_addr(A, 'v143', FO, P)
    A(f's_lshl_b32 s20, s17, 7\ns_add_u32 s20, s20, {FCH}\ns_add_u32 s20, s20, s19')
    lane0_addr(A, 'v180', 's_cmp_eq_u32 s18, 3')
    A(f's_lshl_b32 s20, s17, 8\ns_add_u32 s20, s20, {FWK}\ns_add_u32 s20, s20, s19\nv_and_b32 v181, 1, v1\nv_lshlrev_b32 v181, 7, v181\nv_add_u32 v181, s20, v181')
    A(f's_lshl_b32 s20, s18, 12\ns_add_u32 s25, s25, s20\ns_add_u32 s40, s20, {L_KX}\ns_and_b32 s20, s20, 0x2000\ns_add_u32 s25, s25, s20')
    def kq_wait(need):
        if P.get('SYNC'):
            min_wait(A, 'v181', 144, need, 's38')
    def kq(j): A(f'buffer_load_dwordx4 v4, s[4:7], s42 offen offset:{j*1024} sc1 lds')
    kqinc = f's_add_u32 s25, s25, {0 if P.get("FAKE", 0) & 1 else MB}'
    rts(A, P, 1)
    kq_wait('s16')
    A('s_mov_b32 m0, s40')
    side(A, 's42', 's25', kq_place(P)[1])
    for j in range(4): kq(j)
    A('L_qk_next:')
    A(f's_add_u32 s21, s16, 1\ns_and_b32 s21, s21, {0 if P.get("FAKE", 0) & 1 else rm(P)}\ns_lshl_b32 s21, s21, 20\ns_add_u32 s42, s25, s21')
    side(A, 's42', 's42', kq_place(P)[1])
    A(f's_and_b32 s21, s16, {rm(P)}\ns_lshl_b32 s21, s21, 20\ns_add_u32 s43, s36, s21\ns_add_u32 s44, s37, s21')
    side(A, 's43', 's43', 's34'); A('s_or_b32 s44, s44, s20')
    if P.get('SYNC'):
        A('s_cmp_eq_u32 s18, 3\ns_cbranch_scc0 L_qk_nokq\ns_add_u32 s41, s16, 1')
        kq_wait('s41')
        A('L_qk_nokq:')
    stamp_out(A, P, 150)
    A('s_waitcnt vmcnt(0)\ns_barrier')
    for j in range(8): A(f'ds_read_b128 v[{68+4*j}:{71+4*j}], v10 offset:{L_KX + j*1024}')
    for j in range(4): A(f'ds_read_b128 v[{160+4*j}:{163+4*j}], v177 offset:{L_QX + j*1024}')
    A('v_mov_b32 v149, s16\ns_waitcnt lgkmcnt(0)')
    A('s_cmp_eq_u32 s18, 2\ns_cbranch_scc0 L_qk_nodma')
    mem_slot(A, P)
    A('s_sub_u32 s35, s16, 1')
    poll(A, P, 'v143', 's35', 182)
    delay(A, P.get('DF', 0))
    if P.get('TS') == 3: stamp(A, P, 4)
    A('s_branch L_qk_dma')
    A('L_qk_retry:')
    A('s_cmp_eq_u32 s18, 2\ns_cbranch_scc0 L_qk_nodma')
    A('L_qk_dma:')
    dma_mem(A, P)
    stamp(A, P, 0)
    A('L_qk_nodma:')
    for r in range(16, 44): A(f'v_mov_b32 v{r}, 0')
    A(f's_and_b32 s20, s16, 3\ns_lshl_b32 s28, s20, 15\ns_add_u32 s28, s28, s19\ns_add_u32 s28, s28, {8*MBLK}')
    A(f's_lshr_b32 s21, s20, 1\ns_lshl_b32 s21, s21, 14\ns_and_b32 s20, s20, 1\ns_lshl_b32 s20, s20, 12\ns_add_u32 s29, s20, s21\ns_add_u32 s29, s29, s19\ns_add_u32 s29, s29, {5*MBLK}')
    first_pass(A, P, 16, 20, 0)
    def k(i, ks):
        if P['FQ'] == 10*i + ks: A('buffer_store_dword v149, v142, s[8:11], 0 offen sc1')
        A(f'{SM} v[{24+4*i}:{27+4*i}], v[{AR+4*ks}:{AR+4*ks+3}], {wreg(20+2*ks+i)}, v3')
    if P.get('TS') == 2: stamp(A, P, 4)
    k(0, 0); A('s_nop 2'); k(0, 1); A('s_nop 1')
    A('v_add_f32 v16, v16, v18'); k(0, 2)
    A('v_add_f32 v17, v17, v19\nv_add_f32 v20, v20, v22\nv_cmp_u_f32 vcc, v16, v17'); k(0, 3)
    A('v_add_f32 v21, v21, v23\ns_cbranch_vccnz L_qk_slow\nL_qk_back:')
    A('v_mul_f32 v16, s33, v16'); k(0, 4)
    A('v_mul_f32 v17, s33, v17\nv_mul_f32 v20, s33, v20\nv_mul_f32 v21, s33, v21'); k(0, 5)
    A('v_cvt_pk_bf16_f32 v16, v16, v17\nv_cvt_pk_bf16_f32 v17, v20, v21\nds_write_b64 v5, v[16:17]'); k(0, 6)
    A('s_mov_b32 m0, s40'); k(0, 7); kq(0); k(0, 8); k(0, 9); k(1, 0); k(1, 1); kq(1); k(1, 2)
    A('s_waitcnt lgkmcnt(0)\ns_barrier')
    if P.get('TS') == 2: stamp(A, P, 5)
    k(1, 3)
    for j in range(2): A(f'ds_read_b64_tr_b16 v[{60+2*j}:{61+2*j}], v176 offset:{L_Q + j*768}')
    k(1, 4)
    for j in range(2, 4): A(f'ds_read_b64_tr_b16 v[{60+2*j}:{61+2*j}], v176 offset:{L_Q + j*768}')
    kq(2); k(1, 5)
    A('v_add_f32 v24, v24, v26\nv_add_f32 v25, v25, v27\nv_cvt_pk_bf16_f32 v24, v24, v25'); k(1, 6)
    A('ds_write_b32 v6, v24'); k(1, 7); k(1, 8); kq(3); k(1, 9)
    if P['FQ'] == 20: A('buffer_store_dword v149, v142, s[8:11], 0 offen sc1')
    A('s_waitcnt lgkmcnt(1)')
    if P.get('TS') == 2: stamp(A, P, 6)
    A(f'{SM} v[32:35], v[60:63], v[68:75], v3\ns_add_u32 s16, s16, 1\ns_cmp_lt_u32 s18, 2\ns_nop 0')
    A(f'{SM} v[36:39], v[60:63], v[84:91], v3\ns_nop 1')
    A('v_add_f32 v28, v28, v30\nv_add_f32 v29, v29, v31')
    A(f'{SM} v[32:35], v[64:67], v[76:83], v3')
    A('v_cvt_pk_bf16_f32 v25, v28, v29\nds_write_b32 v6, v25 offset:288')
    A(f'{SM} v[36:39], v[64:67], v[92:99], v3')
    A('s_waitcnt lgkmcnt(0)\ns_barrier')
    stamp(A, P, 2)
    A('s_cbranch_scc0 L_qk_xa')
    def kmr():
        for ks in range(2):
            for half in range(2):
                for rd in range(2):
                    r = 44 + 8*ks + 4*half + 2*rd
                    A(f'ds_read_b64_tr_b16 v[{r}:{r+1}], v7 offset:{ks*1152 + half*128 + rd*32}')
    kmr()
    A('s_cmp_eq_u32 s18, 0\ns_cbranch_scc0 L_qk_u1')
    for u in range(2):
        if u: A('L_qk_u1:')
        A(f'v_add_f32 v32, v{32+u}, v{34+u}\nv_add_f32 v36, v{36+u}, v{38+u}\nv_max_f32 v33, v32, v36')
        A('s_waitcnt lgkmcnt(4)')
        A(f'{SM} v[40:43], v[60:63], v[44:51], v3')
        A('s_waitcnt lgkmcnt(0)')
        A(f'{SM} v[40:43], v[64:67], v[52:59], v3')
        if P.get('TS') == 2: stamp(A, P, 7)
        A(f'v_max_f32_dpp v33, v33, v33 row_ror:8 {DPP}')
        A(f'v_add_f32 v40, v{40+u}, v{42+u}')
        A('v_max_f32 v33, v33, v40')
        for r in (4, 2, 1): A(f'v_max_f32_dpp v33, v33, v33 row_ror:{r} {DPP}')
        A('v_sub_f32 v32, v32, v33\nv_sub_f32 v36, v36, v33\nv_sub_f32 v40, v40, v33')
        A('v_exp_f32 v32, v32\nv_exp_f32 v36, v36\nv_exp_f32 v40, v40')
        A('v_add_f32 v33, v32, v36\nv_fma_f32 v33, v40, 0.5, v33')
        A(f'v_mov_b32_dpp v41, v40 quad_perm:[1,0,3,2] {DPP}')
        for r in (8, 4, 2, 1): A(f'v_add_f32_dpp v33, v33, v33 row_ror:{r} {DPP}')
        A('v_rcp_f32 v33, v33')
        A('v_mul_f32 v32, v32, v33\nv_mul_f32 v36, v36, v33')
        A('v_cvt_pk_bf16_f32 v32, v32, v36\nbuffer_store_dword v32, v8, s[8:11], s28 offen sc1')
        A('v_mul_f32 v40, v40, v33\nv_mul_f32 v41, v41, v33')
        A('v_cvt_pk_bf16_f32 v40, v40, v41\nbuffer_store_dword v40, v9, s[8:11], s29 offen sc1')
        if u == 0: A('s_branch L_qk_sm')
    A('L_qk_sm:')
    stamp(A, P, 3)
    A(f's_xor_b32 s28, s28, {4*MBLK}\ns_xor_b32 s29, s29, {3*MBLK}')
    A('buffer_store_dword v11, v8, s[8:11], s28 offen sc1\nbuffer_store_dword v11, v9, s[8:11], s29 offen sc1')
    A('s_cmp_lt_u32 s16, 64\ns_cbranch_scc1 L_qk_next\ns_branch L_qk_fin')
    A('L_qk_xa:')
    if P['FQ'] > 20: delay(A, (P['FQ'] - 21) * 16); A('buffer_store_dword v149, v142, s[8:11], 0 offen sc1')
    A('s_nop 7')
    for j in range(4):
        for rt in range(2): A(f'{MF} v[{32+4*rt}:{35+4*rt}], v[{68+16*rt+4*j}:{71+16*rt+4*j}], v[{160+4*j}:{163+4*j}], {"0" if j == 0 else f"v[{32+4*rt}:{35+4*rt}]"}')
    kmr()
    A('s_waitcnt lgkmcnt(0)')
    for j in range(4): A(f'{MF} v[40:43], v[{44+4*j}:{47+4*j}], v[{160+4*j}:{163+4*j}], {"0" if j == 0 else "v[40:43]"}')
    for r in range(8): A(f'v_cndmask_b32 v{32+r}, v178, v{32+r}, s[{64+2*r}:{65+2*r}]')
    A('v_max3_f32 v16, v32, v33, v34\nv_max3_f32 v17, v35, v36, v37\nv_max3_f32 v16, v16, v38, v39\nv_max3_f32 v17, v17, v40, v41\nv_max3_f32 v16, v16, v42, v43\nv_max_f32 v16, v16, v17')
    def xred(op):
        A(f'v_mov_b32 v17, v16\nv_permlane32_swap_b32 v16, v17\n{op} v16, v16, v17\nv_mov_b32 v17, v16\nv_permlane16_swap_b32 v16, v17\n{op} v16, v16, v17')
    xred('v_max_f32')
    for r in range(32, 44): A(f'v_sub_f32 v{r}, v{r}, v16')
    for r in range(32, 44): A(f'v_exp_f32 v{r}, v{r}')
    A('v_add_f32 v17, v40, v41\nv_add_f32 v18, v42, v43\nv_add_f32 v16, v32, v33\nv_add_f32 v17, v17, v18')
    for r in range(34, 40): A(f'v_add_f32 v16, v16, v{r}')
    A('v_fma_f32 v16, v17, 0.5, v16')
    xred('v_add_f32')
    A('v_rcp_f32 v16, v16')
    for r in range(32, 44): A(f'v_mul_f32 v{r}, v{r}, v16')
    for r in range(4): A(f'v_cvt_pk_bf16_f32 v{20+r}, v{32+r}, v{36+r}')
    A('v_cvt_pk_bf16_f32 v24, v40, v41\nv_cvt_pk_bf16_f32 v26, v42, v43\nv_cvt_pk_bf16_f32 v25, v40, v41\nv_cvt_pk_bf16_f32 v27, v42, v43')
    A('v_permlane16_swap_b32 v24, v25\nv_permlane16_swap_b32 v26, v27')
    if not P.get('FAKE', 0) & 2: A('buffer_store_dwordx4 v[20:23], v4, s[4:7], s43 offen sc1\nbuffer_store_dwordx4 v[24:27], v179, s[4:7], s44 offen sc1')
    A('s_cmp_lt_u32 s16, 64\ns_cbranch_scc1 L_qk_next')
    A('L_qk_fin:\ns_waitcnt vmcnt(0)\ns_barrier\nbuffer_store_dword v149, v180, s[8:11], 0 offen sc1\ns_branch L_qk_end')
    slow_check(A, 'L_qk_slow', 'L_qk_back', 'L_qk_retry', 'L_qk_end')
    A('L_qk_end:')
    stats(A, P)
def role_vo(A, P):
    chain_lane(A)
    A('v_mov_b32 v9, v10')
    A('v_and_b32 v14, 1, v13\nv_mul_u32_u24 v10, 40960, v14\nv_lshrrev_b32 v14, 1, v13\nv_mul_u32_u24 v14, 10240, v14\nv_add_u32 v10, v10, v14\nv_lshl_add_u32 v10, v12, 2, v10')
    A('s_mul_i32 s20, s17, 163840\ns_mul_i32 s21, s18, 320\ns_add_u32 s20, s20, s21\nv_add_u32 v10, s20, v10')
    g = [grp(lambda half, jp, c: 64*ks + 16*half + OFFS[jp][c], 1280, j*64, 20 + 4*j + ks, 22 + 4*j + ks) for ks in range(2) for j in range(5)]
    set_srd(A, 12, 32, 640*8192); set_srd(A, 92, 40, 32*163840)
    load_weights2(A, [(memw(0), 's[12:15]', 'v9', 1), (g, 's[92:95]', 'v10', 5)])
    wait_init(A, P, 171)
    q_raddr(A)
    for sh, a, b in ((14, 8, 9),):
        A(f's_mul_i32 s20, s18, {10 << sh}\ns_lshl_b32 s21, s17, 8\ns_add_u32 s20, s20, s21\nv_lshlrev_b32 v{a}, 4, v12\nv_add_u32 v{a}, s20, v{a}')
        A(f'v_and_b32 v14, 1, v13\nv_lshl_add_u32 v{b}, v14, {sh}, v{a}\nv_lshrrev_b32 v14, 1, v13\nv_lshl_add_u32 v{b}, v14, 3, v{b}\nv_lshl_add_u32 v{a}, v13, {sh}, v{a}')
    A(f's_mov_b32 s16, 0\ns_mov_b32 s24, 0\ns_mov_b32 s26, 0\ns_mov_b32 s27, 0\ns_mov_b32 s36, {OFF_SEG + C_UMR}')
    flag_cons_addr(A, 'v143', FO, P)
    A(f's_lshl_b32 s20, s17, 7\ns_add_u32 s20, s20, {FCH + 4096}\ns_add_u32 s20, s20, s19')
    lane0_addr(A, 'v180', 's_cmp_eq_u32 s18, 3')
    rts(A, P, 1)
    A('L_vo_step:')
    stamp_out(A, P, 150)
    A('s_cmp_eq_u32 s18, 2\ns_cbranch_scc0 L_vo_nodma')
    mem_slot(A, P)
    A('s_sub_u32 s35, s16, 1')
    poll(A, P, 'v143', 's35', 182)
    delay(A, P.get('DF', 0))
    if P.get('TS') == 3: stamp(A, P, 4)
    A('s_branch L_vo_dma')
    A('L_vo_retry:')
    A('s_cmp_eq_u32 s18, 2\ns_cbranch_scc0 L_vo_nodma')
    A('L_vo_dma:')
    dma_mem(A, P)
    stamp(A, P, 0)
    A('L_vo_nodma:')
    for r in range(16, 24): A(f'v_mov_b32 v{r}, 0')
    for r in range(32, 72): A(f'v_mov_b32 v{r}, 0')
    A('v_mov_b32 v149, s16')
    A(f's_and_b32 s20, s16, 1\ns_mul_i32 s28, s20, {40*MBLK}\ns_add_u32 s28, s28, s19\ns_add_u32 s28, s28, {16*MBLK}')
    first_pass(A, P, 16, 20, 0)
    if P.get('TS') == 2: stamp(A, P, 4)
    A('v_add_f32 v16, v16, v18\nv_add_f32 v17, v17, v19\nv_add_f32 v20, v20, v22\nv_add_f32 v21, v21, v23')
    A('v_cmp_u_f32 vcc, v16, v17\nv_cvt_pk_bf16_f32 v16, v16, v17\nv_cvt_pk_bf16_f32 v17, v20, v21')
    A('s_cbranch_vccnz L_vo_slow\nL_vo_back:')
    A('ds_write_b64 v5, v[16:17]\ns_add_u32 s16, s16, 1\ns_waitcnt lgkmcnt(0)\ns_barrier')
    if P.get('TS') == 2: stamp(A, P, 5)
    for k in range(4): A(f'ds_read_b64_tr_b16 v[{24+2*k}:{25+2*k}], v176 offset:{L_Q + k*768}')
    def o(t, ks): A(f'{SM} v[{32+4*t}:{35+4*t}], v[{24+4*ks}:{27+4*ks}], {wreg(20+2*t+ks)}, v3')
    def fin(t):
        r = 32 + 4*t
        return [f'v_add_f32 v{r}, v{r}, v{r+2}', f'v_add_f32 v{r+1}, v{r+1}, v{r+3}', f'v_cvt_pk_bf16_f32 v{72+t}, v{r}, v{r+1}']
    def tr4(b, so):
        return [f'v_permlane32_swap_b32 v{b}, v{b+2}', f'v_permlane32_swap_b32 v{b+1}, v{b+3}', f'v_permlane16_swap_b32 v{b}, v{b+1}', f'v_permlane16_swap_b32 v{b+2}, v{b+3}',
                f'buffer_store_dwordx4 v[{b}:{b+3}], v8, s[8:11], {so} offen sc1']
    A('s_waitcnt lgkmcnt(2)'); o(0, 0); o(1, 0); A('s_waitcnt lgkmcnt(0)'); o(0, 1); o(1, 1)
    if P.get('TS') == 2: stamp(A, P, 6)
    o(2, 0); A(f's_add_u32 s29, s28, {4*MBLK}\ns_add_u32 s30, s28, {8*MBLK}\ns_nop 0'); o(2, 1); A('s_nop 1')
    J = lambda x: A('\n'.join(x))
    a4 = tr4(72, 's28'); b4 = tr4(76, 's29')
    o(3, 0); J(fin(0)); o(3, 1); J(fin(1)); o(4, 0); J(fin(2)); o(4, 1); A('s_nop 2'); o(5, 0); J(fin(3)); o(5, 1); J(a4[:1]); A('s_nop 0')
    o(6, 0); J(a4[1:2]); J(fin(4)[:1]); o(6, 1); J(fin(4)[1:]); o(7, 0); J(a4[2:4]); o(7, 1); J(a4[4:]); J(fin(5)[:2])
    o(8, 0); J(fin(5)[2:]); J(fin(6)[:2]); o(8, 1); J(fin(6)[2:]); A('s_nop 1'); o(9, 0); J(fin(7)); o(9, 1)
    if P.get('TS') == 2: stamp(A, P, 7)
    J(b4[:2]); J(fin(8)[:2]); J(b4[2:]); J(fin(8)[2:]); J(fin(9))
    A('v_permlane16_swap_b32 v80, v81\nbuffer_store_dwordx2 v[80:81], v9, s[8:11], s30 offen sc1')
    stamp(A, P, 3)
    delay(A, P.get('DR', 0))
    A(f's_sub_u32 s28, s16, 1\ns_and_b32 s28, s28, {rm(P)}\ns_lshl_b32 s28, s28, 20\ns_add_u32 s28, s28, s36')
    side(A, 's28', 's28', 's34')
    A(f's_add_u32 s29, s28, {4*MBLK}\ns_add_u32 s30, s28, {8*MBLK}')
    if not P.get('FAKE', 0) & 2: A('buffer_store_dwordx4 v[72:75], v8, s[4:7], s28 offen sc1\nbuffer_store_dwordx4 v[76:79], v8, s[4:7], s29 offen sc1\nbuffer_store_dwordx2 v[80:81], v9, s[4:7], s30 offen sc1')
    A('s_cmp_lt_u32 s16, 64\ns_cbranch_scc1 L_vo_step')
    A('s_waitcnt vmcnt(0)\ns_barrier\nbuffer_store_dword v149, v180, s[8:11], 0 offen sc1\ns_branch L_vo_end')
    slow_check(A, 'L_vo_slow', 'L_vo_back', 'L_vo_retry', 'L_vo_end')
    A('L_vo_end:')
    stats(A, P)
def role_own(A, P):
    common_lane(A)
    A('s_cmp_eq_u32 s18, 0\ns_cbranch_scc1 L_own_go\ns_endpgm\nL_own_go:')
    wait_init(A, P, 171, False, 4); rts(A, P, 10)
    A('v_and_b32 v3, 1, v1\nv_cmp_eq_u32 vcc, 0, v3\nv_mov_b32 v3, 0xeeee\nv_mov_b32 v5, 0x4444\nv_cndmask_b32 v3, v3, v5, vcc')
    A('v_lshlrev_b32 v6, 2, v1')
    for r in range(8, 11): A(f'v_mov_b32 v{r}, -1')
    A(f's_lshl_b32 s36, s17, 8\ns_mov_b32 s35, {MBLK}\ns_cmp_lt_u32 s17, 32\ns_cbranch_scc1 L_own_a\ns_movk_i32 s35, 2048\ns_add_u32 s36, s36, {4*MBLK - 8192}\nL_own_a:\ns_add_u32 s36, s36, s19')
    A(f's_lshl_b32 s25, s17, 16\ns_add_u32 s25, s25, {OFF_UX}')
    A(f's_lshl_b32 s37, s17, 8\ns_add_u32 s37, s37, {OFF_REC + 16384}')
    A('s_mov_b32 s16, 0\ns_mov_b32 s24, 0\ns_mov_b32 s26, 0\ns_mov_b32 s27, 0\ns_mov_b32 s48, -1\ns_mov_b32 s49, -1')
    flag_prod_addr(A, 'v2', FO, P, f's_cmp_eq_u32 s17, {P.get("MO", 0)}')
    flag_cons_addr(A, 'v7', FQ, P)
    A(f's_xor_b32 s20, s19, 0x2000\ns_add_u32 s20, s20, {FAG}')
    lane0_addr(A, 'v5', f's_cmp_eq_u32 s17, {P.get("MA", 39)}')
    A(f's_and_b32 s21, s2, {3 if P.get("ROT", 1) else 0}')
    for g in range(4):
        A(f's_xor_b32 s20, s21, {g}\ns_lshl_b32 s{56+g}, s20, 14\ns_lshl_b32 s{60+g}, s20, 10\ns_lshr_b32 s{52+g}, s20, 1\ns_lshl_b32 s{52+g}, s{52+g}, 14\ns_and_b32 s20, s20, 1\ns_lshl_b32 s20, s20, 12\ns_add_u32 s{52+g}, s{52+g}, s20')
        if P.get('UXS', 1) == 1: A(f's_lshl_b32 s20, s20, 1\ns_add_u32 s{56+g}, s{56+g}, s20')
    A(f'v_lshlrev_b32 v1, 7, v1\ns_add_u32 s20, s19, {FWV}\nv_add_u32 v1, s20, v1')
    A('L_own_step:')
    if P.get('SYNC'):
        min_wait(A, 'v1', 16, 's16', 's48')
    delay(A, P.get('DU', 0))
    A(f's_and_b32 s21, s16, {0 if P.get("FAKE", 0) & 1 else rm(P)}\ns_mul_i32 s21, s21, {40*65536}\ns_add_u32 s21, s21, s25')
    side(A, 's21', 's21', 's19' if P.get('UXS', 1) == 2 else 's34')
    for j in range(32):
        if (j & 7) == 0: A(f's_xor_b32 s20, s21, s{56 + (j>>3)}')
        if (j & 7) == 4: A('s_add_u32 s20, s20, 4096')
        A(f'buffer_load_dwordx4 v[{64+4*j}:{67+4*j}], v4, s[4:7], s20 offen offset:{(j&3)*1024} sc1')
    A(f's_and_b32 s20, s16, 1\ns_mul_i32 s20, s20, 40\ns_add_u32 s20, s20, s17\ns_add_u32 s20, s20, 16\ns_lshl_b32 s28, s20, 14\ns_add_u32 s28, s28, s19\ns_add_u32 s38, s28, 4096')
    A(f's_and_b32 s20, s16, 3\ns_lshl_b32 s29, s20, 15\ns_add_u32 s29, s29, s19\ns_add_u32 s29, s29, {8*MBLK}')
    A('s_add_u32 s39, s29, s53\ns_add_u32 s40, s29, s54\ns_add_u32 s41, s29, s55\ns_add_u32 s29, s29, s52')
    A(f's_lshr_b32 s21, s20, 1\ns_lshl_b32 s21, s21, 14\ns_and_b32 s20, s20, 1\ns_lshl_b32 s20, s20, 12\ns_add_u32 s30, s20, s21\ns_add_u32 s30, s30, s19\ns_add_u32 s30, s30, {5*MBLK}')
    A('s_add_u32 s20, s16, 1\ns_and_b32 s20, s20, 3\ns_mul_i32 s42, s20, s35\ns_add_u32 s42, s42, s36\ns_xor_b32 s20, s20, 2\ns_mul_i32 s43, s20, s35\ns_add_u32 s43, s43, s36')
    for g in range(4): A(f's_add_u32 s{64+g}, s30, s{60+g}\ns_lshl_b32 s20, s{60+g}, 1\ns_add_u32 s{68+g}, s28, s20')
    A('v_mov_b32 v0, s16')
    if P.get('SYNC'):
        A(f's_add_u32 s20, s16, {P.get("PA", 3)}\ns_min_u32 s20, s20, 63\ns_cmp_ge_i32 s48, s20\ns_cbranch_scc1 L_own_known')
        A('buffer_load_dword v16, v1, s[8:11], 0 offen sc1\ns_waitcnt vmcnt(0)')
        min_lanes(A, 16, 's48')
        A('L_own_known:')
    A('s_waitcnt vmcnt(0)')
    stamp(A, P, 4)
    poll(A, P, 'v7', 's16', 16)
    stamp(A, P, 0)
    if P['FO'] == -1: A('buffer_store_dword v0, v2, s[8:11], 0 offen sc1')
    A('L_own_retry:')
    for j in range(8): A(f'buffer_load_dwordx4 v[{32+4*j}:{35+4*j}], v4, s[8:11], s{68+(j>>1)} offen offset:{(j&1)*1024} sc1')
    fo = P['FO']
    def flag(pos):
        if fo == pos: A('buffer_store_dword v0, v2, s[8:11], 0 offen sc1')
    for j in range(16): A(f'buffer_load_dwordx4 v[{192+4*j}:{195+4*j}], v4, s[8:11], s{[29,39,40,41][j>>2]} offen offset:{(j&3)*1024} sc1')
    for j in range(4): A(f'buffer_load_dwordx4 v[{16+4*j}:{19+4*j}], v4, s[8:11], s{64+j} offen sc1')
    flag(0)
    for r in range(12, 16): A(f'v_mov_b32 v{r}, 0')
    stamp(A, P, 1)
    for j in range(16):
        A(f's_waitcnt vmcnt({19-j + (0 <= fo <= j)})')
        flag(j + 1)
        if j == 0: stamp(A, P, 2)
        A(f'{SM} v[12:15], v[{192+4*j}:{195+4*j}], v[{64+8*j}:{71+8*j}], v3')
    for j in range(4):
        A(f's_waitcnt vmcnt({3-j + (0 <= fo <= 16)})')
        A(f'{SM} v[12:15], v[{16+4*j}:{19+4*j}], v[{32+8*j}:{39+8*j}], v3')
    A('v_add_f32 v12, v12, v13\nv_add_f32 v14, v14, v15\nv_cmp_u_f32 vcc, v12, v14\nv_cvt_pk_bf16_f32 v12, v12, v14')
    A('s_cbranch_vccnz L_own_slow\nL_own_back:')
    A('buffer_store_dword v12, v6, s[8:11], s42 offen sc1')
    stamp(A, P, 3)
    flag(17)
    delay(A, P.get('DP', 0))
    A('buffer_store_dword v11, v6, s[8:11], s43 offen sc1\nbuffer_store_dword v0, v5, s[8:11], 0 offen sc1')
    for j in range(8): A(f'buffer_store_dwordx4 v[8:11], v4, s[8:11], {"s28" if j < 4 else "s38"} offen offset:{(j&3)*1024} sc1')
    if P.get('DBG'):
        A('buffer_store_dword v12, v6, s[4:7], s37 offen\ns_add_u32 s37, s37, 16384')
        A('s_cmp_eq_u32 s16, 2\ns_cbranch_scc0 L_own_nt\ns_memtime s[44:45]\ns_mov_b32 s27, s24\ns_mov_b32 s50, 0\nL_own_nt:')
    if P.get('RT'):
        for k, st in ((1, 0), (3, 1), (4, 10), (5, 20), (6, 30), (7, 40)):
            l = A.lab('rt'); A(f's_cmp_eq_u32 s16, {st}\ns_cbranch_scc0 {l}'); rts(A, P, k); A(f'{l}:')
    A('s_add_u32 s16, s16, 1')
    stamp_out(A, P, 16)
    A('s_cmp_lt_u32 s16, 63\ns_cbranch_scc1 L_own_step')
    if P.get('DBG'): A('s_memtime s[46:47]\ns_waitcnt lgkmcnt(0)\ns_sub_u32 s26, s46, s44\ns_mov_b32 s16, s50')
    A('s_branch L_own_end')
    A('L_own_slow:')
    if P.get('DBG'):
        for lo, hi, unit in ((32, 64, 1), (192, 256, 1 << 10), (16, 32, 1 << 20)):
            A(f'v_max_u32 v13, v{lo}, v{lo+1}')
            for r in range(lo + 2, hi, 2): A(f'v_max3_u32 v13, v13, v{r}, v{r+1}')
            l = A.lab('dg'); A(f'v_cmp_eq_u32 vcc, -1, v13\ns_cbranch_vccz {l}\ns_add_u32 s50, s50, {unit}\n{l}:')
    A('v_max3_u32 v13, v16, v17, v18')
    rs = list(range(19, 64)) + list(range(192, 256))
    A(f'v_max_u32 v13, v13, v{rs.pop()}')
    for a, b in zip(rs[0::2], rs[1::2]): A(f'v_max3_u32 v13, v13, v{a}, v{b}')
    A('v_cmp_eq_u32 vcc, -1, v13\ns_cbranch_vccz L_own_back')
    A('s_add_u32 s24, s24, 1\ns_cmp_gt_u32 s24, 200000\ns_cbranch_scc0 L_own_retry')
    A('L_own_end:')
    stats(A, P)
```

```python
import math, struct
MBLK = 16384
MB = 1 << 20
OFF_XN = 2*MB
OFF_POL = 5*MB
OFF_SEG = 8*MB
C_UMR = 0
C_PXX = 40*MBLK
C_PXM = 48*MBLK
C_H = 50*MBLK
OFF_UX = 72*MB
OFF_KQF = 240*MB
OFF_REC = 320*MB
OFF_TS = OFF_REC + 4*MB
def side(A, dst, src, pol, tmp='s20'):
    A(f's_lshr_b32 {tmp}, {src}, 8\ns_xor_b32 {tmp}, {tmp}, {pol}\ns_and_b32 {tmp}, {tmp}, 0x2000\ns_or_b32 {dst}, {src}, {tmp}')
def rm(P): return P.get('RD', 64) - 1
def kq_place(P): return (OFF_KQF, 's34') if P.get('KQF') else (OFF_SEG, 's19')
FQ = 102*MBLK; FO = 106*MBLK
FA = 7*MBLK
FCH = 97*MBLK
FWK = 98*MBLK
FWV = 99*MBLK
FWF = 100*MBLK
FAG = 101*MBLK
LOG2E = math.log2(math.e)
CSC = 128 ** -0.5 * LOG2E
OOB = '0x40000000'
GP = {}
def f32(x): return hex(struct.unpack('<I', struct.pack('<f', x))[0])
def wreg(o): return f'a[{8*o}:{8*o+7}]' if o < 32 else f'v[{192+8*(o-32)}:{192+8*(o-32)+7}]'
def wreg4(o, half):
    b = 8*o + 4*half
    return f'a[{b}:{b+3}]' if o < 32 else f'v[{b-64}:{b-61}]'
def wsingle(o, r): return ('a', 8*o + r) if o < 32 else ('v', 192 + 8*(o-32) + r)
OFFS = [(0, 2), (1, 3), (4, 6), (5, 7)]
NAT = [(0, 1), (2, 3), (4, 5), (6, 7)]
def delay(A, cyc):
    n = cyc // 64
    while n > 0:
        k = min(n, 100); A(f's_sleep {k}'); n -= k
    r = (cyc % 64) // 4
    if r: A(f's_nop {r-1}')
def load_weights(A, groups, srd, voff):
    T = 128
    n = len(groups)
    def issue(gi):
        for k, o in enumerate(groups[gi][0]):
            A(f's_mov_b32 s30, {o}')
            A(f'buffer_load_dword v{T+16*(gi&3)+k}, {voff}, {srd}, s30 offen')
    for gi in range(min(3, n)): issue(gi)
    for gi in range(n):
        A(f's_waitcnt vmcnt({16*min(n-1-gi, 2)})')
        _, o0, o1 = groups[gi]
        for R in range(8):
            a = T + 16*(gi & 3) + 2*R
            for o, sel in ((o0, 's31'), (o1, 's32')):
                kind, idx = wsingle(o, R)
                if kind == 'v': A(f'v_perm_b32 v{idx}, v{a+1}, v{a}, {sel}')
                else:
                    tmp = 120 + (2*R + (o == o1)) % 8
                    A(f'v_perm_b32 v{tmp}, v{a+1}, v{a}, {sel}')
                    A(f'v_accvgpr_write_b32 a{idx}, v{tmp}')
        if gi + 3 < n: issue(gi + 3)
L_WR = 40960; NR = 5
def load_weights2(A, parts, early=None, late=None, nlate=0):
    T = 128
    A('v_bfe_u32 v160, v1, 2, 2\nv_lshlrev_b32 v160, 6, v160\nv_and_b32 v161, 3, v1\nv_lshl_add_u32 v160, v161, 4, v160')
    A('v_bfe_u32 v161, v1, 4, 1\nv_lshrrev_b32 v162, 5, v1')
    D = []
    for pi, (groups, srd, voff, run) in enumerate(parts):
        o = groups[0][0]; h1, h2 = o[1] - o[0], o[2] - o[0]
        A(f'ds_bpermute_b32 v{164+pi}, v160, {voff}\nv_mul_u32_u24 v163, {h1}, v161\nv_mul_u32_u24 v170, {h2}, v162\ns_waitcnt lgkmcnt(0)\nv_add3_u32 v{164+pi}, v{164+pi}, v163, v170')
        for gr in groups:
            assert all(gr[0][4*d+i] == gr[0][4*d] + h1*(i & 1) + h2*(i >> 1) for d in range(4) for i in range(4))
        for b in range(0, len(groups), run):
            D += [(srd, f'v{164+pi}', gr[0][4*d], gr[1], gr[2], d, len(gr) > 3) for d in range(4) for gr in groups[b:b+run]]
    A(f's_mul_i32 s29, s18, {NR*4096}\ns_add_u32 s29, s29, {L_WR}\nv_lshl_add_u32 v170, v1, 2, s29')
    n = len(D) // 4; pend = []
    def issue(gi):
        for k in range(4):
            srd, v, so = D[4*gi + k][:3]
            A(f's_add_u32 m0, s29, {(gi % NR)*4096 + k*1024}\ns_mov_b32 s30, {so}\nbuffer_load_dwordx4 {v}, {srd}, s30 offen lds')
            pend.append(gi)
        if early and gi == n - NR - 2: early(); pend.append(-1)
        if late and gi == n - 1: late(); pend.extend([-1]*nlate)
    def perms(gi):
        for R in range(8):
            o0, o1, d, il = D[4*gi + (R >> 1)][3:]
            a = T + 16*(gi & 1) + 2*R
            for o, sel in ((o0, 's31'), (o1, 's32')):
                kind, idx = wsingle(o, 2*d + (R & 1))
                if il: kind, idx = wsingle((o0, o1)[d >> 1], 4*(d & 1) + 2*(R & 1) + (o == o1))
                if kind == 'v': A(f'v_perm_b32 v{idx}, v{a+1}, v{a}, {sel}')
                else:
                    tmp = 120 + (2*R + (o == o1)) % 8
                    A(f'v_perm_b32 v{tmp}, v{a+1}, v{a}, {sel}')
                    A(f'v_accvgpr_write_b32 a{idx}, v{tmp}')
    for gi in range(min(NR, n)): issue(gi)
    for gi in range(n):
        last = max(i for i, x in enumerate(pend) if x == gi)
        A(f's_waitcnt vmcnt({len(pend) - 1 - last})')
        if GP.get('RT') == 2 and gi in (0, 4, 5, 10, 15):
            rts(A, GP, 10 + (0, 4, 5, 10, 15).index(gi)); pend.append(-1)
        for R in range(8):
            a = T + 16*(gi & 1) + 2*R
            A(f'ds_read2st64_b32 v[{a}:{a+1}], v170 offset0:{(gi % NR)*16 + 2*R} offset1:{(gi % NR)*16 + 2*R + 1}')
        if gi: perms(gi - 1)
        A('s_waitcnt lgkmcnt(0)')
        if gi + NR < n: issue(gi + NR)
    perms(n - 1)
def grp(rowfn, stride, coff, o0, o1):
    return ([rowfn(half, jp, c) * stride + coff for half in range(2) for jp in range(4) for c in range(2)], o0, o1)
def set_srd(A, base, ptr_off, size):
    if GP.get('WZ') and ptr_off in (16, 24, 32, 40, 64, 72): size = 0
    A(f's_load_dwordx2 s[{base}:{base+1}], s[0:1], {ptr_off}')
    A(f's_mov_b32 s{base+2}, {size}\ns_mov_b32 s{base+3}, 0x20000\ns_waitcnt lgkmcnt(0)')
def common_lane(A):
    A('v_and_b32 v1, 63, v0\nv_lshrrev_b32 v2, 6, v0\nv_readfirstlane_b32 s18, v2')
    A('v_and_b32 v12, 15, v1\nv_lshrrev_b32 v13, 4, v1\nv_lshlrev_b32 v4, 4, v1\nv_mov_b32 v11, -1')
    A('s_mov_b32 s31, 0x05040100\ns_mov_b32 s32, 0x07060302')
def prologue(A, name, pol=True, P={}):
    A(f'.globl {name}\n.p2align 8\n.type {name},@function\n{name}:')
    size = hex(382*MB if any(P.get(k) for k in ('DBG', 'TS', 'RT', 'KQF')) else 254*MB)
    A(f's_load_dwordx2 s[4:5], s[0:1], 96\ns_mov_b32 s6, {size}\ns_mov_b32 s7, 0x20000\ns_mov_b32 s10, 0x200000\ns_mov_b32 s11, 0x20000')
    if P.get('ONE'): A('s_load_dwordx2 s[88:89], s[0:1], 88\ns_mov_b32 s90, 256\ns_mov_b32 s91, 0x20000')
    A('s_waitcnt lgkmcnt(0)')
    A('s_add_u32 s8, s4, 0x1fffff\ns_addc_u32 s9, s5, 0\ns_and_b32 s8, s8, 0xffe00000\ns_add_u32 s4, s4, 0x1fffff\ns_addc_u32 s5, s5, 0\ns_and_b32 s4, s4, 0xffe00000')
    if pol:
        A(f's_load_dword s19, s[4:5], {OFF_POL & 0xfffff}' if OFF_POL < (1 << 20) else f's_mov_b32 s20, {OFF_POL}\ns_load_dword s19, s[4:5], s20')
        A('s_waitcnt lgkmcnt(0)\ns_and_b32 s19, s19, 0x2000\ns_xor_b32 s34, s19, 0x2000')
        if P.get('NOSTEER'): A('s_mov_b32 s34, s19')
def wait_init(A, P, tmp, loaded=False, sleep=2):
    if not P.get('ONE'): return
    l = A.lab('wi')
    A('s_mov_b32 s21, 0')
    if loaded: A(f's_branch {l}_chk')
    A(f'{l}:\nbuffer_load_dword v{tmp}, off, s[88:91], 0 offset:128 sc1\ns_waitcnt vmcnt(0)\n{l}_chk:')
    A(f'v_readfirstlane_b32 s19, v{tmp}\ns_and_b32 s20, s19, 255\ns_cmp_eq_u32 s20, 64\ns_cbranch_scc1 {l}_ok')
    A(f's_sleep {sleep}\ns_add_u32 s21, s21, 1\ns_cmp_lt_u32 s21, 200000\ns_cbranch_scc1 {l}\n{l}_ok:')
    A(f's_cmp_gt_u32 s19, {33*256}\ns_cselect_b32 s19, 0x2000, 0')
    if 'POL' in P: A(f's_mov_b32 s19, {P["POL"]}')
    A('s_xor_b32 s34, s19, 0x2000')
def silu(A, r, t):
    for a, b in zip(r, t): A(f'v_mul_f32 v{b}, s33, v{a}')
    for a, b in zip(r, t): A(f'v_exp_f32 v{b}, v{b}')
    for a, b in zip(r, t): A(f'v_add_f32 v{b}, 1.0, v{b}')
    for a, b in zip(r, t): A(f'v_rcp_f32 v{b}, v{b}')
    for a, b in zip(r, t): A(f'v_mul_f32 v{a}, v{a}, v{b}')
def wait_flags(A, base, lanes_expr, sval, cache, tmpv, tmpa, sleep=2):
    l = A.lab('wf')
    A(f's_mov_b32 s21, 0\n{l}:')
    A(f'buffer_load_dword v{tmpv}, v{tmpa}, s[8:11], 0 offen sc1\ns_waitcnt vmcnt(0)\nv_cmp_gt_i32 vcc, {sval}, v{tmpv}\ns_cbranch_vccz {l}_ok')
    A(f's_sleep {sleep}\ns_add_u32 s21, s21, 1\ns_cmp_lt_u32 s21, 200000\ns_cbranch_scc1 {l}\n{l}_ok:')

def min_wait(A, addr, tmp, need, cache, sleep=2):
    l = A.lab('mw'); D = 'row_mask:0xf bank_mask:0xf'
    A(f's_cmp_ge_i32 {cache}, {need}\ns_cbranch_scc1 {l}_ok\ns_mov_b32 s21, 0\n{l}:')
    A(f'buffer_load_dword v{tmp}, {addr}, s[8:11], 0 offen sc1\ns_waitcnt vmcnt(0)\nv_cmp_gt_i32 vcc, {need}, v{tmp}\ns_cbranch_vccz {l}_got')
    A(f's_sleep {sleep}\ns_add_u32 s21, s21, 1\ns_cmp_lt_u32 s21, 200000\ns_cbranch_scc1 {l}\n{l}_got:')
    min_lanes(A, tmp, cache)
    A(f'{l}_ok:')
def min_lanes(A, tmp, cache):
    D = 'row_mask:0xf bank_mask:0xf'
    for r in (8, 4, 2, 1): A(f'v_min_i32_dpp v{tmp}, v{tmp}, v{tmp} row_ror:{r} {D}')
    A(f'v_readlane_b32 {cache}, v{tmp}, 0\nv_readlane_b32 s20, v{tmp}, 16\nv_readlane_b32 s21, v{tmp}, 32\ns_min_i32 {cache}, {cache}, s20\nv_readlane_b32 s20, v{tmp}, 48\ns_min_i32 {cache}, {cache}, s21\ns_min_i32 {cache}, {cache}, s20')
OFF_RT = OFF_REC + 3*MB
def rts(A, P, k):
    if not P.get('RT'): return
    A(f's_memrealtime s[98:99]\ns_memtime s[96:97]\ns_lshl_b32 s100, s2, 7\ns_add_u32 s100, s100, {OFF_RT + k*8}\ns_waitcnt lgkmcnt(0)\nv_mov_b32 v126, s98\nv_mov_b32 v127, s96\nbuffer_store_dwordx2 v[126:127], off, s[4:7], s100')
```

```python
from common import *
MF = 'v_mfma_f32_16x16x32_bf16'
def role_ln(A, P):
    common_lane(A)
    set_srd(A, 12, 0, 2048*1280)
    ln_load(A, 's17', 20)
    A('s_waitcnt vmcnt(0)')
    ln_compute(A, 's17', 20)
def ln_load(A, tile, r):
    A(f'v_mul_u32_u24 v5, 1280, v12\nv_lshl_add_u32 v5, v13, 4, v5\ns_mul_i32 s20, {tile}, 20480\ns_mul_i32 s21, s18, 320\ns_add_u32 s20, s20, s21')
    for j in range(5): A(f'buffer_load_dwordx4 v[{r+4*j}:{r+3+4*j}], v5, s[12:15], s20 offen offset:{j*64}')
def ln_compute(A, tile, r):
    A('v_lshlrev_b32 v6, 2, v12\ns_lshl_b32 s21, s18, 6\nv_add_u32 v7, s21, v6')
    for j in range(20):
        A(f'v_lshlrev_b32 v{40+2*j}, 16, v{r+j}\nv_and_b32 v{41+2*j}, 0xffff0000, v{r+j}')
    def red(base):
        A('v_mov_b32 v9, v8\nv_permlane32_swap_b32 v8, v9\nv_add_f32 v8, v8, v9\nv_mov_b32 v9, v8\nv_permlane16_swap_b32 v8, v9\nv_add_f32 v8, v8, v9')
        A(f'ds_write_b32 v7, v8 offset:{base}\ns_waitcnt lgkmcnt(0)\ns_barrier')
        A(f'ds_read_b32 v8, v6 offset:{base}\nds_read_b32 v9, v6 offset:{base+64}\nds_read_b32 v10, v6 offset:{base+128}\nds_read_b32 v14, v6 offset:{base+192}')
        A('s_waitcnt lgkmcnt(0)\nv_add_f32 v8, v8, v9\nv_add_f32 v10, v10, v14\nv_add_f32 v8, v8, v10')
    A('v_add_f32 v8, v40, v41\nv_add_f32 v9, v42, v43')
    for j in range(2, 20): A(f'v_add_f32 v8, v8, v{40+2*j}\nv_add_f32 v9, v9, v{41+2*j}')
    A('v_add_f32 v8, v8, v9')
    red(0)
    A(f'v_mul_f32 v8, {f32(1/640)}, v8')
    for j in range(40): A(f'v_sub_f32 v{40+j}, v{40+j}, v8')
    A('v_mul_f32 v8, v40, v40\nv_mul_f32 v9, v41, v41')
    for j in range(1, 20): A(f'v_fmac_f32 v8, v{40+2*j}, v{40+2*j}\nv_fmac_f32 v9, v{41+2*j}, v{41+2*j}')
    A('v_add_f32 v8, v8, v9')
    red(256)
    A(f'v_mov_b32 v9, {f32(1e-5)}\nv_fmac_f32 v9, {f32(1/640)}, v8\nv_rsq_f32 v8, v9')
    for j in range(40): A(f'v_mul_f32 v{40+j}, v{40+j}, v8')
    for j in range(20): A(f'v_cvt_pk_bf16_f32 v{r+j}, v{40+2*j}, v{41+2*j}')
    A(f's_mul_i32 s20, {tile}, 20480\ns_mul_i32 s21, s18, 5120\ns_add_u32 s20, s20, s21\ns_add_u32 s20, s20, {OFF_XN}\ns_add_u32 s21, s20, 4096')
    for j in range(5): A(f'buffer_store_dwordx4 v[{r+4*j}:{r+3+4*j}], v4, s[4:7], {"s20" if j < 4 else "s21"} offen offset:{(j&3)*1024} sc1')
def role_poison(A, P, blk='s17'):
    A(f'v_lshlrev_b32 v110, 4, v0\nv_mov_b32 v111, v110\ns_lshl_b32 s20, {blk}, 14')
    for r in range(112, 116): A(f'v_mov_b32 v{r}, -1')
    l = A.lab('po')
    A(f's_cmp_eq_u32 {blk}, 4\ns_cbranch_scc0 {l}\nv_cmp_gt_u32 vcc, 128, v0\nv_mov_b32 v116, {OOB}\nv_cndmask_b32 v111, v110, v116, vcc\n{l}:')
    for j in range(4):
        A(f'buffer_store_dwordx4 v[112:115], {"v111" if j in (0, 2) else "v110"}, s[8:11], s20 offen sc1\ns_add_u32 s20, s20, 4096')
def role_mem0(A, P):
    common_lane(A)
    set_srd(A, 12, 8, 8*1280)
    A('s_lshl_b32 s20, s17, 2\ns_add_u32 s20, s20, s18')
    A('s_lshr_b32 s21, s20, 1\ns_lshl_b32 s21, s21, 6\ns_and_b32 s22, s20, 1\ns_lshl_b32 s22, s22, 1\ns_add_u32 s21, s21, s22')
    A('v_mul_u32_u24 v5, 2560, v13\nv_lshl_add_u32 v5, v12, 2, v5')
    A('buffer_load_ushort v6, v5, s[12:15], s21 offen\nbuffer_load_ushort v7, v5, s[12:15], s21 offen offset:1280')
    A(f's_lshl_b32 s21, s20, 8\ns_add_u32 s22, s21, {4*MBLK - 8192}\ns_cmp_lt_u32 s20, 32\ns_cselect_b32 s21, s21, s22\ns_add_u32 s22, s21, 8192')
    A('v_lshlrev_b32 v5, 2, v1\ns_waitcnt vmcnt(0)\nv_lshl_or_b32 v6, v7, 16, v6')
    A('buffer_store_dword v6, v5, s[8:11], s21 offen sc1\nbuffer_store_dword v6, v5, s[8:11], s22 offen sc1')
def role_calib(A, P):
    N = P.get('NCAL', 4)
    A('v_mov_b32 v5, 0\nv_mov_b32 v6, 0\nv_and_b32 v9, 31, v0\nv_lshlrev_b32 v9, 2, v9')
    for j in range(N):
        for h in range(2): A(f's_mov_b32 s20, {(112+j)*MBLK + h*8192 + j*1280}\nbuffer_store_dword v6, v9, s[8:11], s20 offen sc1')
    A('s_waitcnt vmcnt(0)\ns_mov_b32 s26, -1\ns_mov_b32 s27, -1')
    for j in range(N):
        for h in range(2):
            A(f's_mov_b32 s20, {(112+j)*MBLK + h*8192 + j*1280}\ns_memtime s[22:23]\ns_waitcnt lgkmcnt(0)')
            A('buffer_load_dword v6, v5, s[8:11], s20 offen sc1\ns_waitcnt vmcnt(0)\ns_memtime s[24:25]\ns_waitcnt lgkmcnt(0)')
            A(f's_sub_u32 s24, s24, s22\ns_min_u32 s{26+h}, s{26+h}, s24')
    A(f's_cmp_le_u32 s26, s27\ns_cselect_b32 s19, 0, 0x2000')
def init_kernel(A, P, name):
    prologue(A, name, pol=False, P=P)
    rts(A, P, 8)
    A('s_mov_b32 s17, s2\ns_cmp_lt_u32 s2, 128\ns_cbranch_scc1 L_i_ln')
    A('s_sub_u32 s17, s2, 128\ns_cmp_eq_u32 s17, 0\ns_cbranch_scc1 L_i_cal\ns_cmp_lt_u32 s17, 112\ns_cbranch_scc1 L_i_po')
    A('s_sub_u32 s17, s17, 112\ns_cmp_lt_u32 s17, 10\ns_cbranch_scc1 L_i_m0\ns_endpgm')
    A('L_i_cal:\nv_lshrrev_b32 v2, 6, v0\nv_readfirstlane_b32 s18, v2\ns_cmp_eq_u32 s18, 0\ns_cbranch_scc1 L_i_cal2\ns_endpgm\nL_i_cal2:')
    role_calib(A, P)
    rts(A, P, 9)
    if 'POL' in P: A(f's_mov_b32 s19, {P["POL"]}')
    A(f'v_mov_b32 v6, s19\nv_mov_b32 v7, s26\nv_mov_b32 v8, s27\ns_mov_b32 s20, {OFF_POL}\nbuffer_store_dwordx3 v[6:8], v5, s[4:7], s20 offen\ns_endpgm')
    A('L_i_po:'); role_poison(A, P); A('s_endpgm')
    A('L_i_m0:'); role_mem0(A, P); A('s_endpgm')
    A('L_i_ln:'); role_ln(A, P); rts(A, P, 9); A('s_endpgm')
def signal_init(A, val):
    A(f'v_cmp_eq_u32 vcc, 0, v0\nv_mov_b32 v5, {OOB}\nv_cndmask_b32 v5, v5, v0, vcc\nv_mov_b32 v6, {val}')
    A('s_waitcnt vmcnt(0)\ns_barrier\ns_cmp_eq_u32 s18, 0\ns_cbranch_scc0 L_i_sig\nbuffer_atomic_add v6, v5, s[88:91], 0 offen sc0 sc1\ns_waitcnt vmcnt(0)')
    A(f'v_readfirstlane_b32 s20, v6\ns_add_u32 s20, s20, {val}\ns_and_b32 s21, s20, 255\ns_cmp_eq_u32 s21, 64\ns_cbranch_scc0 L_i_sig')
    A('v_mov_b32 v6, s20\nbuffer_store_dword v6, v5, s[88:91], 0 offen offset:128 sc1\nL_i_sig:')
def init_phase(A, P):
    common_lane(A)
    set_srd(A, 12, 0, 2048*1280)
    A('s_lshl_b32 s22, s17, 1\ns_add_u32 s23, s22, 1')
    ln_load(A, 's22', 20); ln_load(A, 's23', 80)
    A('s_add_u32 s24, s17, 65\ns_min_u32 s24, s24, 111'); role_poison(A, P, 's24')
    A('s_add_u32 s24, s17, 1'); role_poison(A, P, 's24')
    def vote():
        A('s_mov_b32 s25, 1\ns_cmp_eq_u32 s18, 0\ns_cbranch_scc0 L_i_nov\ns_waitcnt vmcnt(0)')
        A('s_lshl_b32 s24, s24, 14\ns_add_u32 s24, s24, 4096\ns_and_b32 s20, s17, 4\ns_lshl_b32 s20, s20, 11\ns_add_u32 s24, s24, s20')
        for h in range(2):
            A('s_memtime s[26:27]\ns_waitcnt lgkmcnt(0)\nbuffer_load_dword v6, off, s[8:11], s24 sc1\ns_waitcnt vmcnt(0)\ns_memtime s[28:29]\ns_waitcnt lgkmcnt(0)')
            A(f's_sub_u32 s{35+h}, s28, s26\ns_xor_b32 s24, s24, 0x2000')
        A('s_cmp_lt_u32 s36, s35\ns_cselect_b32 s25, 0x2000, 0\ns_xor_b32 s25, s25, s20\ns_lshr_b32 s25, s25, 5\ns_add_u32 s25, s25, 1\nL_i_nov:')
    if P.get('VP', 1) == 0: vote()
    A('s_waitcnt vmcnt(8)')
    ln_compute(A, 's22', 20); ln_compute(A, 's23', 80)
    if P.get('VP', 1) == 1: vote()
    A('s_sub_u32 s17, s17, 30\ns_cmp_lt_u32 s17, 10\ns_cbranch_scc0 L_i_done')
    role_mem0(A, P)
    A('L_i_done:')
    signal_init(A, 's25')
    rts(A, P, 9)
XB = 40960
def xn_dma(A, seg_sreg):
    A(f's_mul_i32 s20, {seg_sreg}, 40960\ns_mul_i32 s21, s18, 10240\ns_add_u32 s20, s20, s21\ns_add_u32 s20, s20, {OFF_XN}\ns_add_u32 s21, s21, s40')
    for j in range(10):
        if (j & 3) == 0: A('s_mov_b32 m0, s21')
        A(f'buffer_load_dwordx4 v4, s[4:7], s20 offen offset:{(j&3)*1024} sc1 lds')
        if (j & 3) == 3: A('s_add_u32 s20, s20, 4096\ns_add_u32 s21, s21, 4096')
def xn_pass(A, nt, acc, mid=None):
    F = 100; NS = 5
    seq = [(kk, rt) for kk in range(20) for rt in range(2)]
    def rd(i):
        kk, rt = seq[i]; A(f'ds_read_b128 v[{F+4*(i%NS)}:{F+3+4*(i%NS)}], v5 offset:{(rt*20+kk)*1024}')
    for i in range(NS - 1): rd(i)
    for i, (kk, rt) in enumerate(seq):
        A(f's_waitcnt lgkmcnt({min(NS-2, 39-i)})')
        for t in range(nt):
            a = acc + 4*(rt*nt + t)
            A(f'{MF} v[{a}:{a+3}], {wreg4(20*(t>>1) + 2*(kk>>1) + (t&1), kk&1)}, v[{F+4*(i%NS)}:{F+3+4*(i%NS)}], {"0" if kk == 0 else f"v[{a}:{a+3}]"}')
            if t == 0 and i + NS - 1 < 40: rd(i + NS - 1)
        if mid and i == mid[0]: mid[1]()
def pack(A, dst, x, y):
    A(f'v_cvt_pk_bf16_f32 v{dst}, v{x}, v{x+1}\nv_cvt_pk_bf16_f32 v{dst+1}, v{y}, v{y+1}\nv_cvt_pk_bf16_f32 v{dst+2}, v{x+2}, v{x+3}\nv_cvt_pk_bf16_f32 v{dst+3}, v{y+2}, v{y+3}')
def natw(opbase, stride, coff):
    return [grp(lambda half, jp, c: 64*ks + 32*half + NAT[jp][c], stride, coff, opbase + 2*ks, opbase + 2*ks + 1) for ks in range(10)]
def xw_weights(A, P, parts):
    A('s_mov_b32 s40, 0')
    early = (lambda: A('buffer_load_dword v171, off, s[88:91], 0 offset:128 sc1')) if P.get('ONE') else None
    def late():
        wait_init(A, P, 171, True); xn_dma(A, 's16')
    if len(parts) == 2 and P.get('REV', 0):
        l = A.lab('rev')
        A(f's_bitcmp1_b32 s16, 0\ns_cbranch_scc0 {l}_a')
        load_weights2(A, parts[::-1], early, late, 10)
        A(f's_branch {l}_b\n{l}_a:')
        load_weights2(A, parts, early, late, 10)
        A(f'{l}_b:')
    else: load_weights2(A, parts, early, late, 10)
def xw_loop(A, P, nm, body, nst, flagbase, nb=0):
    A(f's_lshl_b32 s20, s42, 7\ns_add_u32 s20, s20, {flagbase}\ns_add_u32 s20, s20, s19\ns_cmp_eq_u32 s18, 0\ns_cselect_b32 s20, s20, {OOB}')
    A(f'v_mov_b32 v9, s20\nv_cmp_eq_u32 vcc, 0, v1\nv_mov_b32 v15, {OOB}\nv_cndmask_b32 v9, v15, v9, vcc')
    rts(A, P, 1)
    A('s_waitcnt vmcnt(0)\ns_barrier')
    A(f'{nm}_loop:')
    A(f'v_add_u32 v5, s40, v4\ns_xor_b32 s40, s40, {XB}\ns_sub_u32 s20, s16, 1\nv_mov_b32 v10, s20')
    if nb: A(f's_cmp_lt_u32 s16, {2*nb-1}\ns_cselect_b32 s20, 2, s41\ns_add_u32 s43, s16, s20')
    else: A('s_add_u32 s43, s16, s41')
    A('s_min_u32 s44, s43, 63')
    xn_dma(A, 's44')
    def mid():
        A('s_waitcnt vmcnt(10)\ns_barrier\nbuffer_store_dword v10, v9, s[8:11], 0 offen sc1')
    body(mid)
    A(f's_mov_b32 s16, s43\ns_cmp_lt_u32 s16, 64\ns_waitcnt vmcnt({nst})\ns_barrier\ns_cbranch_scc1 {nm}_loop')
    A('v_mov_b32 v10, 64\ns_waitcnt vmcnt(0)\ns_barrier\nbuffer_store_dword v10, v9, s[8:11], 0 offen sc1')
def role_qkx(A, P):
    common_lane(A)
    A('v_lshlrev_b32 v10, 16, v13\nv_lshl_add_u32 v10, v12, 2, v10\ns_lshl_b32 s20, s17, 8\ns_lshl_b32 s21, s18, 6\ns_add_u32 s20, s20, s21\nv_add_u32 v10, s20, v10')
    set_srd(A, 12, 24, 640*8192); set_srd(A, 92, 16, 640*8192)
    xw_weights(A, P, [(natw(0, 8192, 0), 's[12:15]', 'v10', 1), (natw(20, 8192, 0), 's[92:95]', 'v10', 1)])
    A('v_lshrrev_b32 v8, 1, v13\nv_lshlrev_b32 v8, 10, v8\nv_and_b32 v14, 1, v13\nv_lshl_add_u32 v8, v14, 9, v8\nv_lshl_add_u32 v8, v12, 4, v8')
    A('s_lshr_b32 s20, s18, 1\ns_lshl_b32 s20, s20, 11\ns_and_b32 s21, s18, 1\ns_lshl_b32 s21, s21, 8\ns_add_u32 s20, s20, s21\nv_add_u32 v8, s20, v8')
    A(f's_mov_b32 s33, {f32(CSC)}')
    def body(mid):
        xn_pass(A, 4, 16, (P.get('MQX', 12), mid))
        A(f's_and_b32 s20, s16, {rm(P)}\ns_lshl_b32 s20, s20, 5\ns_add_u32 s20, s20, s17\ns_lshl_b32 s20, s20, 15\ns_add_u32 s20, s20, {kq_place(P)[0]}')
        side(A, 's20', 's20', kq_place(P)[1], 's21')
        for rt in range(2):
            pack(A, 48 + 4*rt, 16 + 16*rt, 20 + 16*rt)
            A(f'buffer_store_dwordx4 v[{48+4*rt}:{51+4*rt}], v8, s[4:7], s20 offen sc1\ns_add_u32 s20, s20, {4096 + 8192*rt}')
        for rt in range(2):
            for r in range(8): A(f'v_mul_f32 v{24+16*rt+r}, s33, v{24+16*rt+r}')
            pack(A, 56 + 4*rt, 24 + 16*rt, 28 + 16*rt)
            A(f'buffer_store_dwordx4 v[{56+4*rt}:{59+4*rt}], v8, s[4:7], s20 offen sc1\ns_add_u32 s20, s20, 4096')
    xw_loop(A, P, 'L_qkx', body, 4, FWK, P.get('NB', 0))
def role_ffn1(A, P):
    common_lane(A)
    A('v_mul_u32_u24 v10, 27648, v13\nv_lshl_add_u32 v10, v12, 2, v10\ns_lshl_b32 s20, s17, 9\ns_lshl_b32 s21, s18, 7\ns_add_u32 s20, s20, s21\nv_add_u32 v10, s20, v10')
    set_srd(A, 12, 64, 640*3456); xw_weights(A, P, [([x for p in zip(natw(0, 3456, 0), natw(20, 3456, 64)) for x in p], 's[12:15]', 'v10', 2)])
    A(f's_lshl_b32 s20, s17, 2\ns_add_u32 s20, s20, s18\ns_cmp_lt_u32 s20, 27\ns_cselect_b32 s20, s20, 0x20000\ns_and_b32 s21, s20, 1\ns_lshr_b32 s20, s20, 1\ns_lshl_b32 s20, s20, 14\ns_lshl_b32 s21, s21, 12\ns_add_u32 s20, s20, s21\nv_add_u32 v8, s20, v4')
    A(f's_mov_b32 s33, {f32(-LOG2E)}')
    def body(mid):
        xn_pass(A, 4, 16, (P.get('MFX', 36), mid))
        A(f's_and_b32 s20, s16, {rm(P)}\ns_lshl_b32 s20, s20, 20\ns_add_u32 s20, s20, {OFF_SEG + C_H}')
        side(A, 's20', 's20', 's34', 's21')
        for rt in range(2):
            for m in range(2):
                b = 16 + 16*rt + 8*m
                silu(A, range(b, b + 8), range(64, 72))
                pack(A, 48 + 8*rt + 4*m, b, b + 4)
                A(f'buffer_store_dwordx4 v[{48+8*rt+4*m}:{51+8*rt+4*m}], v8, s[4:7], s20 offen offset:{m*2048 + rt*1024} sc1')
    xw_loop(A, P, 'L_ffn1', body, 4, FWF)
def role_vox(A, P):
    common_lane(A)
    LV = 2*XB
    A('v_lshlrev_b32 v10, 16, v13\nv_lshl_add_u32 v10, v12, 2, v10\ns_lshl_b32 s20, s17, 8\ns_lshl_b32 s21, s18, 6\ns_add_u32 s20, s20, s21\nv_add_u32 v10, s20, v10')
    A('v_mov_b32 v9, v10')
    A('v_mul_u32_u24 v10, 10240, v13\nv_lshl_add_u32 v10, v12, 2, v10\ns_mul_i32 s20, s17, 163840\ns_mul_i32 s21, s18, 320\ns_add_u32 s20, s20, s21\nv_add_u32 v10, s20, v10')
    g = [grp(lambda half, jp, c: 64*ks + 32*half + OFFS[jp][c], 1280, j*64, 20 + 4*j + ks, 22 + 4*j + ks) for ks in range(2) for j in range(5)]
    set_srd(A, 12, 32, 640*8192); set_srd(A, 92, 40, 32*163840)
    xw_weights(A, P, [(natw(0, 8192, 0), 's[12:15]', 'v9', 1), (g, 's[92:95]', 'v10', 5)])
    A(f's_lshr_b32 s45, s17, 3\ns_lshl_b32 s45, s45, 14\ns_and_b32 s20, s17, 7\ns_lshl_b32 s20, s20, 10\ns_add_u32 s45, s45, s20\ns_add_u32 s45, s45, {OFF_UX}')
    A(['s_mov_b32 s35, s34', 's_lshl_b32 s35, s17, 10\ns_xor_b32 s35, s35, s34', 's_mov_b32 s35, s19'][P.get('UXS', 1)])
    A(f's_lshl_b32 s20, s18, 10\ns_add_u32 s20, s20, {LV}\nv_add_u32 v6, s20, v4\nv_add_u32 v7, {LV}, v4')
    def body(mid):
        xn_pass(A, 2, 16, (P.get('MVX', 24), mid))
        for rt in range(2):
            pack(A, 32 + 4*rt, 16 + 8*rt, 20 + 8*rt)
            A(f'ds_write_b128 v6, v[{32+4*rt}:{35+4*rt}] offset:{rt*4096}')
        A(f's_and_b32 s20, s16, {rm(P)}\ns_mul_i32 s20, s20, 40\ns_mul_i32 s21, s18, 10\ns_add_u32 s20, s20, s21\ns_lshl_b32 s20, s20, 16\ns_add_u32 s20, s20, s45')
        A('s_waitcnt lgkmcnt(0)\ns_barrier')
        for kk in range(4):
            for rt in range(2): A(f'ds_read_b128 v[{40+16*rt+4*kk}:{43+16*rt+4*kk}], v7 offset:{rt*4096 + kk*1024}')
        def fin(t):
            a = 72 + 8*(t % 3)
            return [f'v_cvt_pk_bf16_f32 v{16+4*(t&1)+r}, v{a+r}, v{a+4+r}' for r in range(4)] + \
                   [f'buffer_store_dwordx4 v[{16+4*(t&1)}:{19+4*(t&1)}], v4, s[4:7], s22 offen sc1', 's_add_u32 s20, s20, 65536']
        sd = ['s_lshr_b32 s21, s20, 8', 's_xor_b32 s21, s21, s35', 's_and_b32 s21, s21, 0x2000', 's_or_b32 s22, s20, s21']
        for t in range(10):
            f = fin(t - 1) if t else []
            for kk in range(4):
                if t == 0: A(f's_waitcnt lgkmcnt({6-2*kk})')
                for rt in range(2):
                    a = 72 + 8*(t % 3) + 4*rt
                    A(f'{MF} v[{a}:{a+3}], v[{40+16*rt+4*kk}:{43+16*rt+4*kk}], {wreg4(20 + 2*t + (kk>>1), kk&1)}, {"0" if kk == 0 else f"v[{a}:{a+3}]"}')
                    if t and kk < 2: A('s_nop 0\n' + sd[2*kk + rt])
                    if f and kk >= 2:
                        A('\n'.join(f[:2])); f = f[2:]
            if f: A('\n'.join(f))
        A('\n'.join(sd + fin(9)))
    xw_loop(A, P, 'L_vox', body, 10, FWV, P.get('NB', 0))
def role_fin(A, P):
    sync = P.get('SYNC')
    common_lane(A)
    A('v_mul_u32_u24 v10, 10240, v13\nv_lshl_add_u32 v10, v12, 2, v10\ns_lshl_b32 s20, s17, 6\ns_mul_i32 s21, s18, 573440\ns_add_u32 s20, s20, s21\nv_add_u32 v10, s20, v10')
    g = [grp(lambda half, jp, c: 64*ks + 32*half + OFFS[jp][c], 1280, 0, 2*ks, 2*ks + 1) for ks in range(7)]
    set_srd(A, 12, 72, 1728*1280); load_weights2(A, [(g, 's[12:15]', 'v10', 1)])
    set_srd(A, 12, 0, 2048*1280); set_srd(A, 44, 80, 2048*1280)
    A(f's_mov_b32 s33, {f32(-LOG2E)}')
    A('v_mul_u32_u24 v8, 1280, v12\nv_lshl_add_u32 v8, v13, 4, v8\ns_lshr_b32 s20, s18, 1\ns_mul_i32 s20, s20, 20480\ns_and_b32 s21, s18, 1\ns_lshl_b32 s21, s21, 3')
    A('s_add_u32 s20, s20, s21\ns_lshl_b32 s21, s17, 6\ns_add_u32 s20, s20, s21\nv_add_u32 v8, s20, v8')
    A('s_lshl_b32 s20, s18, 12\nv_add_u32 v6, s20, v4\ns_lshr_b32 s20, s18, 1\ns_lshl_b32 s20, s20, 11\ns_and_b32 s21, s18, 1\ns_lshl_b32 s21, s21, 3\ns_add_u32 s20, s20, s21\nv_add_u32 v7, s20, v4')
    if sync:
        A(f'v_lshlrev_b32 v9, 7, v1\ns_add_u32 s20, s19, {FWV}\nv_add_u32 v2, s20, v9')
        A(f'v_min_u32 v3, {P["NFFN"]-1}, v1\nv_lshlrev_b32 v3, 7, v3\ns_add_u32 s20, s19, {FWF}\nv_add_u32 v3, s20, v3\ns_mov_b32 s36, -1\ns_mov_b32 s37, -1')
        A(f's_add_u32 s20, s19, {FCH}\nv_add_u32 v9, s20, v9\ns_xor_b32 s20, s19, 0x2000\ns_add_u32 s20, s20, {FAG}\nv_mov_b32 v10, s20')
    H = 64; UXA = 112
    def reduce(base, dst):
        for j in range(4): A(f'ds_write_b128 v6, v[{16+4*j}:{19+4*j}] offset:{base + j*1024}')
        A('s_waitcnt lgkmcnt(0)\ns_barrier')
        for w in range(4):
            for i in range(2): A(f'ds_read_b64 v[{16+4*w+2*i}:{17+4*w+2*i}], v7 offset:{base + w*4096 + i*1024}')
        A('s_waitcnt lgkmcnt(0)')
        for r in range(4): A(f'v_add_f32 v{16+r}, v{16+r}, v{20+r}\nv_add_f32 v{24+r}, v{24+r}, v{28+r}')
        for r in range(4): A(f'v_add_f32 v{dst+r}, v{16+r}, v{24+r}')
    PX = 176; PM = 176
    A(f's_mul_i32 s20, s18, 7\ns_and_b32 s21, s20, 1\ns_lshr_b32 s20, s20, 1\ns_lshl_b32 s20, s20, 14\ns_lshl_b32 s22, s21, 12\ns_add_u32 s50, s20, s22\ns_add_u32 s50, s50, {OFF_SEG + C_H}')
    A('s_lshl_b32 s21, s21, 13\ns_add_u32 s48, s21, 4096\ns_sub_u32 s49, 16384, s48')
    A(['s_mov_b32 s35, s34', 's_lshl_b32 s35, s18, 13\ns_xor_b32 s35, s35, s34', 's_mov_b32 s35, s19'][P.get('UXS', 1)])
    def ld_h(seg):
        if sync: A(f's_min_u32 s39, {seg}, 63'); min_wait(A, 'v3', 15, 's39', 's36', 4)
        A(f's_and_b32 s20, {seg}, {rm(P)}\ns_lshl_b32 s20, s20, 20\ns_add_u32 s20, s20, s50')
        side(A, 's20', 's20', 's34', 's21')
        A(f's_cmp_eq_u32 s18, 3\ns_cselect_b32 s22, {OOB}, 0\nv_add_u32 v14, s22, v5')
        for kk in range(14):
            for rt in range(2):
                A(f'buffer_load_dwordx4 v[{H+8*kk+4*rt}:{H+3+8*kk+4*rt}], {"v14" if kk >= 12 else "v5"}, s[4:7], s20 offen offset:{(kk&1)*2048 + rt*1024} sc1')
            if kk & 1: A(f's_add_u32 s20, s20, s{48 + ((kk>>1)&1)}')
    def ld_ux(seg):
        if sync: A(f's_min_u32 s39, {seg}, 63'); min_wait(A, 'v2', 15, 's39', 's37', 4)
        A(f's_and_b32 s22, {seg}, {rm(P)}\ns_mul_i32 s22, s22, 20\ns_add_u32 s22, s22, s17\ns_lshl_b32 s22, s22, 17\ns_lshl_b32 s21, s18, 14\ns_add_u32 s22, s22, s21\ns_add_u32 s22, s22, {OFF_UX}')
        side(A, 's22', 's22', 's35', 's21')
        for i in range(2):
            for h in range(8):
                A(f'buffer_load_dwordx4 a[{UXA+32*i+4*h}:{UXA+3+32*i+4*h}], v5, s[4:7], s22 offen offset:{(h&3)*1024} sc1')
                if h == 3: A('s_add_u32 s22, s22, 4096')
            A(f's_add_u32 s22, s22, {65536-4096}')
    rts(A, P, 3)
    A('v_mov_b32 v5, v4\ns_mov_b32 s38, -1')
    ld_h('s16')
    A(f'v_mov_b32 v15, {OOB}\nbuffer_load_dword v15, v15, s[4:7], 0 offen')
    A('L_fin_loop:')
    ld_ux('s16')
    for kk in range(14):
        A(f's_waitcnt vmcnt({17 + 26 - 2*kk})')
        for rt in range(2):
            for i in range(2):
                a = 16 + 8*rt + 4*i
                A(f'{MF} v[{a}:{a+3}], {wreg4(2*(kk>>1)+i, kk&1)}, v[{H+8*kk+4*rt}:{H+3+8*kk+4*rt}], {"0" if kk == 0 else f"v[{a}:{a+3}]"}')
    reduce(0, 32)
    silu(A, range(32, 36), range(36, 40))
    A(f's_and_b32 s22, s16, {rm(P)}\ns_lshl_b32 s22, s22, 20\ns_add_u32 s22, s22, {OFF_SEG}')
    side(A, 's22', 's22', 's34')
    A(f's_lshl_b32 s21, s18, 11\ns_add_u32 s21, s21, s22\ns_lshl_b32 s23, s17, 15\ns_add_u32 s23, s23, s21\ns_add_u32 s24, s23, {MBLK}')
    A(f's_add_u32 s25, s21, {C_PXM}\ns_add_u32 s26, s25, {MBLK}')
    A(f's_lshl_b32 s21, s18, 14\ns_add_u32 s27, s22, s21\ns_add_u32 s27, s27, {C_PXX}\ns_add_u32 s28, s27, {4*MBLK}')
    A(f's_mul_i32 s29, s16, 40960\ns_add_u32 s43, s16, s41\ns_cmp_lt_u32 s43, 64\ns_cselect_b32 s20, 0, {OOB}\nv_add_u32 v5, s20, v4')
    if sync:
        A('s_cmp_eq_u32 s18, 0\ns_cbranch_scc0 L_fin_go\ns_add_u32 s39, s16, 1\ns_min_u32 s39, s39, 62')
        min_wait(A, 'v10', 15, 's39', 's38', P.get('FS', 4))
        A('s_cmp_lt_u32 s16, 62\ns_cbranch_scc1 L_fin_go')
        wait_flags(A, None, None, '63', None, 15, 9, 1)
        A('L_fin_go:\ns_barrier')
    for h in range(8):
        for qt in range(2):
            A(f'buffer_load_dwordx4 v[{PX+8*h+4*qt}:{PX+3+8*h+4*qt}], v4, s[4:7], s{27+qt} offen offset:{(h&3)*1024} sc1')
        if h == 3: A('s_add_u32 s27, s27, 4096\ns_add_u32 s28, s28, 4096')
    for j in range(2):
        for qt in range(2): A(f'buffer_load_dwordx4 a[{PM+16*j+4*qt}:{PM+3+16*j+4*qt}], v4, s[4:7], s{25+qt} offen offset:{j*1024} sc1')
        for i in range(2): A(f'buffer_load_dwordx4 a[{PM+8+16*j+4*i}:{PM+11+16*j+4*i}], v4, s[4:7], s{23+i} offen offset:{j*1024} sc1')
    A('buffer_load_dwordx2 v[40:41], v8, s[12:15], s29 offen\ns_waitcnt vmcnt(25)')
    ld_h('s43')
    for h in range(8):
        A(f's_waitcnt vmcnt({28 + 9 + 14 - 2*h})')
        for qt in range(2):
            for i in range(2):
                a = 16 + 8*qt + 4*i
                A(f'{MF} v[{a}:{a+3}], a[{UXA+32*i+4*h}:{UXA+3+32*i+4*h}], v[{PX+8*h+4*qt}:{PX+3+8*h+4*qt}], {"0" if h == 0 else f"v[{a}:{a+3}]"}')
    for j in range(2):
        A(f's_waitcnt vmcnt({28 + 5 - 5*j})')
        for qt in range(2):
            for i in range(2):
                a = 16 + 8*qt + 4*i
                A(f'{MF} v[{a}:{a+3}], a[{PM+8+16*j+4*i}:{PM+11+16*j+4*i}], a[{PM+16*j+4*qt}:{PM+3+16*j+4*qt}], v[{a}:{a+3}]')
    reduce(16384, 36)
    A('v_lshlrev_b32 v42, 16, v40\nv_lshlrev_b32 v43, 16, v41\nv_and_b32 v44, 0xffff0000, v40\nv_and_b32 v45, 0xffff0000, v41')
    for r in range(4): A(f'v_fmac_f32 v{42+r}, v{32+r}, v{36+r}')
    A('v_cvt_pk_bf16_f32 v40, v42, v44\nv_cvt_pk_bf16_f32 v41, v43, v45\nbuffer_store_dwordx2 v[40:41], v8, s[44:47], s29 offen')
    A('s_mov_b32 s16, s43\ns_cmp_lt_u32 s16, 64\ns_cbranch_scc1 L_fin_loop')
```

```python
from common import *
SM = 'v_smfmac_f32_16x16x64_bf16'
MF = 'v_mfma_f32_16x16x32_bf16'
L_MEM, L_Q, L_K, L_KX, L_QX = 0, 10240, 13312, 16384, 24576
AR = 100
DPP = 'row_mask:0xf bank_mask:0xf'
def memw(opbase):
    return [grp(lambda half, jp, c: 64*ks + half + 2*OFFS[jp][c], 8192, 0, opbase + 2*ks, opbase + 2*ks + 1) for ks in range(10)]
def chain_lane(A):
    common_lane(A)
    A('v_and_b32 v3, 2, v1\nv_cmp_eq_u32 vcc, 0, v3\nv_mov_b32 v3, 0xeeee\nv_mov_b32 v5, 0x4444\nv_cndmask_b32 v3, v3, v5, vcc')
    A('v_lshrrev_b32 v2, 1, v13\nv_lshlrev_b32 v2, 8, v2\nv_and_b32 v14, 3, v12\nv_lshl_add_u32 v2, v14, 6, v2\nv_and_b32 v14, 1, v13\nv_lshl_add_u32 v2, v14, 5, v2\nv_lshrrev_b32 v14, 2, v12\nv_lshl_add_u32 v2, v14, 3, v2')
    A('v_and_b32 v14, 1, v13\nv_lshlrev_b32 v14, 18, v14\nv_lshrrev_b32 v15, 1, v13\nv_lshlrev_b32 v15, 17, v15')
    A('v_add_u32 v14, v14, v15\nv_lshl_add_u32 v14, v12, 2, v14')
    A('s_lshl_b32 s20, s17, 8\ns_lshl_b32 s21, s18, 6\ns_add_u32 s20, s20, s21\nv_add_u32 v10, s20, v14')
    A(f's_mul_i32 s20, s18, 768\ns_add_u32 s20, s20, {L_Q}\nv_mul_u32_u24 v5, 192, v13\nv_lshl_add_u32 v5, v12, 3, v5\nv_add_u32 v5, s20, v5')
def q_raddr(A):
    A('v_and_b32 v14, 3, v1\nv_mul_u32_u24 v176, 192, v14\nv_lshrrev_b32 v14, 2, v1\nv_lshl_add_u32 v176, v14, 3, v176')
def dma_mem(A, P):
    A('s_mov_b32 m0, 0\ns_add_u32 s20, s22, 4096')
    for c in range(4): A(f'buffer_load_dwordx4 v4, s[8:11], s22 offen offset:{c*1024} sc1 lds')
    A('s_mov_b32 m0, 4096')
    for c in range(4): A(f'buffer_load_dwordx4 v4, s[8:11], s20 offen offset:{c*1024} sc1 lds')
    A('s_mov_b32 m0, 8192')
    for c in range(2): A(f'buffer_load_dwordx4 v4, s[8:11], s23 offen offset:{c*1024} sc1 lds')
def mem_slot(A, P):
    A(f's_and_b32 s20, s16, 3\ns_lshl_b32 s22, s20, 14\ns_add_u32 s22, s22, s19\ns_lshl_b32 s23, s20, 11\ns_add_u32 s23, s23, s19\ns_add_u32 s23, s23, {4*MBLK}')
def trread(A, k): A(f'ds_read_b64_tr_b16 v[{AR+2*k}:{AR+2*k+1}], v2 offset:{L_MEM + k*512}')
def first_pass(A, P, acc0, acc1, opbase, miss, fill=None):
    pg = P.get('PG', 3); can = 1 if P.get('VETO', 0) else 0
    A(f's_waitcnt vmcnt({10 - pg if pg else 0})\ns_barrier')
    stamp(A, P, 1)
    n0 = 2*pg if pg else 6
    for k in range(n0): trread(A, k)
    issued = n0
    for ks in range(10):
        A(f's_waitcnt lgkmcnt({issued - 2*(ks+1) + (1 if can and 0 < ks < n0//2 else 0)})')
        A(f'{SM} v[{acc0}:{acc0+3}], v[{AR+4*ks}:{AR+4*ks+3}], {wreg(opbase+2*ks)}, v3')
        if ks == 0 and pg: A('s_waitcnt vmcnt(0)\ns_barrier')
        if ks == 0 and can: A('ds_read2st64_b32 v[188:189], v187 offset0:0 offset1:8')
        if issued < 20: trread(A, issued); trread(A, issued + 1); issued += 2
        A(f'{SM} v[{acc1}:{acc1+3}], v[{AR+4*ks}:{AR+4*ks+3}], {wreg(opbase+2*ks+1)}, v3')
        if can and ks == n0//2: A('v_max_u32 v188, v188, v189\nv_cmp_eq_u32 vcc, -1, v188')
        if can and ks == n0//2 + 1: A(f's_cbranch_vccnz {miss}')
        if fill and ks in fill: A(fill[ks])
def slow_check(A, P, lab_slow, lab_back, lab_retry, lab_fail):
    A(f'{lab_slow}:')
    A(f'v_pk_max_u16 v140, v{AR}, v{AR+1}')
    for k in range(2, 40): A(f'v_pk_max_u16 v140, v140, v{AR+k}')
    A('v_lshrrev_b32 v141, 16, v140\nv_max_u16 v140, v140, v141\nv_and_b32 v140, 0xffff, v140\nv_cmp_eq_u32 vcc, 0xffff, v140')
    A(f's_cbranch_vccz {lab_back}')
    A(f'{lab_slow}_r:')
    if P.get('VETO'):
        A(f's_cmp_eq_u32 s45, s16\ns_mov_b32 s45, s16\ns_cbranch_scc1 {lab_slow}_x\nbuffer_store_dword v149, v186, s[8:11], 0 offen sc1\n{lab_slow}_x:\ns_nop 4')
    A(f's_add_u32 s24, s24, 1\ns_cmp_gt_u32 s24, 200000\ns_cbranch_scc1 {lab_fail}')
    A(f's_waitcnt lgkmcnt(0)\ns_barrier\ns_branch {lab_retry}')
def stats(A, P):
    rts(A, P, 2)
    if P.get('DBG'):
        A(f's_lshl_b32 s20, s2, 4\ns_add_u32 s20, s20, {OFF_REC + 2*MB}\nv_mov_b32 v20, s24\nv_mov_b32 v21, s16\nv_mov_b32 v22, s26\nv_mov_b32 v23, s27\nv_mov_b32 v24, 0')
        A('buffer_store_dwordx4 v[20:23], v24, s[4:7], s20 offen')
    A('s_endpgm')
def lane0_addr(A, dst, cond):
    A(f'{cond}\ns_cselect_b32 s20, s20, {OOB}\nv_mov_b32 {dst}, s20\nv_cmp_eq_u32 vcc, 0, v1\nv_mov_b32 v15, {OOB}\nv_cndmask_b32 {dst}, v15, {dst}, vcc')
def flag_cons_addr(A, dst, base, P, k):
    A(f's_and_b32 s20, s2, 3\ns_lshl_b32 s20, s20, 14\ns_add_u32 s20, s20, s19\ns_add_u32 s20, s20, {base}')
    A(f'v_min_u32 {dst}, {k-1}, v1\nv_lshlrev_b32 {dst}, 7, {dst}\nv_add_u32 {dst}, s20, {dst}')
def flag_prod_addr(A, dst, base, P, k, wave):
    A(f's_lshl_b32 s20, s21, 7\ns_add_u32 s20, s20, s19\ns_add_u32 s20, s20, {base}\ns_cmp_lt_u32 s21, {k}\ns_cselect_b32 s20, s20, {OOB}\ns_cmp_eq_u32 s18, {wave}\ns_cselect_b32 s20, s20, {OOB}')
    A(f'v_lshl_add_u32 {dst}, v1, 14, s20\nv_cmp_gt_u32 vcc, 4, v1\nv_mov_b32 v15, {OOB}\nv_cndmask_b32 {dst}, v15, {dst}, vcc')
def prod_extra(A, P):
    if not P.get('VETO'): return
    A(f's_lshl_b32 s20, s21, 7\ns_add_u32 s20, s20, s19\ns_add_u32 s20, s20, {FA}\ns_cmp_eq_u32 s18, 3\ns_cselect_b32 s20, s20, {OOB}\nv_writelane_b32 v142, s20, 4')
    A(f's_lshr_b32 s21, s21, 2\ns_and_b32 s21, s21, {P["VETO"]-1}\ns_add_u32 s21, s21, 1'); flag_prod_addr(A, 'v186', FQ, P, 64, 3)
    A('v_and_b32 v187, 31, v1\nv_lshlrev_b32 v187, 2, v187\nv_lshl_add_u32 v187, v1, 7, v187')
def prod_index(A, vo):
    A(f's_and_b32 s21, s2, 0x3b\ns_add_u32 s21, s21, {4*vo}')
def poll(A, P, addr, sval, r0, anyl=False):
    N = P.get('NP', 4); l = A.lab('poll')
    A('s_mov_b32 s21, 0')
    for i in range(N):
        A(f'buffer_load_dword v{r0+i}, {addr}, s[8:11], 0 offen sc1')
        if i < N-1: A('s_sleep 1')
    A(f'{l}:')
    for i in range(N):
        if anyl: A(f's_waitcnt vmcnt({N-1})\nv_cmp_le_i32 vcc, {sval}, v{r0+i}\ns_cbranch_vccnz {l}_got')
        else: A(f's_waitcnt vmcnt({N-1})\nv_cmp_gt_i32 vcc, {sval}, v{r0+i}\ns_cbranch_vccz {l}_got')
        A(f'buffer_load_dword v{r0+i}, {addr}, s[8:11], 0 offen sc1')
    A(f's_add_u32 s21, s21, 1\ns_cmp_lt_u32 s21, 100000\ns_cbranch_scc1 {l}\ns_mov_b32 s24, 0x7000000\n{l}_got:')
def stamp(A, P, k):
    if P.get('TS'): A(f'{"s_memrealtime" if P["TS"] == 3 else "s_memtime"} s[{80+2*k}:{81+2*k}]')
def stamp_out(A, P, vt):
    if not P.get('TS'): return
    A(f's_waitcnt lgkmcnt(0)\ns_lshl_b32 s20, s2, 2\ns_add_u32 s20, s20, s18\ns_lshl_b32 s20, s20, 7\ns_add_u32 s20, s20, s16\ns_lshl_b32 s20, s20, 5\ns_add_u32 s20, s20, {OFF_TS}')
    for k in range(8): A(f'v_mov_b32 v{vt+k}, s{80+2*k}')
    A(f'v_mov_b32 v{vt+8}, 0\nbuffer_store_dwordx4 v[{vt}:{vt+3}], v{vt+8}, s[4:7], s20 offen\nbuffer_store_dwordx4 v[{vt+4}:{vt+7}], v{vt+8}, s[4:7], s20 offen offset:16')
def cached_wait(A, P, addr, tmp, need, cache):
    if not P.get('SYNC'): return
    l = A.lab('cw')
    A(f's_cmp_ge_i32 {cache}, {need}\ns_cbranch_scc1 {l}_ok\ns_mov_b32 s21, 0\n{l}:')
    A(f'buffer_load_dword v{tmp}, {addr}, s[8:11], 0 offen sc1\ns_add_u32 s20, {need}, 6\ns_waitcnt vmcnt(0)')
    A(f'v_cmp_gt_i32 vcc, s20, v{tmp}\ns_mov_b32 {cache}, s20\ns_cbranch_vccz {l}_ok')
    A(f'v_cmp_gt_i32 vcc, {need}, v{tmp}\ns_mov_b32 {cache}, {need}\ns_cbranch_vccz {l}_ok')
    A(f's_sleep 2\ns_add_u32 s21, s21, 1\ns_cmp_lt_u32 s21, 200000\ns_cbranch_scc1 {l}\n{l}_ok:')
def role_qk(A, P):
    chain_lane(A)
    set_srd(A, 12, 16, 640*8192); set_srd(A, 92, 24, 640*8192)
    load_weights2(A, [(memw(0), 's[12:15]', 'v10', 1), (memw(20), 's[92:95]', 'v10', 1)])
    wait_init(A, P, 171)
    q_raddr(A)
    A(f's_mul_i32 s20, s18, 576\ns_add_u32 s20, s20, {L_K}\nv_lshlrev_b32 v6, 4, v12\nv_and_b32 v14, 1, v13\nv_lshl_add_u32 v6, v14, 3, v6\nv_lshrrev_b32 v14, 1, v13\nv_lshl_add_u32 v6, v14, 2, v6\nv_add_u32 v6, s20, v6')
    A(f'v_and_b32 v14, 1, v13\nv_mul_u32_u24 v7, 576, v14\nv_lshrrev_b32 v14, 3, v12\nv_mul_u32_u24 v14, 288, v14\nv_add_u32 v7, v7, v14')
    A(f'v_lshrrev_b32 v14, 1, v13\nv_lshl_add_u32 v7, v14, 6, v7\nv_bfe_u32 v14, v12, 2, 1\nv_lshl_add_u32 v7, v14, 4, v7\nv_and_b32 v14, 1, v12\nv_lshl_add_u32 v7, v14, 3, v7\nv_add_u32 v7, {L_K}, v7')
    A('v_lshrrev_b32 v8, 3, v12\nv_lshlrev_b32 v8, 8, v8\nv_lshl_add_u32 v8, v13, 5, v8\nv_and_b32 v15, 7, v12\nv_lshl_add_u32 v8, v15, 2, v8')
    A('s_lshr_b32 s20, s17, 4\ns_lshl_b32 s20, s20, 14\ns_and_b32 s21, s17, 15\ns_lshl_b32 s21, s21, 9\ns_add_u32 s20, s20, s21\ns_lshl_b32 s21, s18, 7\ns_add_u32 s20, s20, s21\nv_add_u32 v8, s20, v8')
    A('v_lshlrev_b32 v9, 5, v13\nv_lshrrev_b32 v14, 2, v12\nv_lshl_add_u32 v9, v14, 4, v9\nv_and_b32 v14, 2, v12\nv_lshl_add_u32 v9, v14, 1, v9')
    A('s_lshr_b32 s20, s17, 1\ns_lshl_b32 s20, s20, 8\ns_lshl_b32 s21, s18, 7\ns_add_u32 s20, s20, s21\ns_and_b32 s21, s17, 1\ns_lshl_b32 s21, s21, 3\ns_add_u32 s20, s20, s21\nv_add_u32 v9, s20, v9')
    A(f'v_and_b32 v15, 9, v12\nv_cmp_eq_u32 vcc, 0, v15\nv_mov_b32 v15, {OOB}\nv_cndmask_b32 v9, v15, v9, vcc')
    A('v_and_b32 v10, 8, v12\nv_and_b32 v14, 3, v12\nv_lshl_add_u32 v10, v14, 1, v10\nv_bfe_u32 v14, v12, 2, 1\nv_add_u32 v10, v10, v14\nv_lshlrev_b32 v10, 4, v10\nv_lshl_add_u32 v10, v13, 8, v10')
    A('s_cmp_lt_u32 s18, 2\ns_cbranch_scc1 L_qk_i0\nv_mov_b32 v10, v4\nL_qk_i0:')
    A(f's_and_b32 s20, s18, 1\ns_lshl_b32 s20, s20, 12\nv_add_u32 v177, s20, v4')
    A('s_and_b32 s20, s18, 1\ns_lshl_b32 s20, s20, 4\nv_add_u32 v14, s20, v12\nv_lshlrev_b32 v15, 2, v13\nv_sub_u32 v14, v14, v15')
    for rt in range(2):
        for r in range(4): A(f'v_cmp_le_i32 s[{64+8*rt+2*r}:{65+8*rt+2*r}], {16*rt+r}, v14')
    A(f'v_mov_b32 v178, {f32(-1e9*LOG2E)}')
    A(f'v_cmp_gt_u32 vcc, 16, v1\nv_mov_b32 v15, {OOB}\nv_cndmask_b32 v179, v15, v4, vcc')
    A(f's_and_b32 s20, s18, 1\ns_lshl_b32 s37, s20, 14\ns_lshl_b32 s36, s20, 16\ns_lshl_b32 s20, s17, 8\ns_add_u32 s37, s37, s20\ns_add_u32 s37, s37, {OFF_SEG + C_PXM}')
    A(f's_lshr_b32 s20, s17, 3\ns_lshl_b32 s20, s20, 14\ns_add_u32 s36, s36, s20\ns_and_b32 s20, s17, 7\ns_lshl_b32 s20, s20, 10\ns_add_u32 s36, s36, s20\ns_add_u32 s36, s36, {OFF_SEG + C_PXX}')
    A(f's_mov_b32 s33, {f32(CSC)}')
    A(f's_lshl_b32 s25, s17, 15\ns_add_u32 s25, s25, {kq_place(P)[0]}')
    A('s_mov_b32 s16, 0\ns_mov_b32 s45, -1\ns_mov_b32 s51, -1\ns_mov_b32 s24, 0\ns_mov_b32 s26, 0\ns_mov_b32 s27, 0\ns_mov_b32 s38, -1\ns_mov_b32 s39, -1')
    prod_index(A, 0); flag_prod_addr(A, 'v142', FQ, P, P['KQ'], 3); prod_extra(A, P)
    flag_cons_addr(A, 'v143', FO, P, P['KO'])
    A(f's_lshl_b32 s20, s17, 7\ns_add_u32 s20, s20, {FCH}\ns_add_u32 s20, s20, s19')
    lane0_addr(A, 'v180', 's_cmp_eq_u32 s18, 3')
    A(f's_lshl_b32 s20, s17, 8\ns_add_u32 s20, s20, {FWK}\ns_add_u32 s20, s20, s19\nv_and_b32 v181, 1, v1\nv_lshlrev_b32 v181, 7, v181\nv_add_u32 v181, s20, v181')
    A(f's_lshl_b32 s20, s18, 12\ns_add_u32 s25, s25, s20\ns_add_u32 s40, s20, {L_KX}\ns_and_b32 s20, s20, 0x2000\ns_add_u32 s25, s25, s20')
    def kq_wait(need):
        if P.get('SYNC'):
            min_wait(A, 'v181', 144, need, 's38')
    def kq(j): A(f'buffer_load_dwordx4 v4, s[4:7], s42 offen offset:{j*1024} sc1 lds')
    kqinc = f's_add_u32 s25, s25, {0 if P.get("FAKE", 0) & 1 else MB}'
    rts(A, P, 1)
    kq_wait('s16')
    A('s_mov_b32 m0, s40')
    side(A, 's42', 's25', kq_place(P)[1])
    for j in range(4): kq(j)
    A('s_waitcnt vmcnt(0)\nL_qk_next:')
    A(f's_add_u32 s21, s16, 1\ns_and_b32 s21, s21, {0 if P.get("FAKE", 0) & 1 else rm(P)}\ns_lshl_b32 s21, s21, 20\ns_add_u32 s42, s25, s21')
    side(A, 's42', 's42', kq_place(P)[1])
    A(f's_and_b32 s21, s16, {rm(P)}\ns_lshl_b32 s21, s21, 20\ns_add_u32 s43, s36, s21\ns_add_u32 s44, s37, s21')
    side(A, 's43', 's43', 's34'); A('s_or_b32 s44, s44, s20')
    if P.get('SYNC'):
        A('s_cmp_eq_u32 s18, 0\ns_cbranch_scc0 L_qk_nokq\ns_add_u32 s41, s16, 1')
        kq_wait('s41')
        A('L_qk_nokq:')
    A(f's_waitcnt vmcnt({0 if P.get("FAKE", 0) & 2 else 2})\ns_barrier')
    stamp_out(A, P, 150)
    for j in range(8): A(f'ds_read_b128 v[{68+4*j}:{71+4*j}], v10 offset:{L_KX + j*1024}')
    for j in range(4): A(f'ds_read_b128 v[{160+4*j}:{163+4*j}], v177 offset:{L_QX + j*1024}')
    A('v_mov_b32 v149, s16\ns_waitcnt lgkmcnt(0)')
    A('s_cmp_eq_u32 s18, 1\ns_cbranch_scc0 L_qk_nodma')
    mem_slot(A, P)
    A('s_sub_u32 s35, s16, 1')
    poll(A, P, 'v143', 's35', 182)
    delay(A, P.get('DF', 0))
    if P.get('TS') == 3: stamp(A, P, 4)
    A('s_branch L_qk_dma')
    A('L_qk_retry:')
    A('s_cmp_eq_u32 s18, 1\ns_cbranch_scc0 L_qk_nodma')
    A('L_qk_dma:')
    dma_mem(A, P)
    stamp(A, P, 0)
    A('L_qk_nodma:')
    for r in range(16, 44): A(f'v_mov_b32 v{r}, 0')
    A(f's_and_b32 s20, s16, 3\ns_lshl_b32 s28, s20, 15\ns_add_u32 s28, s28, s19\ns_add_u32 s28, s28, {8*MBLK}')
    A(f's_lshr_b32 s21, s20, 1\ns_lshl_b32 s21, s21, 14\ns_and_b32 s20, s20, 1\ns_lshl_b32 s20, s20, 12\ns_add_u32 s29, s20, s21\ns_add_u32 s29, s29, s19\ns_add_u32 s29, s29, {5*MBLK}')
    first_pass(A, P, 16, 20, 0, 'L_qk_slow_r')
    def k(i, ks):
        if P['FQ'] == 10*i + ks: A('buffer_store_dword v149, v142, s[8:11], 0 offen sc1')
        A(f'{SM} v[{24+4*i}:{27+4*i}], v[{AR+4*ks}:{AR+4*ks+3}], {wreg(20+2*ks+i)}, v3')
    if P.get('TS') == 2: stamp(A, P, 4)
    k(0, 0); A('s_nop 2'); k(0, 1); A('s_nop 1')
    A('v_add_f32 v16, v16, v18'); k(0, 2)
    A('v_add_f32 v17, v17, v19\nv_add_f32 v20, v20, v22\nv_cmp_u_f32 vcc, v16, v17'); k(0, 3)
    A('v_add_f32 v21, v21, v23\ns_cbranch_vccnz L_qk_slow\nL_qk_back:')
    A('v_mul_f32 v16, s33, v16'); k(0, 4)
    A('v_mul_f32 v17, s33, v17\nv_mul_f32 v20, s33, v20\nv_mul_f32 v21, s33, v21'); k(0, 5)
    A('v_cvt_pk_bf16_f32 v16, v16, v17\nv_cvt_pk_bf16_f32 v17, v20, v21\nds_write_b64 v5, v[16:17]'); k(0, 6)
    A('s_mov_b32 m0, s40'); k(0, 7); kq(0); k(0, 8); k(0, 9); k(1, 0); k(1, 1); kq(1); k(1, 2)
    A('s_waitcnt lgkmcnt(0)\ns_barrier')
    if P.get('TS') == 2: stamp(A, P, 5)
    k(1, 3)
    for j in range(2): A(f'ds_read_b64_tr_b16 v[{60+2*j}:{61+2*j}], v176 offset:{L_Q + j*768}')
    k(1, 4)
    for j in range(2, 4): A(f'ds_read_b64_tr_b16 v[{60+2*j}:{61+2*j}], v176 offset:{L_Q + j*768}')
    kq(2); k(1, 5)
    A('v_add_f32 v24, v24, v26\nv_add_f32 v25, v25, v27\nv_cvt_pk_bf16_f32 v24, v24, v25'); k(1, 6)
    A('ds_write_b32 v6, v24'); k(1, 7); k(1, 8); kq(3); k(1, 9)
    if P['FQ'] == 20: A('buffer_store_dword v149, v142, s[8:11], 0 offen sc1')
    A('s_waitcnt lgkmcnt(1)')
    if P.get('TS') == 2: stamp(A, P, 6)
    A(f'{SM} v[32:35], v[60:63], v[68:75], v3\ns_add_u32 s16, s16, 1\ns_cmp_lt_u32 s18, 2\ns_nop 0')
    A(f'{SM} v[36:39], v[60:63], v[84:91], v3\ns_nop 1')
    A('v_add_f32 v28, v28, v30\nv_add_f32 v29, v29, v31')
    A(f'{SM} v[32:35], v[64:67], v[76:83], v3')
    A('v_cvt_pk_bf16_f32 v25, v28, v29\nds_write_b32 v6, v25 offset:288')
    A(f'{SM} v[36:39], v[64:67], v[92:99], v3')
    A('s_waitcnt lgkmcnt(0)\ns_barrier')
    stamp(A, P, 2)
    A('s_cbranch_scc0 L_qk_xa')
    def kmr():
        for ks in range(2):
            for half in range(2):
                for rd in range(2):
                    r = 44 + 8*ks + 4*half + 2*rd
                    A(f'ds_read_b64_tr_b16 v[{r}:{r+1}], v7 offset:{ks*1152 + half*128 + rd*32}')
    kmr()
    A('s_cmp_eq_u32 s18, 0\ns_cbranch_scc0 L_qk_u1')
    for u in range(2):
        if u: A('L_qk_u1:')
        A(f'v_add_f32 v32, v{32+u}, v{34+u}\nv_add_f32 v36, v{36+u}, v{38+u}\nv_max_f32 v33, v32, v36')
        A('s_waitcnt lgkmcnt(4)')
        A(f'{SM} v[40:43], v[60:63], v[44:51], v3')
        A('s_waitcnt lgkmcnt(0)')
        A(f'{SM} v[40:43], v[64:67], v[52:59], v3')
        if P.get('TS') == 2: stamp(A, P, 7)
        A(f'v_max_f32_dpp v33, v33, v33 row_ror:8 {DPP}')
        A(f'v_add_f32 v40, v{40+u}, v{42+u}')
        A('v_max_f32 v33, v33, v40')
        for r in (4, 2, 1): A(f'v_max_f32_dpp v33, v33, v33 row_ror:{r} {DPP}')
        A('v_sub_f32 v32, v32, v33\nv_sub_f32 v36, v36, v33\nv_sub_f32 v40, v40, v33')
        A('v_exp_f32 v32, v32\nv_exp_f32 v36, v36\nv_exp_f32 v40, v40')
        A('v_add_f32 v33, v32, v36\nv_fma_f32 v33, v40, 0.5, v33')
        A(f'v_mov_b32_dpp v41, v40 quad_perm:[1,0,3,2] {DPP}')
        for r in (8, 4, 2, 1): A(f'v_add_f32_dpp v33, v33, v33 row_ror:{r} {DPP}')
        A('v_rcp_f32 v33, v33')
        A('v_mul_f32 v32, v32, v33\nv_mul_f32 v36, v36, v33')
        A('v_cvt_pk_bf16_f32 v32, v32, v36\nbuffer_store_dword v32, v8, s[8:11], s28 offen sc1')
        A('v_mul_f32 v40, v40, v33\nv_mul_f32 v41, v41, v33')
        A('v_cvt_pk_bf16_f32 v40, v40, v41\nbuffer_store_dword v40, v9, s[8:11], s29 offen sc1')
        if u == 0: A('s_branch L_qk_sm')
    A('L_qk_sm:')
    stamp(A, P, 3)
    A(f's_xor_b32 s28, s28, {4*MBLK}\ns_xor_b32 s29, s29, {3*MBLK}')
    A('buffer_store_dword v11, v8, s[8:11], s28 offen sc1\nbuffer_store_dword v11, v9, s[8:11], s29 offen sc1')
    A('s_cmp_lt_u32 s16, 64\ns_cbranch_scc1 L_qk_next\ns_branch L_qk_fin')
    A('L_qk_xa:')
    if P['FQ'] > 20: delay(A, (P['FQ'] - 21) * 16); A('buffer_store_dword v149, v142, s[8:11], 0 offen sc1')
    A('s_nop 7')
    for j in range(4):
        for rt in range(2): A(f'{MF} v[{32+4*rt}:{35+4*rt}], v[{68+16*rt+4*j}:{71+16*rt+4*j}], v[{160+4*j}:{163+4*j}], {"0" if j == 0 else f"v[{32+4*rt}:{35+4*rt}]"}')
    kmr()
    A('s_waitcnt lgkmcnt(0)')
    for j in range(4): A(f'{MF} v[40:43], v[{44+4*j}:{47+4*j}], v[{160+4*j}:{163+4*j}], {"0" if j == 0 else "v[40:43]"}')
    for r in range(8): A(f'v_cndmask_b32 v{32+r}, v178, v{32+r}, s[{64+2*r}:{65+2*r}]')
    A('v_max3_f32 v16, v32, v33, v34\nv_max3_f32 v17, v35, v36, v37\nv_max3_f32 v16, v16, v38, v39\nv_max3_f32 v17, v17, v40, v41\nv_max3_f32 v16, v16, v42, v43\nv_max_f32 v16, v16, v17')
    def xred(op):
        A(f'v_mov_b32 v17, v16\nv_permlane32_swap_b32 v16, v17\n{op} v16, v16, v17\nv_mov_b32 v17, v16\nv_permlane16_swap_b32 v16, v17\n{op} v16, v16, v17')
    xred('v_max_f32')
    for r in range(32, 44): A(f'v_sub_f32 v{r}, v{r}, v16')
    for r in range(32, 44): A(f'v_exp_f32 v{r}, v{r}')
    A('v_add_f32 v17, v40, v41\nv_add_f32 v18, v42, v43\nv_add_f32 v16, v32, v33\nv_add_f32 v17, v17, v18')
    for r in range(34, 40): A(f'v_add_f32 v16, v16, v{r}')
    A('v_fma_f32 v16, v17, 0.5, v16')
    xred('v_add_f32')
    A('v_rcp_f32 v16, v16')
    for r in range(32, 44): A(f'v_mul_f32 v{r}, v{r}, v16')
    for r in range(4): A(f'v_cvt_pk_bf16_f32 v{20+r}, v{32+r}, v{36+r}')
    A('v_cvt_pk_bf16_f32 v24, v40, v41\nv_cvt_pk_bf16_f32 v26, v42, v43\nv_cvt_pk_bf16_f32 v25, v40, v41\nv_cvt_pk_bf16_f32 v27, v42, v43')
    A('v_permlane16_swap_b32 v24, v25\nv_permlane16_swap_b32 v26, v27')
    if not P.get('FAKE', 0) & 2: A('buffer_store_dwordx4 v[20:23], v4, s[4:7], s43 offen sc1\nbuffer_store_dwordx4 v[24:27], v179, s[4:7], s44 offen sc1')
    A('s_cmp_lt_u32 s16, 64\ns_cbranch_scc1 L_qk_next')
    A('L_qk_fin:\ns_waitcnt vmcnt(0)\ns_barrier\nbuffer_store_dword v149, v180, s[8:11], 0 offen sc1\ns_branch L_qk_end')
    slow_check(A, P, 'L_qk_slow', 'L_qk_back', 'L_qk_retry', 'L_qk_end')
    A('L_qk_end:')
    stats(A, P)
def role_vo(A, P):
    chain_lane(A)
    A('v_mov_b32 v9, v10')
    A('v_and_b32 v14, 1, v13\nv_mul_u32_u24 v10, 40960, v14\nv_lshrrev_b32 v14, 1, v13\nv_mul_u32_u24 v14, 10240, v14\nv_add_u32 v10, v10, v14\nv_lshl_add_u32 v10, v12, 2, v10')
    A('s_mul_i32 s20, s17, 163840\ns_mul_i32 s21, s18, 320\ns_add_u32 s20, s20, s21\nv_add_u32 v10, s20, v10')
    g = [grp(lambda half, jp, c: 64*ks + 16*half + OFFS[jp][c], 1280, j*64, 20 + 4*j + ks, 22 + 4*j + ks) for ks in range(2) for j in range(5)]
    set_srd(A, 12, 32, 640*8192); set_srd(A, 92, 40, 32*163840)
    load_weights2(A, [(memw(0), 's[12:15]', 'v9', 1), (g, 's[92:95]', 'v10', 5)])
    wait_init(A, P, 171)
    q_raddr(A)
    for sh, a, b in ((14, 8, 9),):
        A(f's_mul_i32 s20, s18, {10 << sh}\ns_lshl_b32 s21, s17, 8\ns_add_u32 s20, s20, s21\nv_lshlrev_b32 v{a}, 4, v12\nv_add_u32 v{a}, s20, v{a}')
        A(f'v_and_b32 v14, 1, v13\nv_lshl_add_u32 v{b}, v14, {sh}, v{a}\nv_lshrrev_b32 v14, 1, v13\nv_lshl_add_u32 v{b}, v14, 3, v{b}\nv_lshl_add_u32 v{a}, v13, {sh}, v{a}')
    A(f's_mov_b32 s16, 0\ns_mov_b32 s45, -1\ns_mov_b32 s51, -1\ns_mov_b32 s24, 0\ns_mov_b32 s26, 0\ns_mov_b32 s27, 0\ns_mov_b32 s36, {OFF_SEG + C_UMR}')
    flag_cons_addr(A, 'v143', FO, P, P['KO'])
    prod_index(A, 1); flag_prod_addr(A, 'v142', FQ, P, P['KQ'], 3); prod_extra(A, P)
    A(f's_lshl_b32 s20, s17, 7\ns_add_u32 s20, s20, {FCH + 4096}\ns_add_u32 s20, s20, s19')
    lane0_addr(A, 'v180', 's_cmp_eq_u32 s18, 3')
    rts(A, P, 1)
    A('L_vo_step:')
    stamp_out(A, P, 150)
    A('s_cmp_eq_u32 s18, 2\ns_cbranch_scc0 L_vo_nodma')
    mem_slot(A, P)
    A('s_sub_u32 s35, s16, 1')
    poll(A, P, 'v143', 's35', 182)
    delay(A, P.get('DF', 0))
    if P.get('TS') == 3: stamp(A, P, 4)
    A('s_branch L_vo_dma')
    A('L_vo_retry:')
    A('s_cmp_eq_u32 s18, 2\ns_cbranch_scc0 L_vo_nodma')
    A('L_vo_dma:')
    dma_mem(A, P)
    stamp(A, P, 0)
    A('L_vo_nodma:')
    for r in range(16, 24): A(f'v_mov_b32 v{r}, 0')
    for r in range(32, 72): A(f'v_mov_b32 v{r}, 0')
    A('v_mov_b32 v149, s16')
    A(f's_and_b32 s20, s16, 1\ns_mul_i32 s28, s20, {40*MBLK}\ns_add_u32 s28, s28, s19\ns_add_u32 s28, s28, {16*MBLK}')
    first_pass(A, P, 16, 20, 0, 'L_vo_slow_r')
    if P.get('TS') == 2: stamp(A, P, 4)
    A('v_add_f32 v16, v16, v18\nv_add_f32 v17, v17, v19\nv_add_f32 v20, v20, v22\nv_add_f32 v21, v21, v23')
    A('v_cmp_u_f32 vcc, v16, v17\nv_cvt_pk_bf16_f32 v16, v16, v17\nv_cvt_pk_bf16_f32 v17, v20, v21')
    A('s_cbranch_vccnz L_vo_slow\nL_vo_back:')
    FV = P.get('FV', 0); fvs = 'buffer_store_dword v149, v142, s[8:11], 0 offen sc1'
    A('ds_write_b64 v5, v[16:17]\ns_add_u32 s16, s16, 1')
    if FV == 0: A(fvs)
    A('s_waitcnt lgkmcnt(0)\ns_barrier')
    if P.get('TS') == 2: stamp(A, P, 5)
    for k in range(4): A(f'ds_read_b64_tr_b16 v[{24+2*k}:{25+2*k}], v176 offset:{L_Q + k*768}')
    if FV == 1: A(fvs)
    def o(t, ks):
        if FV == 2 + 2*t + ks: A(fvs)
        A(f'{SM} v[{32+4*t}:{35+4*t}], v[{24+4*ks}:{27+4*ks}], {wreg(20+2*t+ks)}, v3')
    def fin(t):
        r = 32 + 4*t
        return [f'v_add_f32 v{r}, v{r}, v{r+2}', f'v_add_f32 v{r+1}, v{r+1}, v{r+3}', f'v_cvt_pk_bf16_f32 v{72+t}, v{r}, v{r+1}']
    def tr4(b, so):
        return [f'v_permlane32_swap_b32 v{b}, v{b+2}', f'v_permlane32_swap_b32 v{b+1}, v{b+3}', f'v_permlane16_swap_b32 v{b}, v{b+1}', f'v_permlane16_swap_b32 v{b+2}, v{b+3}',
                f'buffer_store_dwordx4 v[{b}:{b+3}], v8, s[8:11], {so} offen sc1']
    A('s_waitcnt lgkmcnt(2)'); o(0, 0); o(1, 0); A('s_waitcnt lgkmcnt(0)'); o(0, 1); o(1, 1)
    if P.get('TS') == 2: stamp(A, P, 6)
    o(2, 0); A(f's_add_u32 s29, s28, {4*MBLK}\ns_add_u32 s30, s28, {8*MBLK}\ns_nop 0'); o(2, 1); A('s_nop 1')
    J = lambda x: A('\n'.join(x))
    a4 = tr4(72, 's28'); b4 = tr4(76, 's29')
    o(3, 0); J(fin(0)); o(3, 1); J(fin(1)); o(4, 0); J(fin(2)); o(4, 1); A('s_nop 2'); o(5, 0); J(fin(3)); o(5, 1); J(a4[:1]); A('s_nop 0')
    o(6, 0); J(a4[1:2]); J(fin(4)[:1]); o(6, 1); J(fin(4)[1:]); o(7, 0); J(a4[2:4]); o(7, 1); J(a4[4:]); J(fin(5)[:2])
    o(8, 0); J(fin(5)[2:]); J(fin(6)[:2]); o(8, 1); J(fin(6)[2:]); A('s_nop 1'); o(9, 0); J(fin(7)); o(9, 1)
    if P.get('TS') == 2: stamp(A, P, 7)
    J(b4[:2]); J(fin(8)[:2]); J(b4[2:]); J(fin(8)[2:]); J(fin(9))
    A('v_permlane16_swap_b32 v80, v81\nbuffer_store_dwordx2 v[80:81], v9, s[8:11], s30 offen sc1')
    stamp(A, P, 3)
    delay(A, P.get('DR', 0))
    A(f's_sub_u32 s28, s16, 1\ns_and_b32 s28, s28, {rm(P)}\ns_lshl_b32 s28, s28, 20\ns_add_u32 s28, s28, s36')
    side(A, 's28', 's28', 's34')
    A(f's_add_u32 s29, s28, {4*MBLK}\ns_add_u32 s30, s28, {8*MBLK}')
    if not P.get('FAKE', 0) & 2: A('buffer_store_dwordx4 v[72:75], v8, s[4:7], s28 offen sc1\nbuffer_store_dwordx4 v[76:79], v8, s[4:7], s29 offen sc1\nbuffer_store_dwordx2 v[80:81], v9, s[4:7], s30 offen sc1')
    A('s_cmp_lt_u32 s16, 64\ns_cbranch_scc1 L_vo_step')
    A('s_waitcnt vmcnt(0)\ns_barrier\nbuffer_store_dword v149, v180, s[8:11], 0 offen sc1\ns_branch L_vo_end')
    slow_check(A, P, 'L_vo_slow', 'L_vo_back', 'L_vo_retry', 'L_vo_end')
    A('L_vo_end:')
    stats(A, P)
def role_own(A, P):
    common_lane(A)
    A('s_cmp_eq_u32 s18, 0\ns_cbranch_scc1 L_own_go\ns_endpgm\nL_own_go:')
    wait_init(A, P, 171, False, 4); rts(A, P, 10)
    A('v_and_b32 v3, 1, v1\nv_cmp_eq_u32 vcc, 0, v3\nv_mov_b32 v3, 0xeeee\nv_mov_b32 v5, 0x4444\nv_cndmask_b32 v3, v3, v5, vcc')
    A('v_lshlrev_b32 v6, 2, v1')
    for r in range(8, 11): A(f'v_mov_b32 v{r}, -1')
    A(f's_lshl_b32 s36, s17, 8\ns_mov_b32 s35, {MBLK}\ns_cmp_lt_u32 s17, 32\ns_cbranch_scc1 L_own_a\ns_movk_i32 s35, 2048\ns_add_u32 s36, s36, {4*MBLK - 8192}\nL_own_a:\ns_add_u32 s36, s36, s19')
    A(f's_lshl_b32 s25, s17, 16\ns_add_u32 s25, s25, {OFF_UX}')
    A(f's_lshl_b32 s37, s17, 8\ns_add_u32 s37, s37, {OFF_REC + 16384}')
    A('s_mov_b32 s16, 0\ns_mov_b32 s45, -1\ns_mov_b32 s51, -1\ns_mov_b32 s24, 0\ns_mov_b32 s26, 0\ns_mov_b32 s27, 0\ns_mov_b32 s48, -1\ns_mov_b32 s49, -1')
    A('s_mov_b32 s21, s17'); flag_prod_addr(A, 'v2', FO, P, P['KO'], 0)
    flag_cons_addr(A, 'v7', FQ, P, P['KQ'] + P.get('VETO', 0))
    A(f's_xor_b32 s20, s19, 0x2000\ns_add_u32 s20, s20, {FAG}')
    lane0_addr(A, 'v5', f's_cmp_eq_u32 s17, {P.get("MA", 39)}')
    A(f's_and_b32 s21, s2, {3 if P.get("ROT", 1) else 0}')
    for g in range(4):
        A(f's_xor_b32 s20, s21, {g}\ns_lshl_b32 s{56+g}, s20, 14\ns_lshl_b32 s{60+g}, s20, 10\ns_lshr_b32 s{52+g}, s20, 1\ns_lshl_b32 s{52+g}, s{52+g}, 14\ns_and_b32 s20, s20, 1\ns_lshl_b32 s20, s20, 12\ns_add_u32 s{52+g}, s{52+g}, s20')
        if P.get('UXS', 1) == 1: A(f's_lshl_b32 s20, s20, 1\ns_add_u32 s{56+g}, s{56+g}, s20')
    A(f'v_lshlrev_b32 v1, 7, v1\ns_add_u32 s20, s19, {FWV}\nv_add_u32 v1, s20, v1')
    A('L_own_step:')
    if P.get('SYNC'):
        min_wait(A, 'v1', 16, 's16', 's48')
    delay(A, P.get('DU', 0))
    A(f's_and_b32 s21, s16, {0 if P.get("FAKE", 0) & 1 else rm(P)}\ns_mul_i32 s21, s21, {40*65536}\ns_add_u32 s21, s21, s25')
    side(A, 's21', 's21', 's19' if P.get('UXS', 1) == 2 else 's34')
    for j in range(32):
        if (j & 7) == 0: A(f's_xor_b32 s20, s21, s{56 + (j>>3)}')
        if (j & 7) == 4: A('s_add_u32 s20, s20, 4096')
        A(f'buffer_load_dwordx4 v[{64+4*j}:{67+4*j}], v4, s[4:7], s20 offen offset:{(j&3)*1024} sc1')
    A(f's_and_b32 s20, s16, 1\ns_mul_i32 s20, s20, 40\ns_add_u32 s20, s20, s17\ns_add_u32 s20, s20, 16\ns_lshl_b32 s28, s20, 14\ns_add_u32 s28, s28, s19\ns_add_u32 s38, s28, 4096')
    A(f's_and_b32 s20, s16, 3\ns_lshl_b32 s29, s20, 15\ns_add_u32 s29, s29, s19\ns_add_u32 s29, s29, {8*MBLK}')
    A('s_add_u32 s39, s29, s53\ns_add_u32 s40, s29, s54\ns_add_u32 s41, s29, s55\ns_add_u32 s29, s29, s52')
    A(f's_lshr_b32 s21, s20, 1\ns_lshl_b32 s21, s21, 14\ns_and_b32 s20, s20, 1\ns_lshl_b32 s20, s20, 12\ns_add_u32 s30, s20, s21\ns_add_u32 s30, s30, s19\ns_add_u32 s30, s30, {5*MBLK}')
    A('s_add_u32 s20, s16, 1\ns_and_b32 s20, s20, 3\ns_mul_i32 s42, s20, s35\ns_add_u32 s42, s42, s36\ns_xor_b32 s20, s20, 2\ns_mul_i32 s43, s20, s35\ns_add_u32 s43, s43, s36')
    for g in range(4): A(f's_add_u32 s{64+g}, s30, s{60+g}\ns_lshl_b32 s20, s{60+g}, 1\ns_add_u32 s{68+g}, s28, s20')
    A('v_mov_b32 v0, s16')
    if P.get('SYNC'):
        A(f's_add_u32 s20, s16, {P.get("PA", 3)}\ns_min_u32 s20, s20, 63\ns_cmp_ge_i32 s48, s20\ns_cbranch_scc1 L_own_known')
        A('buffer_load_dword v16, v1, s[8:11], 0 offen sc1\ns_waitcnt vmcnt(0)')
        min_lanes(A, 16, 's48')
        A('L_own_known:')
    A('s_waitcnt vmcnt(0)')
    stamp(A, P, 4)
    poll(A, P, 'v7', 's16', 16, P.get('VETO'))
    if P.get('VETO'): A('s_cmp_gt_u32 vcc_lo, 1\ns_cbranch_scc1 L_own_veto')
    stamp(A, P, 0)
    if P['FO'] == -1: A('buffer_store_dword v0, v2, s[8:11], 0 offen sc1')
    A('L_own_retry:')
    for j in range(8): A(f'buffer_load_dwordx4 v[{32+4*j}:{35+4*j}], v4, s[8:11], s{68+(j>>1)} offen offset:{(j&1)*1024} sc1')
    fo = P['FO']
    def flag(pos):
        if fo == pos: A('buffer_store_dword v0, v2, s[8:11], 0 offen sc1')
    for j in range(16): A(f'buffer_load_dwordx4 v[{192+4*j}:{195+4*j}], v4, s[8:11], s{[29,39,40,41][j>>2]} offen offset:{(j&3)*1024} sc1')
    for j in range(4): A(f'buffer_load_dwordx4 v[{16+4*j}:{19+4*j}], v4, s[8:11], s{64+j} offen sc1')
    for r in range(12, 16): A(f'v_mov_b32 v{r}, 0')
    delay(A, P.get('DO', 0))
    flag(0)
    stamp(A, P, 1)
    for j in range(16):
        A(f's_waitcnt vmcnt({19-j + (0 <= fo <= j)})')
        flag(j + 1)
        if j == 0: stamp(A, P, 2)
        A(f'{SM} v[12:15], v[{192+4*j}:{195+4*j}], v[{64+8*j}:{71+8*j}], v3')
    for j in range(4):
        A(f's_waitcnt vmcnt({3-j + (0 <= fo <= 16)})')
        A(f'{SM} v[12:15], v[{16+4*j}:{19+4*j}], v[{32+8*j}:{39+8*j}], v3')
    A('v_add_f32 v12, v12, v13\nv_add_f32 v14, v14, v15\nv_cmp_u_f32 vcc, v12, v14\nv_cvt_pk_bf16_f32 v12, v12, v14')
    A('s_cbranch_vccnz L_own_slow\nL_own_back:')
    A('buffer_store_dword v12, v6, s[8:11], s42 offen sc1')
    stamp(A, P, 3)
    flag(17)
    if P.get('VETO'): A('s_cmp_eq_u32 s51, s16\ns_cbranch_scc0 L_own_nl\nv_and_b32 v2, 0xdfffffff, v2\nbuffer_store_dword v0, v2, s[8:11], 0 offen sc1\nL_own_nl:')
    delay(A, P.get('DP', 0))
    A('buffer_store_dword v11, v6, s[8:11], s43 offen sc1\nbuffer_store_dword v0, v5, s[8:11], 0 offen sc1')
    for j in range(8): A(f'buffer_store_dwordx4 v[8:11], v4, s[8:11], {"s28" if j < 4 else "s38"} offen offset:{(j&3)*1024} sc1')
    if P.get('DBG'):
        A('buffer_store_dword v12, v6, s[4:7], s37 offen\ns_add_u32 s37, s37, 16384')
        A('s_cmp_eq_u32 s16, 2\ns_cbranch_scc0 L_own_nt\ns_memtime s[44:45]\ns_mov_b32 s27, s24\ns_mov_b32 s50, 0\nL_own_nt:')
    if P.get('RT'):
        for k, st in ((1, 0), (3, 1), (4, 10), (5, 20), (6, 30), (7, 40)):
            l = A.lab('rt'); A(f's_cmp_eq_u32 s16, {st}\ns_cbranch_scc0 {l}'); rts(A, P, k); A(f'{l}:')
    A('s_add_u32 s16, s16, 1')
    stamp_out(A, P, 16)
    A('s_cmp_lt_u32 s16, 63\ns_cbranch_scc1 L_own_step')
    if P.get('DBG'): A('s_memtime s[46:47]\ns_waitcnt lgkmcnt(0)\ns_sub_u32 s26, s46, s44\ns_mov_b32 s16, s50')
    A('s_branch L_own_end')
    if P.get('VETO'):
        A('L_own_veto:\nv_or_b32 v2, 0x20000000, v2\ns_mov_b32 s51, s16')
        if P.get('DBG'): A('s_add_u32 s50, s50, 1')
        A(f'L_own_all:\ns_add_u32 s20, s19, {FA}\ns_waitcnt vmcnt(0)\nv_lshl_add_u32 v17, v4, 3, s20')
        wait_flags(A, None, None, 's16', None, 16, 17, 0)
        A('s_branch L_own_retry')
    A('L_own_slow:')
    if P.get('VETO'): A('s_add_u32 s24, s24, 1\ns_cmp_eq_u32 s49, s16\ns_mov_b32 s49, s16\ns_cbranch_scc0 L_own_retry')
    if P.get('DBG') and not P.get('VETO'):
        for lo, hi, unit in ((32, 64, 1), (192, 256, 1 << 10), (16, 32, 1 << 20)):
            A(f'v_max_u32 v13, v{lo}, v{lo+1}')
            for r in range(lo + 2, hi, 2): A(f'v_max3_u32 v13, v13, v{r}, v{r+1}')
            l = A.lab('dg'); A(f'v_cmp_eq_u32 vcc, -1, v13\ns_cbranch_vccz {l}\ns_add_u32 s50, s50, {unit}\n{l}:')
    A('v_max3_u32 v13, v16, v17, v18')
    rs = list(range(19, 64)) + list(range(192, 256))
    A(f'v_max_u32 v13, v13, v{rs.pop()}')
    for a, b in zip(rs[0::2], rs[1::2]): A(f'v_max3_u32 v13, v13, v{a}, v{b}')
    A('v_cmp_eq_u32 vcc, -1, v13\ns_cbranch_vccz L_own_back')
    if P.get('VETO'): A('s_cmp_gt_u32 s24, 200000\ns_cbranch_scc0 L_own_all')
    else: A('s_add_u32 s24, s24, 1\ns_cmp_gt_u32 s24, 200000\ns_cbranch_scc0 L_own_retry')
    A('L_own_end:')
    stats(A, P)
```

```python
import re
RX = re.compile(r'\b([vas])(\d+)\b|\b([vas])\[(\d+):(\d+)\]|\b(vcc|exec|m0|scc)\b')
def regs(op):
    out = set()
    for m in RX.finditer(op):
        if m.group(1): out.add((m.group(1), int(m.group(2))))
        elif m.group(3):
            for i in range(int(m.group(4)), int(m.group(5)) + 1): out.add((m.group(3), i))
        else:
            n = m.group(6)
            out.add((n, 0))
    return out
TRANS = ('v_exp_', 'v_log_', 'v_rcp_', 'v_rsq_', 'v_sqrt_', 'v_sin_', 'v_cos_')
class Ins:
    def __init__(s, text):
        s.text = text
        t = text.split(';')[0].strip()
        s.label = t.endswith(':')
        s.dir = t.startswith('.') or t == ''
        p = t.split(None, 1)
        s.op = p[0] if p else ''
        rest = p[1] if len(p) > 1 else ''
        ops = [o.strip() for o in rest.split(',')]
        s.ops = ops
        op = s.op
        s.mfma = op.startswith('v_mfma') or op.startswith('v_smfmac')
        s.valu = op.startswith('v_') and not s.mfma
        s.vmem = op.startswith(('buffer_', 'global_'))
        s.ds = op.startswith('ds_')
        s.salu = op.startswith('s_')
        s.trans = op.startswith(TRANS)
        s.dpp = ('row_' in rest or 'quad_perm' in rest or 'wave_' in rest or 'row_newbcast' in rest) and s.valu
        s.w = set(); s.r = set()
        if s.label or s.dir: return
        if s.mfma:
            s.passes = 8 if '32x32' in op else 4
            s.w = regs(ops[0]); s.ab = regs(ops[1]) | regs(ops[2])
            if op.startswith('v_smfmac'):
                s.ab |= regs(ops[3]); s.c = set(s.w)
            else: s.c = regs(ops[3])
            s.r = s.ab | s.c
        elif s.valu:
            nd = 1
            if op.startswith(('v_add_co', 'v_sub_co', 'v_addc_co', 'v_subb_co', 'v_div_scale')): nd = 2
            if op.startswith(('v_permlane32_swap', 'v_permlane16_swap', 'v_swap')): nd = 2
            for o in ops[:nd]: s.w |= regs(o)
            for o in ops[nd:]: s.r |= regs(o)
            if op.startswith(('v_permlane32_swap', 'v_permlane16_swap', 'v_swap', 'v_fmac', 'v_mac', 'v_dot2c', 'v_writelane')) or s.dpp: s.r |= s.w
            if op.startswith('v_cmpx'):
                if len(ops) == 2: s.r |= s.w; s.w = {('vcc', 0)}
                s.w |= {('exec', 0)}
            if op.startswith('v_cndmask') and len(ops) == 3: s.r |= {('vcc', 0)}
            if op == 'v_nop': s.w = set(); s.r = set()
        elif s.vmem:
            ld = '_load' in op or ('atomic' in op and 'sc0' in rest)
            lds = rest.rstrip().endswith('lds') or 'load_lds' in op
            s.lds = lds
            if ld and not lds:
                s.w = regs(ops[0])
                for o in ops[1:]: s.r |= regs(o)
                if 'atomic' in op: s.r |= s.w
            else:
                for o in ops: s.r |= regs(o)
            if lds: s.r |= {('m0', 0)}
            s.wide_store = ('store' in op) and ('x3' in op or 'x4' in op)
            if s.wide_store:
                s.sdata = regs(ops[0]) if op.startswith('buffer') else regs(ops[1])
        elif s.ds:
            if '_read' in op or 'permute' in op or 'swizzle' in op or '_rtn' in op:
                s.w = regs(ops[0])
                for o in ops[1:]: s.r |= regs(o)
            else:
                for o in ops: s.r |= regs(o)
        elif s.salu:
            if op.startswith(('s_cmp', 's_cbranch', 's_branch', 's_waitcnt', 's_nop', 's_barrier', 's_endpgm', 's_sleep', 's_setprio', 's_bitcmp')):
                for o in ops: s.r |= regs(o)
            else:
                s.w = regs(ops[0])
                for o in ops[1:]: s.r |= regs(o)
                if 'saveexec' in op: s.w |= {('exec', 0)}
    def states(s):
        if s.label or s.dir: return 0
        if s.op == 's_nop': return int(s.ops[0]) + 1
        return 1
def isv(x): return {r for r in x if r[0] in 'va' and len(r[0]) == 1}
def iss(x): return {r for r in x if r[0] in ('s', 'vcc')}
def need(p, c):
    n = 0
    if p.valu:
        pw = isv(p.w)
        if c.mfma and pw & c.r: n = max(n, 2)
        if c.valu:
            if c.dpp and pw & c.r: n = max(n, 2)
            if c.op.startswith('v_permlane') and pw & c.r: n = max(n, 2)
            if c.op.startswith(('v_readlane', 'v_readfirstlane')) and pw & c.r: n = max(n, 1)
            if p.trans and not c.trans and pw & c.r: n = max(n, 1)
            if ('op_sel' in p.text or 'sdwa' in p.text.lower() or 'dst_sel' in p.text) and not p.op.startswith('v_pk') and pw & (c.r | c.w): n = max(n, 1)
            sw = iss(p.w)
            if sw & c.r: n = max(n, 4 if c.op.startswith(('v_readlane', 'v_writelane', 'v_div_fmas')) else 2)
            if ('exec', 0) in p.w:
                if c.dpp: n = max(n, 5)
                if c.op.startswith(('v_readlane', 'v_readfirstlane', 'v_writelane', 'v_permlane')): n = max(n, 4)
                if ('exec', 0) in c.r: n = max(n, 2)
        if ('exec', 0) in p.w and c.mfma: n = max(n, 4)
        if c.vmem and iss(p.w) & c.r: n = max(n, 5)
        if p.op.startswith('v_dot') and (c.valu or c.mfma or c.vmem or c.ds) and pw & (c.r | c.w) and not (c.op == p.op and pw & c.w): n = max(n, 3)
    if p.mfma:
        k = {4: 0, 8: 1}[p.passes]
        if c.mfma:
            if p.w & c.ab: n = max(n, (8, 12)[k])
            if p.w & c.c and not (p.w == c.c and p.passes == c.passes): n = max(n, (6, 10)[k])
            if p.w & c.w and not (p.w == c.c): n = max(n, (8, 12)[k])
        elif c.valu or c.vmem or c.ds:
            if p.w & (c.r | c.w): n = max(n, (8, 12)[k])
            if c.valu and p.c & c.w: n = max(n, (3, 7)[k])
    if p.vmem and getattr(p, 'wide_store', False):
        if (c.valu or c.mfma) and p.sdata & c.w: n = max(n, 2)
        elif p.sdata & c.w: n = max(n, 1)
    if p.salu and ('m0', 0) in p.w and c.vmem and getattr(c, 'lds', False): n = max(n, 1)
    return n
TIMED = [False]
class Asm:
    def __init__(s): s.L = []; s.uid = 0
    def __call__(s, text):
        for t in text.split('\n'):
            t = t.rstrip()
            if t.strip() == '': continue
            s.L.append(t if t.strip().endswith(':') or t.strip().startswith('.') or t.strip().startswith(';') else '    ' + t.strip())
    def lab(s, base): s.uid += 1; return f'{base}_{s.uid}'
    def text(s, pad=True):
        out = []; hist = []
        npad = 0
        for t in s.L:
            if t.strip() in (';timed', ';counted'): TIMED[0] = t.strip() == ';timed'; continue
            if t.strip().startswith(';'): out.append(t); continue
            c = Ins(t)
            if not (c.label or c.dir) and pad:
                dist = 0; req = 0
                for i in range(len(hist) - 1, -1, -1):
                    p = hist[i]; nd = need(p, c)
                    if nd > dist and TIMED[0]:
                        tt = 0; free = 0; vfree = 0
                        for x in hist[i:]:
                            if x.mfma: tt = max(tt, free); free = tt + x.passes; vfree = tt + (3 if 'smfmac' in x.op else 2)
                            if x.valu: tt = max(tt, vfree)
                            tt += x.states() + (1 if '_swap' in x.op and x is not p else 0)
                        if c.valu and vfree - 1 >= nd: tt = max(tt, vfree)
                        nd -= tt - p.states() - dist
                    nd -= dist
                    if nd > req: req = nd
                    dist += p.states()
                    if dist >= 20: break
                while req > 0:
                    k = min(req, 16)
                    nop = Ins(f'    s_nop {k-1}')
                    out.append(nop.text); hist.append(nop); req -= k; npad += 1
            out.append(t)
            if not (c.label or c.dir):
                hist.append(c)
                if c.op in ('s_branch', 's_endpgm'): hist = []
                if len(hist) > 40: hist = hist[-30:]
        s.npad = npad
        return '\n'.join(out) + '\n'
```

```python
from common import *
SM = 'v_smfmac_f32_16x16x64_bf16'
MF = 'v_mfma_f32_16x16x32_bf16'
L_MEM, L_Q, L_K, L_KX, L_QX, L_Q2 = 0, 10240, 13312, 16384, 24576, 32768
AR = 100
DPP = 'row_mask:0xf bank_mask:0xf'
def memw(opbase):
    return [grp(lambda half, jp, c: 64*ks + half + 2*OFFS[jp][c], 8192, 0, opbase + 2*ks, opbase + 2*ks + 1) for ks in range(10)]
def chain_lane(A):
    common_lane(A)
    A('v_and_b32 v3, 2, v1\nv_cmp_eq_u32 vcc, 0, v3\nv_mov_b32 v3, 0xeeee\nv_mov_b32 v5, 0x4444\nv_cndmask_b32 v3, v3, v5, vcc')
    A('v_lshrrev_b32 v2, 1, v13\nv_lshlrev_b32 v2, 8, v2\nv_and_b32 v14, 3, v12\nv_lshl_add_u32 v2, v14, 6, v2\nv_and_b32 v14, 1, v13\nv_lshl_add_u32 v2, v14, 5, v2\nv_lshrrev_b32 v14, 2, v12\nv_lshl_add_u32 v2, v14, 3, v2')
    A('v_and_b32 v14, 1, v13\nv_lshlrev_b32 v14, 18, v14\nv_lshrrev_b32 v15, 1, v13\nv_lshlrev_b32 v15, 17, v15')
    A('v_add_u32 v14, v14, v15\nv_lshl_add_u32 v14, v12, 2, v14')
    A('s_lshl_b32 s20, s17, 8\ns_lshl_b32 s21, s18, 6\ns_add_u32 s20, s20, s21\nv_add_u32 v10, s20, v14')
    A(f's_mul_i32 s20, s18, 768\ns_add_u32 s20, s20, {L_Q}\nv_mul_u32_u24 v5, 192, v13\nv_lshl_add_u32 v5, v12, 3, v5\nv_add_u32 v5, s20, v5')
def q_raddr(A):
    A('v_and_b32 v14, 3, v1\nv_mul_u32_u24 v176, 192, v14\nv_lshrrev_b32 v14, 2, v1\nv_lshl_add_u32 v176, v14, 3, v176')
def dma_mem(A, P):
    A('s_mov_b32 m0, 0\ns_add_u32 s20, s22, 4096')
    for c in range(4): A(f'buffer_load_dwordx4 v4, s[8:11], s22 offen offset:{c*1024} sc1 lds')
    A('s_mov_b32 m0, 4096')
    for c in range(4): A(f'buffer_load_dwordx4 v4, s[8:11], s20 offen offset:{c*1024} sc1 lds')
    A('s_mov_b32 m0, 8192')
    for c in range(2): A(f'buffer_load_dwordx4 v4, s[8:11], s23 offen offset:{c*1024} sc1 lds')
def mem_slot(A, P):
    A(f's_and_b32 s20, s16, 3\ns_lshl_b32 s22, s20, 14\ns_add_u32 s22, s22, s19\ns_lshl_b32 s23, s20, 11\ns_add_u32 s23, s23, s19\ns_add_u32 s23, s23, {4*MBLK}')
def trread(A, k): A(f'ds_read_b64_tr_b16 v[{AR+2*k}:{AR+2*k+1}], v2 offset:{L_MEM + k*512}')
def first_pass(A, P, acc0, acc1, opbase, miss, fill=None, extra=None, ex=0):
    st = list(P.get('PS', ((1, -1), (3, -1), (6, 0), (10, 4)))); can = 1 if P.get('VETO', 0) else 0
    assert not can or len(st) == 2
    RB = P.get('RB', 2)
    avail = 0; issued = 0; first = True
    def stage(n, burst):
        nonlocal avail, issued, ex, first
        A(f's_waitcnt vmcnt({10 - n + ex})\ns_barrier')
        if first: stamp(A, P, 1)
        avail = 2*n
        if burst:
            while issued < avail: trread(A, issued); issued += 1
        if first and extra: extra(); ex = 4
        first = False
    while st and st[0][1] < 0: stage(st.pop(0)[0], True)
    n0 = issued
    for i in range(20):
        ks = i >> 1
        if not i & 1:
            assert issued >= 2*(ks+1)
            A(f's_waitcnt lgkmcnt({issued - 2*(ks+1) + (1 if can and 0 < ks < n0//2 else 0)})')
        acc = acc1 if i & 1 else acc0
        A(f'{SM} v[{acc}:{acc+3}], v[{AR+4*ks}:{AR+4*ks+3}], {wreg(opbase+i)}, v3')
        hit = st and st[0][1] == i
        if hit: stage(st.pop(0)[0], False)
        if i == 0 and can: A('ds_read2st64_b32 v[188:189], v187 offset0:0 offset1:8')
        if not i & 1 or hit or P.get('RA'):
            for _ in range(RB):
                if issued < avail: trread(A, issued); issued += 1
        if i & 1:
            if can and ks == n0//2: A('v_max_u32 v188, v188, v189\nv_cmp_eq_u32 vcc, -1, v188')
            if can and ks == n0//2 + 1: A(f's_cbranch_vccnz {miss}')
            if fill and ks in fill: A(fill[ks])
def slow_check(A, P, lab_slow, lab_back, lab_retry, lab_fail):
    A(f'{lab_slow}:')
    A(f'v_pk_max_u16 v140, v{AR}, v{AR+1}')
    for k in range(2, 40): A(f'v_pk_max_u16 v140, v140, v{AR+k}')
    A('v_lshrrev_b32 v141, 16, v140\nv_max_u16 v140, v140, v141\nv_and_b32 v140, 0xffff, v140\nv_cmp_eq_u32 vcc, 0xffff, v140')
    A(f's_cbranch_vccz {lab_back}')
    A(f'{lab_slow}_r:')
    if P.get('VETO'):
        A(f's_cmp_eq_u32 s45, s16\ns_mov_b32 s45, s16\ns_cbranch_scc1 {lab_slow}_x\nbuffer_store_dword v149, v186, s[8:11], 0 offen sc1\n{lab_slow}_x:\ns_nop 4')
    A(f's_add_u32 s24, s24, 1\ns_cmp_gt_u32 s24, 200000\ns_cbranch_scc1 {lab_fail}')
    A(f's_waitcnt lgkmcnt(0)\ns_barrier\ns_branch {lab_retry}')
def stats(A, P):
    rts(A, P, 2)
    if P.get('DBG'):
        A(f's_lshl_b32 s20, s2, 4\ns_add_u32 s20, s20, {OFF_REC + 2*MB}\nv_mov_b32 v20, s24\nv_mov_b32 v21, s16\nv_mov_b32 v22, s26\nv_mov_b32 v23, s27\nv_mov_b32 v24, 0')
        A('buffer_store_dwordx4 v[20:23], v24, s[4:7], s20 offen')
    A('s_endpgm')
def lane0_addr(A, dst, cond):
    A(f'{cond}\ns_cselect_b32 s20, s20, {OOB}\nv_mov_b32 {dst}, s20\nv_cmp_eq_u32 vcc, 0, v1\nv_mov_b32 v15, {OOB}\nv_cndmask_b32 {dst}, v15, {dst}, vcc')
def flag_cons_addr(A, dst, base, P, k):
    A(f's_and_b32 s20, s2, 3\ns_lshl_b32 s20, s20, 14\ns_add_u32 s20, s20, s19\ns_add_u32 s20, s20, {base}')
    A(f'v_min_u32 {dst}, {k-1}, v1\nv_lshlrev_b32 {dst}, 7, {dst}\nv_add_u32 {dst}, s20, {dst}')
def flag_prod_addr(A, dst, base, P, k, wave):
    A(f's_lshl_b32 s20, s21, 7\ns_add_u32 s20, s20, s19\ns_add_u32 s20, s20, {base}\ns_cmp_lt_u32 s21, {k}\ns_cselect_b32 s20, s20, {OOB}\ns_cmp_eq_u32 s18, {wave}\ns_cselect_b32 s20, s20, {OOB}')
    A(f'v_lshl_add_u32 {dst}, v1, 14, s20\nv_cmp_gt_u32 vcc, 4, v1\nv_mov_b32 v15, {OOB}\nv_cndmask_b32 {dst}, v15, {dst}, vcc')
def prod_extra(A, P):
    if not P.get('VETO'): return
    A(f's_lshl_b32 s20, s21, 7\ns_add_u32 s20, s20, s19\ns_add_u32 s20, s20, {FA}\ns_cmp_eq_u32 s18, 3\ns_cselect_b32 s20, s20, {OOB}\nv_writelane_b32 v142, s20, 4')
    A(f's_lshr_b32 s21, s21, 2\ns_and_b32 s21, s21, {P["VETO"]-1}\ns_add_u32 s21, s21, 1'); flag_prod_addr(A, 'v186', FQ, P, 64, 3)
    A('v_and_b32 v187, 31, v1\nv_lshlrev_b32 v187, 2, v187\nv_lshl_add_u32 v187, v1, 7, v187')
def prod_index(A, vo):
    A(f's_and_b32 s21, s2, 0x3b\ns_add_u32 s21, s21, {4*vo}')
def poll(A, P, addr, sval, r0, anyl=False):
    N = P.get('NP', 4); l = A.lab('poll')
    A('s_mov_b32 s21, 0')
    for i in range(N):
        A(f'buffer_load_dword v{r0+i}, {addr}, s[8:11], 0 offen sc1')
        if i < N-1: A('s_sleep 1')
    A(f'{l}:')
    for i in range(N):
        if anyl: A(f's_waitcnt vmcnt({N-1})\nv_cmp_le_i32 vcc, {sval}, v{r0+i}\ns_cbranch_vccnz {l}_got')
        else: A(f's_waitcnt vmcnt({N-1})\nv_cmp_gt_i32 vcc, {sval}, v{r0+i}\ns_cbranch_vccz {l}_got')
        A(f'buffer_load_dword v{r0+i}, {addr}, s[8:11], 0 offen sc1')
    A(f's_add_u32 s21, s21, 1\ns_cmp_lt_u32 s21, 100000\ns_cbranch_scc1 {l}\ns_mov_b32 s24, 0x7000000\n{l}_got:')
def stamp(A, P, k):
    if P.get('TS'): A(f'{"s_memrealtime" if P["TS"] == 3 else "s_memtime"} s[{80+2*k}:{81+2*k}]')
def stamp_out(A, P, vt):
    if not P.get('TS'): return
    A(f's_waitcnt lgkmcnt(0)\ns_lshl_b32 s20, s2, 2\ns_add_u32 s20, s20, s18\ns_lshl_b32 s20, s20, 7\ns_add_u32 s20, s20, s16\ns_lshl_b32 s20, s20, 5\ns_add_u32 s20, s20, {OFF_TS}')
    for k in range(8): A(f'v_mov_b32 v{vt+k}, s{80+2*k}')
    A(f'v_mov_b32 v{vt+8}, 0\nbuffer_store_dwordx4 v[{vt}:{vt+3}], v{vt+8}, s[4:7], s20 offen\nbuffer_store_dwordx4 v[{vt+4}:{vt+7}], v{vt+8}, s[4:7], s20 offen offset:16')
def cached_wait(A, P, addr, tmp, need, cache):
    if not P.get('SYNC'): return
    l = A.lab('cw')
    A(f's_cmp_ge_i32 {cache}, {need}\ns_cbranch_scc1 {l}_ok\ns_mov_b32 s21, 0\n{l}:')
    A(f'buffer_load_dword v{tmp}, {addr}, s[8:11], 0 offen sc1\ns_add_u32 s20, {need}, 6\ns_waitcnt vmcnt(0)')
    A(f'v_cmp_gt_i32 vcc, s20, v{tmp}\ns_mov_b32 {cache}, s20\ns_cbranch_vccz {l}_ok')
    A(f'v_cmp_gt_i32 vcc, {need}, v{tmp}\ns_mov_b32 {cache}, {need}\ns_cbranch_vccz {l}_ok')
    A(f's_sleep 2\ns_add_u32 s21, s21, 1\ns_cmp_lt_u32 s21, 200000\ns_cbranch_scc1 {l}\n{l}_ok:')
def role_qk(A, P):
    chain_lane(A)
    set_srd(A, 12, 16, 640*8192); set_srd(A, 92, 24, 640*8192)
    load_weights2(A, [(memw(0), 's[12:15]', 'v10', 1), (memw(20), 's[92:95]', 'v10', 1)])
    wait_init(A, P, 171)
    A(f's_mul_i32 s20, s18, 576\ns_add_u32 s20, s20, {L_K}\nv_lshlrev_b32 v6, 4, v12\nv_and_b32 v14, 1, v13\nv_lshl_add_u32 v6, v14, 3, v6\nv_lshrrev_b32 v14, 1, v13\nv_lshl_add_u32 v6, v14, 2, v6\nv_add_u32 v6, s20, v6')
    A(f's_lshl_b32 s20, s18, 8\ns_add_u32 s20, s20, {L_Q}\nv_lshl_add_u32 v5, v1, 2, s20')
    A(f'v_and_b32 v14, 3, v1\nv_lshlrev_b32 v176, 6, v14\nv_bfe_u32 v14, v1, 2, 3\nv_lshl_add_u32 v176, v14, 3, v176\nv_lshrrev_b32 v14, 5, v1\nv_lshl_add_u32 v176, v14, 8, v176')
    A(f'v_and_b32 v14, 1, v13\nv_mul_u32_u24 v7, 1152, v14\nv_lshrrev_b32 v14, 1, v13\nv_lshl_add_u32 v7, v14, 7, v7\nv_bfe_u32 v14, v12, 2, 1\nv_lshl_add_u32 v7, v14, 5, v7')
    A(f'v_lshrrev_b32 v14, 3, v12\nv_lshl_add_u32 v7, v14, 4, v7\nv_and_b32 v14, 1, v12\nv_lshl_add_u32 v7, v14, 3, v7')
    A('v_lshrrev_b32 v8, 3, v12\nv_lshlrev_b32 v8, 8, v8\nv_lshl_add_u32 v8, v13, 5, v8\nv_and_b32 v15, 7, v12\nv_lshl_add_u32 v8, v15, 2, v8')
    A('s_lshr_b32 s20, s17, 4\ns_lshl_b32 s20, s20, 14\ns_and_b32 s21, s17, 15\ns_lshl_b32 s21, s21, 9\ns_add_u32 s20, s20, s21\ns_lshl_b32 s21, s18, 7\ns_add_u32 s20, s20, s21\nv_add_u32 v8, s20, v8')
    A('v_lshlrev_b32 v9, 5, v13\nv_lshrrev_b32 v14, 2, v12\nv_lshl_add_u32 v9, v14, 4, v9\nv_and_b32 v14, 2, v12\nv_lshl_add_u32 v9, v14, 1, v9')
    A('s_lshr_b32 s20, s17, 1\ns_lshl_b32 s20, s20, 8\ns_lshl_b32 s21, s18, 7\ns_add_u32 s20, s20, s21\ns_and_b32 s21, s17, 1\ns_lshl_b32 s21, s21, 3\ns_add_u32 s20, s20, s21\nv_add_u32 v9, s20, v9')
    A(f'v_and_b32 v15, 9, v12\nv_cmp_eq_u32 vcc, 0, v15\nv_mov_b32 v15, {OOB}\nv_cndmask_b32 v9, v15, v9, vcc')
    A('v_and_b32 v10, 8, v12\nv_and_b32 v14, 3, v12\nv_lshl_add_u32 v10, v14, 1, v10\nv_bfe_u32 v14, v12, 2, 1\nv_add_u32 v10, v10, v14\nv_lshlrev_b32 v10, 4, v10\nv_lshl_add_u32 v10, v13, 8, v10')
    A('s_cmp_lt_u32 s18, 2\ns_cbranch_scc1 L_qk_i0\nv_mov_b32 v10, v4\nL_qk_i0:')
    A(f's_and_b32 s20, s18, 1\ns_lshl_b32 s20, s20, 12\nv_add_u32 v177, s20, v4\nv_add_u32 v190, 8, v10\nv_add_u32 v191, 8, v177')
    A('s_and_b32 s20, s18, 1\ns_lshl_b32 s20, s20, 4\nv_add_u32 v14, s20, v12\nv_lshlrev_b32 v15, 2, v13\nv_sub_u32 v14, v14, v15')
    for rt in range(2):
        for r in range(4): A(f'v_cmp_le_i32 s[{64+8*rt+2*r}:{65+8*rt+2*r}], {16*rt+r}, v14')
    A(f'v_mov_b32 v178, {f32(-1e9*LOG2E)}')
    A(f'v_cmp_gt_u32 vcc, 16, v1\nv_mov_b32 v15, {OOB}\nv_cndmask_b32 v179, v15, v4, vcc')
    A(f's_and_b32 s20, s18, 1\ns_lshl_b32 s37, s20, 14\ns_lshl_b32 s36, s20, 16\ns_lshl_b32 s20, s17, 8\ns_add_u32 s37, s37, s20\ns_add_u32 s37, s37, {OFF_SEG + C_PXM}')
    A(f's_lshr_b32 s20, s17, 3\ns_lshl_b32 s20, s20, 14\ns_add_u32 s36, s36, s20\ns_and_b32 s20, s17, 7\ns_lshl_b32 s20, s20, 10\ns_add_u32 s36, s36, s20\ns_add_u32 s36, s36, {OFF_SEG + C_PXX}')
    A(f's_mov_b32 s33, {f32(CSC)}')
    A(f's_lshl_b32 s25, s17, 15\ns_add_u32 s25, s25, {kq_place(P)[0]}')
    A('s_mov_b32 s16, 0\ns_mov_b32 s45, -1\ns_mov_b32 s51, -1\ns_mov_b32 s24, 0\ns_mov_b32 s26, 0\ns_mov_b32 s27, 0\ns_mov_b32 s38, -1\ns_mov_b32 s39, -1')
    prod_index(A, 0); flag_prod_addr(A, 'v142', FQ, P, P['KQ'], 3); prod_extra(A, P)
    flag_cons_addr(A, 'v143', FO, P, P['KO'])
    A(f's_lshl_b32 s20, s17, 7\ns_add_u32 s20, s20, {FCH}\ns_add_u32 s20, s20, s19')
    lane0_addr(A, 'v180', 's_cmp_eq_u32 s18, 3')
    A(f's_lshl_b32 s20, s17, 8\ns_add_u32 s20, s20, {FWK}\ns_add_u32 s20, s20, s19\nv_and_b32 v181, 1, v1\nv_lshlrev_b32 v181, 7, v181\nv_add_u32 v181, s20, v181')
    A(f's_lshl_b32 s20, s18, 12\ns_add_u32 s25, s25, s20\ns_add_u32 s40, s20, {L_KX}\ns_and_b32 s20, s20, 0x2000\ns_add_u32 s25, s25, s20')
    def kq_wait(need):
        if P.get('SYNC'):
            min_wait(A, 'v181', 144, need, 's38')
    KP = P.get('KP', 5)
    def kq(j, at=None):
        if at is None or at == KP: A(f'buffer_load_dwordx4 v4, s[4:7], s42 offen offset:{j*1024} sc1 lds')
    def kq4():
        A('s_mov_b32 m0, s40')
        for j in range(4): kq(j)
    kqinc = f's_add_u32 s25, s25, {0 if P.get("FAKE", 0) & 1 else MB}'
    rts(A, P, 1)
    kq_wait('s16')
    A('s_mov_b32 m0, s40')
    side(A, 's42', 's25', kq_place(P)[1])
    for j in range(4): kq(j)
    A('s_waitcnt vmcnt(0)\nL_qk_next:')
    A(f's_add_u32 s21, s16, 1\ns_and_b32 s21, s21, {0 if P.get("FAKE", 0) & 1 else rm(P)}\ns_lshl_b32 s21, s21, 20\ns_add_u32 s42, s25, s21')
    side(A, 's42', 's42', kq_place(P)[1])
    A(f's_and_b32 s21, s16, {rm(P)}\ns_lshl_b32 s21, s21, 20\ns_add_u32 s43, s36, s21\ns_add_u32 s44, s37, s21')
    side(A, 's43', 's43', 's34'); A('s_or_b32 s44, s44, s20')
    if P.get('SYNC'):
        A('s_cmp_eq_u32 s18, 0\ns_cbranch_scc0 L_qk_nokq\ns_add_u32 s41, s16, 1')
        kq_wait('s41')
        A('L_qk_nokq:')
    A(f's_waitcnt vmcnt({0 if P.get("FAKE", 0) & 2 else 2})\ns_barrier')
    stamp_out(A, P, 150)
    for j in range(8): o = L_KX//512 + 8*(j >> 2) + 4*(j & 1); A(f'ds_read2st64_b64 v[{68+4*j}:{71+4*j}], {"v190" if j & 2 else "v10"} offset0:{o} offset1:{o+2}')
    for j in range(4): o = L_QX//512 + 4*(j & 1); A(f'ds_read2st64_b64 v[{160+4*j}:{163+4*j}], {"v191" if j & 2 else "v177"} offset0:{o} offset1:{o+2}')
    A('v_mov_b32 v149, s16\ns_waitcnt lgkmcnt(0)')
    if KP == 1: A('s_barrier'); delay(A, P.get('DK', 0)); kq4()
    A('s_cmp_eq_u32 s18, 1\ns_cbranch_scc0 L_qk_nodma')
    mem_slot(A, P)
    A('s_sub_u32 s35, s16, 1')
    poll(A, P, 'v143', 's35', 182)
    delay(A, P.get('DF', 0))
    if P.get('TS') == 3: stamp(A, P, 4)
    A('s_branch L_qk_dma')
    A('L_qk_retry:')
    A('s_cmp_eq_u32 s18, 1\ns_cbranch_scc0 L_qk_nodma')
    A('L_qk_dma:')
    dma_mem(A, P)
    stamp(A, P, 0)
    A('L_qk_nodma:')
    for r in range(16, 44): A(f'v_mov_b32 v{r}, 0')
    A(f's_and_b32 s20, s16, 3\ns_lshl_b32 s28, s20, 15\ns_add_u32 s28, s28, s19\ns_add_u32 s28, s28, {8*MBLK}')
    A(f's_lshr_b32 s21, s20, 1\ns_lshl_b32 s21, s21, 14\ns_and_b32 s20, s20, 1\ns_lshl_b32 s20, s20, 12\ns_add_u32 s29, s20, s21\ns_add_u32 s29, s29, s19\ns_add_u32 s29, s29, {5*MBLK}')
    if KP == 5: A('s_barrier'); delay(A, P.get('DK', 0)); kq4()
    A(';timed')
    first_pass(A, P, 16, 20, 0, 'L_qk_slow_r', None, kq4 if KP == 2 else None, 4 if KP == 5 else 0)
    if P.get('TS') == 2: stamp(A, P, 4)
    qr = lambda j: f'ds_read_b64_tr_b16 v[{60+2*j}:{61+2*j}], v176 offset:{L_Q + j*512}'
    kr = lambda i, j: f'ds_read_b64_tr_b16 v[{44+8*i+2*j}:{45+8*i+2*j}], v7 offset:{L_K + i*288 + (j>>1)*576 + (j&1)*64}'
    bar = 's_waitcnt lgkmcnt(0)\ns_barrier'; fqs = 'buffer_store_dword v149, v142, s[8:11], 0 offen sc1'
    F = {1: 'v_add_f32 v16, v16, v18', 2: 'v_add_f32 v17, v17, v19', 3: 'v_add_f32 v20, v20, v22', 4: 'v_add_f32 v21, v21, v23',
         5: 'v_cvt_pk_bf16_f32 v18, v16, v17', 6: 'v_cvt_pk_bf16_f32 v19, v20, v21', 7: 'ds_write2st64_b32 v5, v18, v19 offset0:0 offset1:4',
         8: 'v_cmp_u_f32 vcc, v16, v17', 10: 's_cbranch_vccnz L_qk_slow\nL_qk_back:', 11: 'v_add_f32 v24, v24, v26', 12: 'v_add_f32 v25, v25, v27',
         13: bar + '\nv_cvt_pk_bf16_f32 v24, v24, v25', 14: 'ds_write_b32 v6, v24', 15: qr(0) + '\n' + qr(1), 16: qr(2) + '\n' + qr(3),
         17: 's_add_u32 s16, s16, 1\ns_cmp_lt_u32 s18, 2', 18: 's_waitcnt lgkmcnt(4)\ns_barrier', 19: kr(0, 0) + '\n' + kr(0, 1) + '\ns_waitcnt lgkmcnt(4)'}
    assert KP
    for i in range(20):
        if P['FQ'] == i: A(fqs)
        A(f'{SM} v[{24+4*(i//10)}:{27+4*(i//10)}], v[{AR+4*(i%10)}:{AR+4*(i%10)+3}], {wreg(20+2*(i%10)+i//10)}, v3')
        if i in F: A(F[i])
        if i == 11 and P.get('TS') == 2: stamp(A, P, 5)
    if P.get('TS') == 2: stamp(A, P, 6)
    A(f'{SM} v[32:35], v[60:63], v[68:75], v3\n{kr(0, 2)}\n{kr(0, 3)}')
    A('v_add_f32 v28, v28, v30\nv_add_f32 v29, v29, v31\nv_cvt_pk_bf16_f32 v25, v28, v29\nds_write_b32 v6, v25 offset:288')
    A('s_cbranch_scc0 L_qk_xa')
    A(f'{SM} v[36:39], v[60:63], v[84:91], v3\ns_waitcnt lgkmcnt(5)\n{SM} v[32:35], v[64:67], v[76:83], v3\n{SM} v[36:39], v[64:67], v[92:99], v3')
    A(bar)
    stamp(A, P, 2)
    for j in range(4): A(kr(1, j))
    A(f'{SM} v[40:43], v[60:63], v[44:51], v3')
    A('s_cmp_eq_u32 s18, 0\ns_cbranch_scc0 L_qk_u1')
    for u in range(2):
        if u: A('L_qk_u1:')
        A(f'v_add_f32 v32, v{32+u}, v{34+u}\nv_add_f32 v36, v{36+u}, v{38+u}\nv_max_f32 v33, v32, v36')
        A('s_waitcnt lgkmcnt(0)')
        A(f'{SM} v[40:43], v[64:67], v[52:59], v3')
        if P.get('TS') == 2: stamp(A, P, 7)
        A(f'v_max_f32_dpp v33, v33, v33 row_ror:8 {DPP}\nv_mul_f32 v32, s33, v32\nv_mul_f32 v36, s33, v36')
        A(f'v_add_f32 v40, v{40+u}, v{42+u}')
        A(f'v_max_f32 v33, v33, v40\nv_mul_f32 v40, s33, v40')
        for r in (4, 2, 1): A(f'v_max_f32_dpp v33, v33, v33 row_ror:{r} {DPP}')
        A('v_fma_f32 v32, -v33, s33, v32\nv_fma_f32 v36, -v33, s33, v36\nv_fma_f32 v40, -v33, s33, v40')
        A('v_exp_f32 v32, v32\nv_exp_f32 v36, v36\nv_exp_f32 v40, v40')
        A(f'v_add_f32 v33, v32, v36\nv_fma_f32 v33, v40, 0.5, v33\nv_mov_b32_dpp v41, v40 quad_perm:[1,0,3,2] {DPP}')
        for r in (8, 4, 2, 1): A(f'v_add_f32_dpp v33, v33, v33 row_ror:{r} {DPP}')
        A('v_rcp_f32 v33, v33')
        A('v_mul_f32 v32, v32, v33\nv_mul_f32 v36, v36, v33\nv_mul_f32 v40, v40, v33')
        A('v_cvt_pk_bf16_f32 v32, v32, v36\nv_mul_f32 v41, v41, v33\nbuffer_store_dword v32, v8, s[8:11], s28 offen sc1')
        A('v_cvt_pk_bf16_f32 v40, v40, v41\nbuffer_store_dword v40, v9, s[8:11], s29 offen sc1')
        if u == 0: A('s_branch L_qk_sm')
    A(';counted')
    A('L_qk_sm:')
    stamp(A, P, 3)
    A(f's_xor_b32 s28, s28, {4*MBLK}\ns_xor_b32 s29, s29, {3*MBLK}')
    if KP == 4:
        delay(A, P.get('DK', 0))
        kq4(); A('s_add_u32 m0, s40, 8192\ns_add_u32 s42, s42, 16384')
        for j in range(4): kq(j)
    A('buffer_store_dword v11, v8, s[8:11], s28 offen sc1\nbuffer_store_dword v11, v9, s[8:11], s29 offen sc1')
    A('s_cmp_lt_u32 s16, 64\ns_cbranch_scc1 L_qk_next\ns_branch L_qk_fin')
    A('L_qk_xa:')
    if P['FQ'] == 20: A(fqs)
    NX = P.get('NX', 2)
    for i in range(12):
        j, rt = i >> 1, 1 - (i & 1)
        if i == NX: A(bar); stamp(A, P, 2)
        if i == 10: A('s_waitcnt lgkmcnt(0)')
        if i < 8: A(f'{MF} v[{32+4*rt}:{35+4*rt}], v[{68+16*rt+4*j}:{71+16*rt+4*j}], v[{160+4*j}:{163+4*j}], {"0" if j == 0 else f"v[{32+4*rt}:{35+4*rt}]"}')
        else: A(f'{MF} v[40:43], v[{12+4*i}:{15+4*i}], v[{128+4*i}:{131+4*i}], {"0" if i == 8 else "v[40:43]"}')
        if P['FQ'] == 21 + i - NX and i >= NX: A(fqs)
        if i - NX in (1, 2): A(kr(1, 2*(i - NX) - 2) + '\n' + kr(1, 2*(i - NX) - 1))
    for r in range(8): A(f'v_cndmask_b32 v{32+r}, v178, v{32+r}, s[{64+2*r}:{65+2*r}]')
    A('v_max3_f32 v16, v32, v33, v34\nv_max3_f32 v17, v35, v36, v37\nv_max3_f32 v16, v16, v38, v39\nv_max3_f32 v17, v17, v40, v41\nv_max3_f32 v16, v16, v42, v43\nv_max_f32 v16, v16, v17')
    def xred(op):
        A(f'v_mov_b32 v17, v16\nv_permlane32_swap_b32 v16, v17\n{op} v16, v16, v17\nv_mov_b32 v17, v16\nv_permlane16_swap_b32 v16, v17\n{op} v16, v16, v17')
    xred('v_max_f32')
    for r in range(32, 44): A(f'v_sub_f32 v{r}, v{r}, v16')
    for r in range(32, 44): A(f'v_exp_f32 v{r}, v{r}')
    A('v_add_f32 v17, v40, v41\nv_add_f32 v18, v42, v43\nv_add_f32 v16, v32, v33\nv_add_f32 v17, v17, v18')
    for r in range(34, 40): A(f'v_add_f32 v16, v16, v{r}')
    A('v_fma_f32 v16, v17, 0.5, v16')
    xred('v_add_f32')
    A('v_rcp_f32 v16, v16')
    for r in range(32, 44): A(f'v_mul_f32 v{r}, v{r}, v16')
    for r in range(4): A(f'v_cvt_pk_bf16_f32 v{20+r}, v{32+r}, v{36+r}')
    A('v_cvt_pk_bf16_f32 v24, v40, v41\nv_cvt_pk_bf16_f32 v26, v42, v43\nv_cvt_pk_bf16_f32 v25, v40, v41\nv_cvt_pk_bf16_f32 v27, v42, v43')
    A('v_permlane16_swap_b32 v24, v25\nv_permlane16_swap_b32 v26, v27')
    if not P.get('FAKE', 0) & 2: A('buffer_store_dwordx4 v[20:23], v4, s[4:7], s43 offen sc1\nbuffer_store_dwordx4 v[24:27], v179, s[4:7], s44 offen sc1')
    A('s_cmp_lt_u32 s16, 64\ns_cbranch_scc1 L_qk_next')
    A('L_qk_fin:\ns_waitcnt vmcnt(0)\ns_barrier\nbuffer_store_dword v149, v180, s[8:11], 0 offen sc1\ns_branch L_qk_end')
    slow_check(A, P, 'L_qk_slow', 'L_qk_back', 'L_qk_retry', 'L_qk_end')
    A('L_qk_end:')
    stats(A, P)
def role_vo(A, P):
    chain_lane(A)
    A('v_mov_b32 v9, v10')
    A('v_mul_u32_u24 v10, 5120, v13\nv_lshl_add_u32 v10, v12, 2, v10')
    A('s_mul_i32 s20, s17, 163840\ns_mul_i32 s21, s18, 320\ns_add_u32 s20, s20, s21\nv_add_u32 v10, s20, v10')
    g = [grp(lambda half, jp, c: 64*ks + 32*half + 16*(jp >> 1) + 2*(jp & 1) + c, 1280, j*64, 20 + 4*j + 2*ks, 21 + 4*j + 2*ks) + (1,) for ks in range(2) for j in range(5)]
    set_srd(A, 12, 32, 640*8192); set_srd(A, 92, 40, 32*163840)
    load_weights2(A, [(memw(0), 's[12:15]', 'v9', 1), (g, 's[92:95]', 'v10', 5)])
    wait_init(A, P, 171)
    A(f's_mul_i32 s20, s18, 576\ns_add_u32 s20, s20, {L_Q}\nv_lshlrev_b32 v5, 4, v12\nv_lshl_add_u32 v5, v13, 2, v5\nv_add_u32 v5, s20, v5')
    A('v_bfe_u32 v14, v12, 2, 1\nv_mul_u32_u24 v176, 288, v14\nv_lshl_add_u32 v176, v13, 6, v176\nv_cmp_eq_u32 vcc, 0, v14\nv_lshrrev_b32 v14, 3, v12\nv_lshl_add_u32 v176, v14, 4, v176')
    A('v_and_b32 v14, 2, v12\nv_lshl_add_u32 v176, v14, 2, v176\nv_mov_b32 v177, 0xeeee\nv_mov_b32 v14, 0x4444\nv_cndmask_b32 v177, v177, v14, vcc')
    for sh, a, b in ((14, 8, 9),):
        A(f's_mul_i32 s20, s18, {10 << sh}\ns_lshl_b32 s21, s17, 8\ns_add_u32 s20, s20, s21\nv_lshlrev_b32 v{a}, 4, v12\nv_add_u32 v{a}, s20, v{a}')
        A(f'v_and_b32 v14, 1, v13\nv_lshl_add_u32 v{b}, v14, {sh}, v{a}\nv_lshrrev_b32 v14, 1, v13\nv_lshl_add_u32 v{b}, v14, 3, v{b}\nv_lshl_add_u32 v{a}, v13, {sh}, v{a}')
    A(f's_mov_b32 s16, 0\ns_mov_b32 s45, -1\ns_mov_b32 s51, -1\ns_mov_b32 s24, 0\ns_mov_b32 s26, 0\ns_mov_b32 s27, 0\ns_mov_b32 s36, {OFF_SEG + C_UMR}')
    flag_cons_addr(A, 'v143', FO, P, P['KO'])
    prod_index(A, 1); flag_prod_addr(A, 'v142', FQ, P, P['KQ'], 3); prod_extra(A, P)
    A(f's_lshl_b32 s20, s17, 7\ns_add_u32 s20, s20, {FCH + 4096}\ns_add_u32 s20, s20, s19')
    lane0_addr(A, 'v180', 's_cmp_eq_u32 s18, 3')
    rts(A, P, 1)
    A('L_vo_step:')
    stamp_out(A, P, 150)
    A('s_cmp_eq_u32 s18, 2\ns_cbranch_scc0 L_vo_nodma')
    mem_slot(A, P)
    A('s_sub_u32 s35, s16, 1')
    poll(A, P, 'v143', 's35', 182)
    delay(A, P.get('DF', 0))
    if P.get('TS') == 3: stamp(A, P, 4)
    A('s_branch L_vo_dma')
    A('L_vo_retry:')
    A('s_cmp_eq_u32 s18, 2\ns_cbranch_scc0 L_vo_nodma')
    A('L_vo_dma:')
    dma_mem(A, P)
    stamp(A, P, 0)
    A('L_vo_nodma:')
    for r in range(16, 24): A(f'v_mov_b32 v{r}, 0')
    for r in range(32, 52): A(f'v_mov_b32 v{r}, 0')
    A('v_mov_b32 v149, s16')
    A(f's_and_b32 s20, s16, 1\ns_mul_i32 s28, s20, {40*MBLK}\ns_add_u32 s28, s28, s19\ns_add_u32 s28, s28, {16*MBLK}')
    A(f's_add_u32 s29, s28, {4*MBLK}\ns_add_u32 s30, s28, {8*MBLK}')
    A(';timed')
    first_pass(A, P, 16, 20, 0, 'L_vo_slow_r')
    if P.get('TS') == 2: stamp(A, P, 4)
    A('v_add_f32 v16, v16, v18\nv_add_f32 v17, v17, v19\nv_cvt_pk_bf16_f32 v18, v16, v17\nv_add_f32 v20, v20, v22\nv_add_f32 v21, v21, v23')
    A('v_cvt_pk_bf16_f32 v19, v20, v21\nds_write2_b32 v5, v18, v19 offset0:0 offset1:72\nv_cmp_u_f32 vcc, v16, v17')
    A('s_cbranch_vccnz L_vo_slow\nL_vo_back:')
    FV = P.get('FV', 0) if P['KQ'] > 4 or P.get('VETO') else -9; fvs = 'buffer_store_dword v149, v142, s[8:11], 0 offen sc1'
    A('s_add_u32 s16, s16, 1')
    if FV == 0: A(fvs)
    A('s_waitcnt lgkmcnt(0)\ns_barrier')
    if P.get('TS') == 2: stamp(A, P, 5)
    for k in range(8): A(f'ds_read_b64_tr_b16 v[{52+2*k}:{53+2*k}], v176 offset:{L_Q + (k>>1)*576 + (k&1)*32}')
    if FV == 1: A(fvs)
    cv = lambda j, h: f'v_cvt_pk_bf16_f32 v{72+2*j+h}, v{32+4*j+2*h}, v{33+4*j+2*h}'
    sw = lambda b: f'v_permlane32_swap_b32 v{b}, v{b+2}'
    st = lambda b, so: f'buffer_store_dwordx4 v[{b}:{b+3}], v8, s[8:11], {so} offen sc1'
    F = {5: cv(0, 0), 6: cv(0, 1), 9: cv(1, 0), 10: cv(1, 1), 11: sw(72), 12: sw(73), 13: st(72, 's28') + '\n' + cv(2, 0), 14: cv(2, 1), 17: cv(3, 0), 18: cv(3, 1)}
    for i in range(20):
        j, ks = i >> 2, i & 3
        if i < 4: A(f's_waitcnt lgkmcnt({6 - 2*i})')
        if FV == 2 + i: A(fvs)
        A(f'{SM} v[{32+4*j}:{35+4*j}], v[{52+4*ks}:{55+4*ks}], {wreg(20+i)}, v177')
        if i == 3 and P.get('TS') == 2: stamp(A, P, 6)
        if i in F: A(F[i])
    if P.get('TS') == 2: stamp(A, P, 7)
    A('\n'.join([sw(76), sw(77), st(76, 's29'), cv(4, 0), cv(4, 1)]))
    A('buffer_store_dwordx2 v[80:81], v9, s[8:11], s30 offen sc1')
    A(';counted')
    stamp(A, P, 3)
    delay(A, P.get('DR', 0))
    A(f's_sub_u32 s28, s16, 1\ns_and_b32 s28, s28, {rm(P)}\ns_lshl_b32 s28, s28, 20\ns_add_u32 s28, s28, s36')
    side(A, 's28', 's28', 's34')
    A(f's_add_u32 s29, s28, {4*MBLK}\ns_add_u32 s30, s28, {8*MBLK}')
    if not P.get('FAKE', 0) & 2: A('buffer_store_dwordx4 v[72:75], v8, s[4:7], s28 offen sc1\nbuffer_store_dwordx4 v[76:79], v8, s[4:7], s29 offen sc1\nbuffer_store_dwordx2 v[80:81], v9, s[4:7], s30 offen sc1')
    A('s_cmp_lt_u32 s16, 64\ns_cbranch_scc1 L_vo_step')
    A('s_waitcnt vmcnt(0)\ns_barrier\nbuffer_store_dword v149, v180, s[8:11], 0 offen sc1\ns_branch L_vo_end')
    slow_check(A, P, 'L_vo_slow', 'L_vo_back', 'L_vo_retry', 'L_vo_end')
    A('L_vo_end:')
    stats(A, P)
def role_own(A, P):
    common_lane(A)
    A('s_cmp_eq_u32 s18, 0\ns_cbranch_scc1 L_own_go\ns_endpgm\nL_own_go:')
    wait_init(A, P, 171, False, 4); rts(A, P, 10)
    A('v_and_b32 v3, 1, v1\nv_cmp_eq_u32 vcc, 0, v3\nv_mov_b32 v3, 0xeeee\nv_mov_b32 v5, 0x4444\nv_cndmask_b32 v3, v3, v5, vcc')
    A('v_lshlrev_b32 v6, 2, v1')
    for r in range(8, 11): A(f'v_mov_b32 v{r}, -1')
    A(f's_lshl_b32 s36, s17, 8\ns_mov_b32 s35, {MBLK}\ns_cmp_lt_u32 s17, 32\ns_cbranch_scc1 L_own_a\ns_movk_i32 s35, 2048\ns_add_u32 s36, s36, {4*MBLK - 8192}\nL_own_a:\ns_add_u32 s36, s36, s19')
    A(f's_lshl_b32 s25, s17, 16\ns_add_u32 s25, s25, {OFF_UX}')
    A(f's_lshl_b32 s37, s17, 8\ns_add_u32 s37, s37, {OFF_REC + 16384}')
    A('s_mov_b32 s16, 0\ns_mov_b32 s45, -1\ns_mov_b32 s51, -1\ns_mov_b32 s24, 0\ns_mov_b32 s26, 0\ns_mov_b32 s27, 0\ns_mov_b32 s48, -1\ns_mov_b32 s49, -1')
    A('s_mov_b32 s21, s17'); flag_prod_addr(A, 'v2', FO, P, P['KO'], 0)
    flag_cons_addr(A, 'v7', FQ, P, P['KQ'] + P.get('VETO', 0))
    A(f's_xor_b32 s20, s19, 0x2000\ns_add_u32 s20, s20, {FAG}')
    lane0_addr(A, 'v5', f's_cmp_eq_u32 s17, {P.get("MA", 39)}')
    A(f's_and_b32 s21, s2, {3 if P.get("ROT", 1) else 0}')
    for g in range(4):
        A(f's_xor_b32 s20, s21, {g}\ns_lshl_b32 s{56+g}, s20, 14\ns_lshl_b32 s{60+g}, s20, 10\ns_lshr_b32 s{52+g}, s20, 1\ns_lshl_b32 s{52+g}, s{52+g}, 14\ns_and_b32 s20, s20, 1\ns_lshl_b32 s20, s20, 12\ns_add_u32 s{52+g}, s{52+g}, s20')
        if P.get('UXS', 1) == 1: A(f's_lshl_b32 s20, s20, 1\ns_add_u32 s{56+g}, s{56+g}, s20')
    A(f'v_lshlrev_b32 v1, 7, v1\ns_add_u32 s20, s19, {FWV}\nv_add_u32 v1, s20, v1')
    A('L_own_step:')
    if P.get('SYNC'):
        min_wait(A, 'v1', 16, 's16', 's48')
    delay(A, P.get('DU', 0))
    A(f's_and_b32 s21, s16, {0 if P.get("FAKE", 0) & 1 else rm(P)}\ns_mul_i32 s21, s21, {40*65536}\ns_add_u32 s21, s21, s25')
    side(A, 's21', 's21', 's19' if P.get('UXS', 1) == 2 else 's34')
    for j in range(32):
        if (j & 7) == 0: A(f's_xor_b32 s20, s21, s{56 + (j>>3)}')
        if (j & 7) == 4: A('s_add_u32 s20, s20, 4096')
        A(f'buffer_load_dwordx4 v[{64+4*j}:{67+4*j}], v4, s[4:7], s20 offen offset:{(j&3)*1024} sc1')
    A(f's_and_b32 s20, s16, 1\ns_mul_i32 s20, s20, 40\ns_add_u32 s20, s20, s17\ns_add_u32 s20, s20, 16\ns_lshl_b32 s28, s20, 14\ns_add_u32 s28, s28, s19\ns_add_u32 s38, s28, 4096')
    A(f's_and_b32 s20, s16, 3\ns_lshl_b32 s29, s20, 15\ns_add_u32 s29, s29, s19\ns_add_u32 s29, s29, {8*MBLK}')
    A('s_add_u32 s39, s29, s53\ns_add_u32 s40, s29, s54\ns_add_u32 s41, s29, s55\ns_add_u32 s29, s29, s52')
    A(f's_lshr_b32 s21, s20, 1\ns_lshl_b32 s21, s21, 14\ns_and_b32 s20, s20, 1\ns_lshl_b32 s20, s20, 12\ns_add_u32 s30, s20, s21\ns_add_u32 s30, s30, s19\ns_add_u32 s30, s30, {5*MBLK}')
    A('s_add_u32 s20, s16, 1\ns_and_b32 s20, s20, 3\ns_mul_i32 s42, s20, s35\ns_add_u32 s42, s42, s36\ns_xor_b32 s20, s20, 2\ns_mul_i32 s43, s20, s35\ns_add_u32 s43, s43, s36')
    for g in range(4): A(f's_add_u32 s{64+g}, s30, s{60+g}\ns_lshl_b32 s20, s{60+g}, 1\ns_add_u32 s{68+g}, s28, s20')
    A('v_mov_b32 v0, s16')
    if P.get('SYNC'):
        A(f's_add_u32 s20, s16, {P.get("PA", 3)}\ns_min_u32 s20, s20, 63\ns_cmp_ge_i32 s48, s20\ns_cbranch_scc1 L_own_known')
        A('buffer_load_dword v16, v1, s[8:11], 0 offen sc1\ns_waitcnt vmcnt(0)')
        min_lanes(A, 16, 's48')
        A('L_own_known:')
    A('s_waitcnt vmcnt(0)')
    stamp(A, P, 4)
    poll(A, P, 'v7', 's16', 16, P.get('VETO'))
    if P.get('VETO'): A('s_cmp_gt_u32 vcc_lo, 1\ns_cbranch_scc1 L_own_veto')
    stamp(A, P, 0)
    if P['FO'] == -1: A('buffer_store_dword v0, v2, s[8:11], 0 offen sc1')
    A('L_own_retry:')
    for j in range(8): A(f'buffer_load_dwordx4 v[{32+4*j}:{35+4*j}], v4, s[8:11], s{68+(j>>1)} offen offset:{(j&1)*1024} sc1')
    delay(A, P.get('DM', 0))
    fo = P['FO']
    def flag(pos):
        if fo == pos: A('buffer_store_dword v0, v2, s[8:11], 0 offen sc1')
    for j in range(16): A(f'buffer_load_dwordx4 v[{192+4*j}:{195+4*j}], v4, s[8:11], s{[29,39,40,41][j>>2]} offen offset:{(j&3)*1024} sc1')
    for j in range(4): A(f'buffer_load_dwordx4 v[{16+4*j}:{19+4*j}], v4, s[8:11], s{64+j} offen sc1')
    for r in range(12, 16): A(f'v_mov_b32 v{r}, 0')
    delay(A, P.get('DO', 0))
    flag(0)
    stamp(A, P, 1)
    for j in range(16):
        A(f's_waitcnt vmcnt({19-j + (0 <= fo <= j)})')
        flag(j + 1)
        if j == 0: stamp(A, P, 2)
        A(f'{SM} v[12:15], v[{192+4*j}:{195+4*j}], v[{64+8*j}:{71+8*j}], v3')
    for j in range(4):
        A(f's_waitcnt vmcnt({3-j + (0 <= fo <= 16)})')
        A(f'{SM} v[12:15], v[{16+4*j}:{19+4*j}], v[{32+8*j}:{39+8*j}], v3')
    if P.get('CX', 1):
        A('v_add_f32 v12, v12, v13\nv_add_f32 v14, v14, v15\nv_cmpx_o_f32 vcc, v12, v14\nv_cvt_pk_bf16_f32 v13, v12, v14')
        A('buffer_store_dword v13, v6, s[8:11], s42 offen sc1\ns_cmp_eq_u64 exec, -1\ns_mov_b64 exec, -1\ns_cbranch_scc0 L_own_slow\nL_own_back:')
    else:
        A('v_add_f32 v12, v12, v13\nv_add_f32 v14, v14, v15\nv_cmp_u_f32 vcc, v12, v14\nv_cvt_pk_bf16_f32 v13, v12, v14')
        A('s_cbranch_vccnz L_own_slow\nbuffer_store_dword v13, v6, s[8:11], s42 offen sc1\nL_own_back:')
    stamp(A, P, 3)
    flag(17)
    if P.get('VETO'): A('s_cmp_eq_u32 s51, s16\ns_cbranch_scc0 L_own_nl\nv_and_b32 v2, 0xdfffffff, v2\nbuffer_store_dword v0, v2, s[8:11], 0 offen sc1\nL_own_nl:')
    delay(A, P.get('DP', 0))
    A('buffer_store_dword v11, v6, s[8:11], s43 offen sc1\nbuffer_store_dword v0, v5, s[8:11], 0 offen sc1')
    for j in range(8): A(f'buffer_store_dwordx4 v[8:11], v4, s[8:11], {"s28" if j < 4 else "s38"} offen offset:{(j&3)*1024} sc1')
    if P.get('DBG'):
        A('buffer_store_dword v13, v6, s[4:7], s37 offen\ns_add_u32 s37, s37, 16384')
        A('s_cmp_eq_u32 s16, 2\ns_cbranch_scc0 L_own_nt\ns_memtime s[44:45]\ns_mov_b32 s27, s24\ns_mov_b32 s50, 0\nL_own_nt:')
    if P.get('RT'):
        for k, st in ((1, 0), (3, 1), (4, 10), (5, 20), (6, 30), (7, 40)):
            l = A.lab('rt'); A(f's_cmp_eq_u32 s16, {st}\ns_cbranch_scc0 {l}'); rts(A, P, k); A(f'{l}:')
    A('s_add_u32 s16, s16, 1')
    stamp_out(A, P, 16)
    A('s_cmp_lt_u32 s16, 63\ns_cbranch_scc1 L_own_step')
    if P.get('DBG'): A('s_memtime s[46:47]\ns_waitcnt lgkmcnt(0)\ns_sub_u32 s26, s46, s44\ns_mov_b32 s16, s50')
    A('s_branch L_own_end')
    if P.get('VETO'):
        A('L_own_veto:\nv_or_b32 v2, 0x20000000, v2\ns_mov_b32 s51, s16')
        if P.get('DBG'): A('s_add_u32 s50, s50, 1')
        A(f'L_own_all:\ns_add_u32 s20, s19, {FA}\ns_waitcnt vmcnt(0)\nv_lshl_add_u32 v17, v4, 3, s20')
        wait_flags(A, None, None, 's16', None, 16, 17, 0)
        A('s_branch L_own_retry')
    A('L_own_slow:')
    if P.get('VETO'): A('s_add_u32 s24, s24, 1\ns_cmp_eq_u32 s49, s16\ns_mov_b32 s49, s16\ns_cbranch_scc0 L_own_retry')
    if P.get('DBG') and not P.get('VETO'):
        for lo, hi, unit in ((32, 64, 1), (192, 256, 1 << 10), (16, 32, 1 << 20)):
            A(f'v_max_u32 v13, v{lo}, v{lo+1}')
            for r in range(lo + 2, hi, 2): A(f'v_max3_u32 v13, v13, v{r}, v{r+1}')
            l = A.lab('dg'); A(f'v_cmp_eq_u32 vcc, -1, v13\ns_cbranch_vccz {l}\ns_add_u32 s50, s50, {unit}\n{l}:')
    A('v_max3_u32 v13, v16, v17, v18')
    rs = list(range(19, 64)) + list(range(192, 256))
    A(f'v_max_u32 v13, v13, v{rs.pop()}')
    for a, b in zip(rs[0::2], rs[1::2]): A(f'v_max3_u32 v13, v13, v{a}, v{b}')
    A('v_cmp_eq_u32 vcc, -1, v13\ns_cbranch_vccnz L_own_again\nv_cvt_pk_bf16_f32 v13, v12, v14\nbuffer_store_dword v13, v6, s[8:11], s42 offen sc1\ns_branch L_own_back\nL_own_again:')
    if P.get('VETO'): A('s_cmp_gt_u32 s24, 200000\ns_cbranch_scc0 L_own_all')
    else: A('s_add_u32 s24, s24, 1\ns_cmp_gt_u32 s24, 200000\ns_cbranch_scc0 L_own_retry')
    A('L_own_end:')
    stats(A, P)
```

```python
from common import *
MF = 'v_mfma_f32_16x16x32_bf16'
def role_ln(A, P):
    common_lane(A)
    set_srd(A, 12, 0, 2048*1280)
    ln_load(A, 's17', 20)
    A('s_waitcnt vmcnt(0)')
    ln_compute(A, 's17', 20)
def ln_load(A, tile, r):
    A(f'v_mul_u32_u24 v5, 1280, v12\nv_lshl_add_u32 v5, v13, 4, v5\ns_mul_i32 s20, {tile}, 20480\ns_mul_i32 s21, s18, 320\ns_add_u32 s20, s20, s21')
    for j in range(5): A(f'buffer_load_dwordx4 v[{r+4*j}:{r+3+4*j}], v5, s[12:15], s20 offen offset:{j*64}')
def ln_compute(A, tile, r):
    A('v_lshlrev_b32 v6, 2, v12\ns_lshl_b32 s21, s18, 6\nv_add_u32 v7, s21, v6')
    for j in range(20):
        A(f'v_lshlrev_b32 v{40+2*j}, 16, v{r+j}\nv_and_b32 v{41+2*j}, 0xffff0000, v{r+j}')
    def red(base):
        A('v_mov_b32 v9, v8\nv_permlane32_swap_b32 v8, v9\nv_add_f32 v8, v8, v9\nv_mov_b32 v9, v8\nv_permlane16_swap_b32 v8, v9\nv_add_f32 v8, v8, v9')
        A(f'ds_write_b32 v7, v8 offset:{base}\ns_waitcnt lgkmcnt(0)\ns_barrier')
        A(f'ds_read_b32 v8, v6 offset:{base}\nds_read_b32 v9, v6 offset:{base+64}\nds_read_b32 v10, v6 offset:{base+128}\nds_read_b32 v14, v6 offset:{base+192}')
        A('s_waitcnt lgkmcnt(0)\nv_add_f32 v8, v8, v9\nv_add_f32 v10, v10, v14\nv_add_f32 v8, v8, v10')
    A('v_add_f32 v8, v40, v41\nv_add_f32 v9, v42, v43')
    for j in range(2, 20): A(f'v_add_f32 v8, v8, v{40+2*j}\nv_add_f32 v9, v9, v{41+2*j}')
    A('v_add_f32 v8, v8, v9')
    red(0)
    A(f'v_mul_f32 v8, {f32(1/640)}, v8')
    for j in range(40): A(f'v_sub_f32 v{40+j}, v{40+j}, v8')
    A('v_mul_f32 v8, v40, v40\nv_mul_f32 v9, v41, v41')
    for j in range(1, 20): A(f'v_fmac_f32 v8, v{40+2*j}, v{40+2*j}\nv_fmac_f32 v9, v{41+2*j}, v{41+2*j}')
    A('v_add_f32 v8, v8, v9')
    red(256)
    A(f'v_mov_b32 v9, {f32(1e-5)}\nv_fmac_f32 v9, {f32(1/640)}, v8\nv_rsq_f32 v8, v9')
    for j in range(40): A(f'v_mul_f32 v{40+j}, v{40+j}, v8')
    for j in range(20): A(f'v_cvt_pk_bf16_f32 v{r+j}, v{40+2*j}, v{41+2*j}')
    A(f's_mul_i32 s20, {tile}, 20480\ns_mul_i32 s21, s18, 5120\ns_add_u32 s20, s20, s21\ns_add_u32 s20, s20, {OFF_XN}\ns_add_u32 s21, s20, 4096')
    for j in range(5): A(f'buffer_store_dwordx4 v[{r+4*j}:{r+3+4*j}], v4, s[4:7], {"s20" if j < 4 else "s21"} offen offset:{(j&3)*1024} sc1')
def role_poison(A, P, blk='s17'):
    A(f'v_lshlrev_b32 v110, 4, v0\nv_mov_b32 v111, v110\ns_lshl_b32 s20, {blk}, 14')
    for r in range(112, 116): A(f'v_mov_b32 v{r}, -1')
    l = A.lab('po')
    A(f's_cmp_eq_u32 {blk}, 4\ns_cbranch_scc0 {l}\nv_cmp_gt_u32 vcc, 128, v0\nv_mov_b32 v116, {OOB}\nv_cndmask_b32 v111, v110, v116, vcc\n{l}:')
    for j in range(4):
        A(f'buffer_store_dwordx4 v[112:115], {"v111" if j in (0, 2) else "v110"}, s[8:11], s20 offen sc1\ns_add_u32 s20, s20, 4096')
def role_mem0(A, P):
    common_lane(A)
    set_srd(A, 12, 8, 8*1280)
    A('s_lshl_b32 s20, s17, 2\ns_add_u32 s20, s20, s18')
    A('s_lshr_b32 s21, s20, 1\ns_lshl_b32 s21, s21, 6\ns_and_b32 s22, s20, 1\ns_lshl_b32 s22, s22, 1\ns_add_u32 s21, s21, s22')
    A('v_mul_u32_u24 v5, 2560, v13\nv_lshl_add_u32 v5, v12, 2, v5')
    A('buffer_load_ushort v6, v5, s[12:15], s21 offen\nbuffer_load_ushort v7, v5, s[12:15], s21 offen offset:1280')
    A(f's_lshl_b32 s21, s20, 8\ns_add_u32 s22, s21, {4*MBLK - 8192}\ns_cmp_lt_u32 s20, 32\ns_cselect_b32 s21, s21, s22\ns_add_u32 s22, s21, 8192')
    A('v_lshlrev_b32 v5, 2, v1\ns_waitcnt vmcnt(0)\nv_lshl_or_b32 v6, v7, 16, v6')
    A('buffer_store_dword v6, v5, s[8:11], s21 offen sc1\nbuffer_store_dword v6, v5, s[8:11], s22 offen sc1')
def role_calib(A, P):
    N = P.get('NCAL', 4)
    A('v_mov_b32 v5, 0\nv_mov_b32 v6, 0\nv_and_b32 v9, 31, v0\nv_lshlrev_b32 v9, 2, v9')
    for j in range(N):
        for h in range(2): A(f's_mov_b32 s20, {(112+j)*MBLK + h*8192 + j*1280}\nbuffer_store_dword v6, v9, s[8:11], s20 offen sc1')
    A('s_waitcnt vmcnt(0)\ns_mov_b32 s26, -1\ns_mov_b32 s27, -1')
    for j in range(N):
        for h in range(2):
            A(f's_mov_b32 s20, {(112+j)*MBLK + h*8192 + j*1280}\ns_memtime s[22:23]\ns_waitcnt lgkmcnt(0)')
            A('buffer_load_dword v6, v5, s[8:11], s20 offen sc1\ns_waitcnt vmcnt(0)\ns_memtime s[24:25]\ns_waitcnt lgkmcnt(0)')
            A(f's_sub_u32 s24, s24, s22\ns_min_u32 s{26+h}, s{26+h}, s24')
    A(f's_cmp_le_u32 s26, s27\ns_cselect_b32 s19, 0, 0x2000')
def init_kernel(A, P, name):
    prologue(A, name, pol=False, P=P)
    rts(A, P, 8)
    A('s_mov_b32 s17, s2\ns_cmp_lt_u32 s2, 128\ns_cbranch_scc1 L_i_ln')
    A('s_sub_u32 s17, s2, 128\ns_cmp_eq_u32 s17, 0\ns_cbranch_scc1 L_i_cal\ns_cmp_lt_u32 s17, 112\ns_cbranch_scc1 L_i_po')
    A('s_sub_u32 s17, s17, 112\ns_cmp_lt_u32 s17, 10\ns_cbranch_scc1 L_i_m0\ns_endpgm')
    A('L_i_cal:\nv_lshrrev_b32 v2, 6, v0\nv_readfirstlane_b32 s18, v2\ns_cmp_eq_u32 s18, 0\ns_cbranch_scc1 L_i_cal2\ns_endpgm\nL_i_cal2:')
    role_calib(A, P)
    rts(A, P, 9)
    if 'POL' in P: A(f's_mov_b32 s19, {P["POL"]}')
    A(f'v_mov_b32 v6, s19\nv_mov_b32 v7, s26\nv_mov_b32 v8, s27\ns_mov_b32 s20, {OFF_POL}\nbuffer_store_dwordx3 v[6:8], v5, s[4:7], s20 offen\ns_endpgm')
    A('L_i_po:'); role_poison(A, P); A('s_endpgm')
    A('L_i_m0:'); role_mem0(A, P); A('s_endpgm')
    A('L_i_ln:'); role_ln(A, P); rts(A, P, 9); A('s_endpgm')
def signal_init(A, val):
    A(f'v_cmp_eq_u32 vcc, 0, v0\nv_mov_b32 v5, {OOB}\nv_cndmask_b32 v5, v5, v0, vcc\nv_mov_b32 v6, {val}')
    A('s_waitcnt vmcnt(0)\ns_barrier\ns_cmp_eq_u32 s18, 0\ns_cbranch_scc0 L_i_sig\nbuffer_atomic_add v6, v5, s[88:91], 0 offen sc0 sc1\ns_waitcnt vmcnt(0)')
    A(f'v_readfirstlane_b32 s20, v6\ns_add_u32 s20, s20, {val}\ns_and_b32 s21, s20, 255\ns_cmp_eq_u32 s21, 64\ns_cbranch_scc0 L_i_sig')
    A('v_mov_b32 v6, s20\nbuffer_store_dword v6, v5, s[88:91], 0 offen offset:128 sc1\nL_i_sig:')
def init_phase(A, P):
    common_lane(A)
    set_srd(A, 12, 0, 2048*1280)
    A('s_lshl_b32 s22, s17, 1\ns_add_u32 s23, s22, 1')
    ln_load(A, 's22', 20); ln_load(A, 's23', 80)
    A('s_add_u32 s24, s17, 65\ns_min_u32 s24, s24, 111'); role_poison(A, P, 's24')
    A('s_add_u32 s24, s17, 1'); role_poison(A, P, 's24')
    def vote():
        A('s_mov_b32 s25, 1\ns_cmp_eq_u32 s18, 0\ns_cbranch_scc0 L_i_nov\ns_waitcnt vmcnt(0)')
        A('s_lshl_b32 s24, s24, 14\ns_add_u32 s24, s24, 4096\ns_and_b32 s20, s17, 4\ns_lshl_b32 s20, s20, 11\ns_add_u32 s24, s24, s20')
        for h in range(2):
            A('s_memtime s[26:27]\ns_waitcnt lgkmcnt(0)\nbuffer_load_dword v6, off, s[8:11], s24 sc1\ns_waitcnt vmcnt(0)\ns_memtime s[28:29]\ns_waitcnt lgkmcnt(0)')
            A(f's_sub_u32 s{35+h}, s28, s26\ns_xor_b32 s24, s24, 0x2000')
        A('s_cmp_lt_u32 s36, s35\ns_cselect_b32 s25, 0x2000, 0\ns_xor_b32 s25, s25, s20\ns_lshr_b32 s25, s25, 5\ns_add_u32 s25, s25, 1\nL_i_nov:')
    if P.get('VP', 1) == 0: vote()
    A('s_waitcnt vmcnt(8)')
    ln_compute(A, 's22', 20); ln_compute(A, 's23', 80)
    if P.get('VP', 1) == 1: vote()
    A('s_sub_u32 s17, s17, 30\ns_cmp_lt_u32 s17, 10\ns_cbranch_scc0 L_i_done')
    role_mem0(A, P)
    A('L_i_done:')
    signal_init(A, 's25')
    rts(A, P, 9)
XB = 40960
def xn_dma(A, seg_sreg):
    A(f's_mul_i32 s20, {seg_sreg}, 40960\ns_mul_i32 s21, s18, 10240\ns_add_u32 s20, s20, s21\ns_add_u32 s20, s20, {OFF_XN}\ns_add_u32 s21, s21, s40')
    for j in range(10):
        if (j & 3) == 0: A('s_mov_b32 m0, s21')
        A(f'buffer_load_dwordx4 v4, s[4:7], s20 offen offset:{(j&3)*1024} sc1 lds')
        if (j & 3) == 3: A('s_add_u32 s20, s20, 4096\ns_add_u32 s21, s21, 4096')
def xn_pass(A, nt, acc, mid=None):
    F = 100; NS = 5
    seq = [(kk, rt) for kk in range(20) for rt in range(2)]
    def rd(i):
        kk, rt = seq[i]; A(f'ds_read_b128 v[{F+4*(i%NS)}:{F+3+4*(i%NS)}], v5 offset:{(rt*20+kk)*1024}')
    for i in range(NS - 1): rd(i)
    for i, (kk, rt) in enumerate(seq):
        A(f's_waitcnt lgkmcnt({min(NS-2, 39-i)})')
        for t in range(nt):
            a = acc + 4*(rt*nt + t)
            A(f'{MF} v[{a}:{a+3}], {wreg4(20*(t>>1) + 2*(kk>>1) + (t&1), kk&1)}, v[{F+4*(i%NS)}:{F+3+4*(i%NS)}], {"0" if kk == 0 else f"v[{a}:{a+3}]"}')
            if t == 0 and i + NS - 1 < 40: rd(i + NS - 1)
        if mid and i == mid[0]: mid[1]()
def pack(A, dst, x, y):
    A(f'v_cvt_pk_bf16_f32 v{dst}, v{x}, v{x+1}\nv_cvt_pk_bf16_f32 v{dst+1}, v{y}, v{y+1}\nv_cvt_pk_bf16_f32 v{dst+2}, v{x+2}, v{x+3}\nv_cvt_pk_bf16_f32 v{dst+3}, v{y+2}, v{y+3}')
def pack2(A, dst, x, y):
    A(f'v_cvt_pk_bf16_f32 v{dst}, v{x}, v{x+2}\nv_cvt_pk_bf16_f32 v{dst+1}, v{x+1}, v{x+3}\nv_cvt_pk_bf16_f32 v{dst+2}, v{y}, v{y+2}\nv_cvt_pk_bf16_f32 v{dst+3}, v{y+1}, v{y+3}')
def natw(opbase, stride, coff):
    return [grp(lambda half, jp, c: 64*ks + 32*half + NAT[jp][c], stride, coff, opbase + 2*ks, opbase + 2*ks + 1) for ks in range(10)]
def xw_weights(A, P, parts):
    A('s_mov_b32 s40, 0')
    early = (lambda: A('buffer_load_dword v171, off, s[88:91], 0 offset:128 sc1')) if P.get('ONE') else None
    def late():
        wait_init(A, P, 171, True); xn_dma(A, 's16')
    if len(parts) == 2 and P.get('REV', 0):
        l = A.lab('rev')
        A(f's_bitcmp1_b32 s16, 0\ns_cbranch_scc0 {l}_a')
        load_weights2(A, parts[::-1], early, late, 10)
        A(f's_branch {l}_b\n{l}_a:')
        load_weights2(A, parts, early, late, 10)
        A(f'{l}_b:')
    else: load_weights2(A, parts, early, late, 10)
def xw_loop(A, P, nm, body, nst, flagbase, nb=0):
    A(f's_lshl_b32 s20, s42, 7\ns_add_u32 s20, s20, {flagbase}\ns_add_u32 s20, s20, s19\ns_cmp_eq_u32 s18, 0\ns_cselect_b32 s20, s20, {OOB}')
    A(f'v_mov_b32 v9, s20\nv_cmp_eq_u32 vcc, 0, v1\nv_mov_b32 v15, {OOB}\nv_cndmask_b32 v9, v15, v9, vcc')
    rts(A, P, 1)
    A('s_waitcnt vmcnt(0)\ns_barrier')
    A(f'{nm}_loop:')
    A(f'v_add_u32 v5, s40, v4\ns_xor_b32 s40, s40, {XB}\ns_sub_u32 s20, s16, 1\nv_mov_b32 v10, s20')
    if nb: A(f's_cmp_lt_u32 s16, {2*nb-1}\ns_cselect_b32 s20, 2, s41\ns_add_u32 s43, s16, s20')
    else: A('s_add_u32 s43, s16, s41')
    A('s_min_u32 s44, s43, 63')
    xn_dma(A, 's44')
    def mid():
        A('s_waitcnt vmcnt(10)\ns_barrier\nbuffer_store_dword v10, v9, s[8:11], 0 offen sc1')
    body(mid)
    A(f's_mov_b32 s16, s43\ns_cmp_lt_u32 s16, 64\ns_waitcnt vmcnt({nst})\ns_barrier\ns_cbranch_scc1 {nm}_loop')
    A('v_mov_b32 v10, 64\ns_waitcnt vmcnt(0)\ns_barrier\nbuffer_store_dword v10, v9, s[8:11], 0 offen sc1')
def role_qkx(A, P):
    common_lane(A)
    A('v_lshlrev_b32 v10, 16, v13\nv_lshl_add_u32 v10, v12, 2, v10\ns_lshl_b32 s20, s17, 8\ns_lshl_b32 s21, s18, 6\ns_add_u32 s20, s20, s21\nv_add_u32 v10, s20, v10')
    set_srd(A, 12, 24, 640*8192); set_srd(A, 92, 16, 640*8192)
    xw_weights(A, P, [(natw(0, 8192, 0), 's[12:15]', 'v10', 1), (natw(20, 8192, 0), 's[92:95]', 'v10', 1)])
    A('v_and_b32 v8, 1, v13\nv_lshlrev_b32 v8, 10, v8\nv_lshrrev_b32 v14, 1, v13\nv_lshl_add_u32 v8, v14, 9, v8\nv_lshl_add_u32 v8, v12, 4, v8')
    A('s_and_b32 s20, s18, 1\ns_lshl_b32 s20, s20, 11\ns_lshr_b32 s21, s18, 1\ns_lshl_b32 s21, s21, 8\ns_add_u32 s20, s20, s21\nv_add_u32 v8, s20, v8')
    A(f's_mov_b32 s33, {f32(CSC)}')
    def body(mid):
        xn_pass(A, 4, 16, (P.get('MQX', 12), mid))
        A(f's_and_b32 s20, s16, {rm(P)}\ns_lshl_b32 s20, s20, 5\ns_add_u32 s20, s20, s17\ns_lshl_b32 s20, s20, 15\ns_add_u32 s20, s20, {kq_place(P)[0]}')
        side(A, 's20', 's20', kq_place(P)[1], 's21')
        for rt in range(2):
            pack2(A, 48 + 4*rt, 16 + 16*rt, 20 + 16*rt)
            A(f'buffer_store_dwordx4 v[{48+4*rt}:{51+4*rt}], v8, s[4:7], s20 offen sc1\ns_add_u32 s20, s20, {4096 + 8192*rt}')
        for rt in range(2):
            for r in range(8): A(f'v_mul_f32 v{24+16*rt+r}, s33, v{24+16*rt+r}')
            pack2(A, 56 + 4*rt, 24 + 16*rt, 28 + 16*rt)
            A(f'buffer_store_dwordx4 v[{56+4*rt}:{59+4*rt}], v8, s[4:7], s20 offen sc1\ns_add_u32 s20, s20, 4096')
    xw_loop(A, P, 'L_qkx', body, 4, FWK, P.get('NB', 0))
def role_ffn1(A, P):
    common_lane(A)
    A('v_mul_u32_u24 v10, 27648, v13\nv_lshl_add_u32 v10, v12, 2, v10\ns_lshl_b32 s20, s17, 9\ns_lshl_b32 s21, s18, 7\ns_add_u32 s20, s20, s21\nv_add_u32 v10, s20, v10')
    set_srd(A, 12, 64, 640*3456); xw_weights(A, P, [([x for p in zip(natw(0, 3456, 0), natw(20, 3456, 64)) for x in p], 's[12:15]', 'v10', 2)])
    A(f's_lshl_b32 s20, s17, 2\ns_add_u32 s20, s20, s18\ns_cmp_lt_u32 s20, 27\ns_cselect_b32 s20, s20, 0x20000\ns_and_b32 s21, s20, 1\ns_lshr_b32 s20, s20, 1\ns_lshl_b32 s20, s20, 14\ns_lshl_b32 s21, s21, 12\ns_add_u32 s20, s20, s21\nv_add_u32 v8, s20, v4')
    A(f's_mov_b32 s33, {f32(-LOG2E)}')
    def body(mid):
        xn_pass(A, 4, 16, (P.get('MFX', 36), mid))
        A(f's_and_b32 s20, s16, {rm(P)}\ns_lshl_b32 s20, s20, 20\ns_add_u32 s20, s20, {OFF_SEG + C_H}')
        side(A, 's20', 's20', 's34', 's21')
        for rt in range(2):
            for m in range(2):
                b = 16 + 16*rt + 8*m
                silu(A, range(b, b + 8), range(64, 72))
                pack(A, 48 + 8*rt + 4*m, b, b + 4)
                A(f'buffer_store_dwordx4 v[{48+8*rt+4*m}:{51+8*rt+4*m}], v8, s[4:7], s20 offen offset:{m*2048 + rt*1024} sc1')
    xw_loop(A, P, 'L_ffn1', body, 4, FWF)
def role_vox(A, P):
    common_lane(A)
    LV = 2*XB
    A('v_lshlrev_b32 v10, 16, v13\nv_lshl_add_u32 v10, v12, 2, v10\ns_lshl_b32 s20, s17, 8\ns_lshl_b32 s21, s18, 6\ns_add_u32 s20, s20, s21\nv_add_u32 v10, s20, v10')
    A('v_mov_b32 v9, v10')
    A('v_mul_u32_u24 v10, 10240, v13\nv_lshl_add_u32 v10, v12, 2, v10\ns_mul_i32 s20, s17, 163840\ns_mul_i32 s21, s18, 320\ns_add_u32 s20, s20, s21\nv_add_u32 v10, s20, v10')
    g = [grp(lambda half, jp, c: 64*ks + 32*half + OFFS[jp][c], 1280, j*64, 20 + 4*j + ks, 22 + 4*j + ks) for ks in range(2) for j in range(5)]
    set_srd(A, 12, 32, 640*8192); set_srd(A, 92, 40, 32*163840)
    xw_weights(A, P, [(natw(0, 8192, 0), 's[12:15]', 'v9', 1), (g, 's[92:95]', 'v10', 5)])
    A(f's_lshr_b32 s45, s17, 3\ns_lshl_b32 s45, s45, 14\ns_and_b32 s20, s17, 7\ns_lshl_b32 s20, s20, 10\ns_add_u32 s45, s45, s20\ns_add_u32 s45, s45, {OFF_UX}')
    A(['s_mov_b32 s35, s34', 's_lshl_b32 s35, s17, 10\ns_xor_b32 s35, s35, s34', 's_mov_b32 s35, s19'][P.get('UXS', 1)])
    A(f's_lshl_b32 s20, s18, 10\ns_add_u32 s20, s20, {LV}\nv_add_u32 v6, s20, v4\nv_add_u32 v7, {LV}, v4')
    def body(mid):
        xn_pass(A, 2, 16, (P.get('MVX', 24), mid))
        for rt in range(2):
            pack(A, 32 + 4*rt, 16 + 8*rt, 20 + 8*rt)
            A(f'ds_write_b128 v6, v[{32+4*rt}:{35+4*rt}] offset:{rt*4096}')
        A(f's_and_b32 s20, s16, {rm(P)}\ns_mul_i32 s20, s20, 40\ns_mul_i32 s21, s18, 10\ns_add_u32 s20, s20, s21\ns_lshl_b32 s20, s20, 16\ns_add_u32 s20, s20, s45')
        A('s_waitcnt lgkmcnt(0)\ns_barrier')
        for kk in range(4):
            for rt in range(2): A(f'ds_read_b128 v[{40+16*rt+4*kk}:{43+16*rt+4*kk}], v7 offset:{rt*4096 + kk*1024}')
        def fin(t):
            a = 72 + 8*(t % 3)
            return [f'v_cvt_pk_bf16_f32 v{16+4*(t&1)+r}, v{a+r}, v{a+4+r}' for r in range(4)] + \
                   [f'buffer_store_dwordx4 v[{16+4*(t&1)}:{19+4*(t&1)}], v4, s[4:7], s22 offen sc1', 's_add_u32 s20, s20, 65536']
        sd = ['s_lshr_b32 s21, s20, 8', 's_xor_b32 s21, s21, s35', 's_and_b32 s21, s21, 0x2000', 's_or_b32 s22, s20, s21']
        for t in range(10):
            f = fin(t - 1) if t else []
            for kk in range(4):
                if t == 0: A(f's_waitcnt lgkmcnt({6-2*kk})')
                for rt in range(2):
                    a = 72 + 8*(t % 3) + 4*rt
                    A(f'{MF} v[{a}:{a+3}], v[{40+16*rt+4*kk}:{43+16*rt+4*kk}], {wreg4(20 + 2*t + (kk>>1), kk&1)}, {"0" if kk == 0 else f"v[{a}:{a+3}]"}')
                    if t and kk < 2: A('s_nop 0\n' + sd[2*kk + rt])
                    if f and kk >= 2:
                        A('\n'.join(f[:2])); f = f[2:]
            if f: A('\n'.join(f))
        A('\n'.join(sd + fin(9)))
    xw_loop(A, P, 'L_vox', body, 10, FWV, P.get('NB', 0))
def role_fin(A, P):
    sync = P.get('SYNC')
    common_lane(A)
    A('v_mul_u32_u24 v10, 10240, v13\nv_lshl_add_u32 v10, v12, 2, v10\ns_lshl_b32 s20, s17, 6\ns_mul_i32 s21, s18, 573440\ns_add_u32 s20, s20, s21\nv_add_u32 v10, s20, v10')
    g = [grp(lambda half, jp, c: 64*ks + 32*half + OFFS[jp][c], 1280, 0, 2*ks, 2*ks + 1) for ks in range(7)]
    set_srd(A, 12, 72, 1728*1280); load_weights2(A, [(g, 's[12:15]', 'v10', 1)])
    set_srd(A, 12, 0, 2048*1280); set_srd(A, 44, 80, 2048*1280)
    A(f's_mov_b32 s33, {f32(-LOG2E)}')
    A('v_mul_u32_u24 v8, 1280, v12\nv_lshl_add_u32 v8, v13, 4, v8\ns_lshr_b32 s20, s18, 1\ns_mul_i32 s20, s20, 20480\ns_and_b32 s21, s18, 1\ns_lshl_b32 s21, s21, 3')
    A('s_add_u32 s20, s20, s21\ns_lshl_b32 s21, s17, 6\ns_add_u32 s20, s20, s21\nv_add_u32 v8, s20, v8')
    A('s_lshl_b32 s20, s18, 12\nv_add_u32 v6, s20, v4\ns_lshr_b32 s20, s18, 1\ns_lshl_b32 s20, s20, 11\ns_and_b32 s21, s18, 1\ns_lshl_b32 s21, s21, 3\ns_add_u32 s20, s20, s21\nv_add_u32 v7, s20, v4')
    if sync:
        A(f'v_lshlrev_b32 v9, 7, v1\ns_add_u32 s20, s19, {FWV}\nv_add_u32 v2, s20, v9')
        A(f'v_min_u32 v3, {P["NFFN"]-1}, v1\nv_lshlrev_b32 v3, 7, v3\ns_add_u32 s20, s19, {FWF}\nv_add_u32 v3, s20, v3\ns_mov_b32 s36, -1\ns_mov_b32 s37, -1')
        A(f's_add_u32 s20, s19, {FCH}\nv_add_u32 v9, s20, v9\ns_xor_b32 s20, s19, 0x2000\ns_add_u32 s20, s20, {FAG}\nv_mov_b32 v10, s20')
    H = 64; UXA = 112
    def reduce(base, dst):
        for j in range(4): A(f'ds_write_b128 v6, v[{16+4*j}:{19+4*j}] offset:{base + j*1024}')
        A('s_waitcnt lgkmcnt(0)\ns_barrier')
        for w in range(4):
            for i in range(2): A(f'ds_read_b64 v[{16+4*w+2*i}:{17+4*w+2*i}], v7 offset:{base + w*4096 + i*1024}')
        A('s_waitcnt lgkmcnt(0)')
        for r in range(4): A(f'v_add_f32 v{16+r}, v{16+r}, v{20+r}\nv_add_f32 v{24+r}, v{24+r}, v{28+r}')
        for r in range(4): A(f'v_add_f32 v{dst+r}, v{16+r}, v{24+r}')
    PX = 176; PM = 176
    A(f's_mul_i32 s20, s18, 7\ns_and_b32 s21, s20, 1\ns_lshr_b32 s20, s20, 1\ns_lshl_b32 s20, s20, 14\ns_lshl_b32 s22, s21, 12\ns_add_u32 s50, s20, s22\ns_add_u32 s50, s50, {OFF_SEG + C_H}')
    A('s_lshl_b32 s21, s21, 13\ns_add_u32 s48, s21, 4096\ns_sub_u32 s49, 16384, s48')
    A(['s_mov_b32 s35, s34', 's_lshl_b32 s35, s18, 13\ns_xor_b32 s35, s35, s34', 's_mov_b32 s35, s19'][P.get('UXS', 1)])
    def ld_h(seg):
        if sync: A(f's_min_u32 s39, {seg}, 63'); min_wait(A, 'v3', 15, 's39', 's36', 4)
        A(f's_and_b32 s20, {seg}, {rm(P)}\ns_lshl_b32 s20, s20, 20\ns_add_u32 s20, s20, s50')
        side(A, 's20', 's20', 's34', 's21')
        A(f's_cmp_eq_u32 s18, 3\ns_cselect_b32 s22, {OOB}, 0\nv_add_u32 v14, s22, v5')
        for kk in range(14):
            for rt in range(2):
                A(f'buffer_load_dwordx4 v[{H+8*kk+4*rt}:{H+3+8*kk+4*rt}], {"v14" if kk >= 12 else "v5"}, s[4:7], s20 offen offset:{(kk&1)*2048 + rt*1024} sc1')
            if kk & 1: A(f's_add_u32 s20, s20, s{48 + ((kk>>1)&1)}')
    def ld_ux(seg):
        if sync: A(f's_min_u32 s39, {seg}, 63'); min_wait(A, 'v2', 15, 's39', 's37', 4)
        A(f's_and_b32 s22, {seg}, {rm(P)}\ns_mul_i32 s22, s22, 20\ns_add_u32 s22, s22, s17\ns_lshl_b32 s22, s22, 17\ns_lshl_b32 s21, s18, 14\ns_add_u32 s22, s22, s21\ns_add_u32 s22, s22, {OFF_UX}')
        side(A, 's22', 's22', 's35', 's21')
        for i in range(2):
            for h in range(8):
                A(f'buffer_load_dwordx4 a[{UXA+32*i+4*h}:{UXA+3+32*i+4*h}], v5, s[4:7], s22 offen offset:{(h&3)*1024} sc1')
                if h == 3: A('s_add_u32 s22, s22, 4096')
            A(f's_add_u32 s22, s22, {65536-4096}')
    rts(A, P, 3)
    A('v_mov_b32 v5, v4\ns_mov_b32 s38, -1')
    ld_h('s16')
    A(f'v_mov_b32 v15, {OOB}\nbuffer_load_dword v15, v15, s[4:7], 0 offen')
    A('L_fin_loop:')
    ld_ux('s16')
    for kk in range(14):
        A(f's_waitcnt vmcnt({17 + 26 - 2*kk})')
        for rt in range(2):
            for i in range(2):
                a = 16 + 8*rt + 4*i
                A(f'{MF} v[{a}:{a+3}], {wreg4(2*(kk>>1)+i, kk&1)}, v[{H+8*kk+4*rt}:{H+3+8*kk+4*rt}], {"0" if kk == 0 else f"v[{a}:{a+3}]"}')
    reduce(0, 32)
    silu(A, range(32, 36), range(36, 40))
    A(f's_and_b32 s22, s16, {rm(P)}\ns_lshl_b32 s22, s22, 20\ns_add_u32 s22, s22, {OFF_SEG}')
    side(A, 's22', 's22', 's34')
    A(f's_lshl_b32 s21, s18, 11\ns_add_u32 s21, s21, s22\ns_lshl_b32 s23, s17, 15\ns_add_u32 s23, s23, s21\ns_add_u32 s24, s23, {MBLK}')
    A(f's_add_u32 s25, s21, {C_PXM}\ns_add_u32 s26, s25, {MBLK}')
    A(f's_lshl_b32 s21, s18, 14\ns_add_u32 s27, s22, s21\ns_add_u32 s27, s27, {C_PXX}\ns_add_u32 s28, s27, {4*MBLK}')
    A(f's_mul_i32 s29, s16, 40960\ns_add_u32 s43, s16, s41\ns_cmp_lt_u32 s43, 64\ns_cselect_b32 s20, 0, {OOB}\nv_add_u32 v5, s20, v4')
    if sync:
        A('s_cmp_eq_u32 s18, 0\ns_cbranch_scc0 L_fin_go\ns_add_u32 s39, s16, 1\ns_min_u32 s39, s39, 62')
        min_wait(A, 'v10', 15, 's39', 's38', P.get('FS', 4))
        A('s_cmp_lt_u32 s16, 62\ns_cbranch_scc1 L_fin_go')
        wait_flags(A, None, None, '63', None, 15, 9, 1)
        A('L_fin_go:\ns_barrier')
    for h in range(8):
        for qt in range(2):
            A(f'buffer_load_dwordx4 v[{PX+8*h+4*qt}:{PX+3+8*h+4*qt}], v4, s[4:7], s{27+qt} offen offset:{(h&3)*1024} sc1')
        if h == 3: A('s_add_u32 s27, s27, 4096\ns_add_u32 s28, s28, 4096')
    for j in range(2):
        for qt in range(2): A(f'buffer_load_dwordx4 a[{PM+16*j+4*qt}:{PM+3+16*j+4*qt}], v4, s[4:7], s{25+qt} offen offset:{j*1024} sc1')
        for i in range(2): A(f'buffer_load_dwordx4 a[{PM+8+16*j+4*i}:{PM+11+16*j+4*i}], v4, s[4:7], s{23+i} offen offset:{j*1024} sc1')
    A('buffer_load_dwordx2 v[40:41], v8, s[12:15], s29 offen\ns_waitcnt vmcnt(25)')
    ld_h('s43')
    for h in range(8):
        A(f's_waitcnt vmcnt({28 + 9 + 14 - 2*h})')
        for qt in range(2):
            for i in range(2):
                a = 16 + 8*qt + 4*i
                A(f'{MF} v[{a}:{a+3}], a[{UXA+32*i+4*h}:{UXA+3+32*i+4*h}], v[{PX+8*h+4*qt}:{PX+3+8*h+4*qt}], {"0" if h == 0 else f"v[{a}:{a+3}]"}')
    for j in range(2):
        A(f's_waitcnt vmcnt({28 + 5 - 5*j})')
        for qt in range(2):
            for i in range(2):
                a = 16 + 8*qt + 4*i
                A(f'{MF} v[{a}:{a+3}], a[{PM+8+16*j+4*i}:{PM+11+16*j+4*i}], a[{PM+16*j+4*qt}:{PM+3+16*j+4*qt}], v[{a}:{a+3}]')
    reduce(16384, 36)
    A('v_lshlrev_b32 v42, 16, v40\nv_lshlrev_b32 v43, 16, v41\nv_and_b32 v44, 0xffff0000, v40\nv_and_b32 v45, 0xffff0000, v41')
    for r in range(4): A(f'v_fmac_f32 v{42+r}, v{32+r}, v{36+r}')
    A('v_cvt_pk_bf16_f32 v40, v42, v44\nv_cvt_pk_bf16_f32 v41, v43, v45\nbuffer_store_dwordx2 v[40:41], v8, s[44:47], s29 offen')
    A('s_mov_b32 s16, s43\ns_cmp_lt_u32 s16, 64\ns_cbranch_scc1 L_fin_loop')
```
